```python
import torch

def _softmax(x, axis=-1):
    return torch.softmax(x, dim=axis)
def _gelu(x):
    return torch.nn.functional.gelu(x, approximate="tanh")
def _silu(x):
    return torch.nn.functional.silu(x)
def _sigmoid(x):
    return torch.sigmoid(x)
def _layernorm(x, axis=-1, eps=1e-5):
    m = x.mean(dim=axis, keepdim=True)
    v = x.var(dim=axis, keepdim=True, unbiased=False)
    return (x - m) / torch.sqrt(v + eps)
def _scatter_add(tgt, idx, src, axis=0):
    return tgt.clone().index_add_(axis, idx, src)
def _segment_sum(src, seg, n):
    out = torch.zeros((n,) + src.shape[1:], dtype=src.dtype)
    return out.index_add_(0, seg, src)
def _pad(x, pw):
    flat = tuple(v for pair in reversed(pw) for v in pair)
    return torch.nn.functional.pad(x, flat)

kernel_name = 'gated_mix__sliding_local_dilated__linear_attn_block__prompt'

def setup_inputs():

    _w = (lambda a: (lambda t: t.to(torch.bfloat16) if t.is_floating_point() else t)(torch.as_tensor(a)))
    def _A_setup():
        B, S, D = 1, 2048, 448
        return {
            "x": _w((lambda *s: torch.randn(*s, dtype=torch.bfloat16) * 0.05)(B, S, D)),
            "wqkv": _w((lambda *s: torch.randn(*s, dtype=torch.bfloat16) * 0.8)(D, 3 * D)),
            "wo": _w((lambda *s: torch.randn(*s, dtype=torch.bfloat16) * 0.05)(D, D)),
        }
    _A_in = _A_setup()

    def _B_setup():
        B, S, D = 1, 2048, 448
        return {
            "x": _w((lambda *s: torch.randn(*s, dtype=torch.bfloat16) * 0.05)(B, S, D)),
            "wqkv": _w((lambda *s: torch.randn(*s, dtype=torch.bfloat16) * 1.6)(D, 3 * D)),
            "wo": _w((lambda *s: torch.randn(*s, dtype=torch.bfloat16) * 0.4)(D, D)),
        }
    _B_in = _B_setup()

    return {
        "A_x": _A_in["x"],
        "A_wqkv": _A_in["wqkv"],
        "A_wo": _A_in["wo"],
        "B_x": _B_in["x"],
        "B_wqkv": _B_in["wqkv"],
        "B_wo": _B_in["wo"],
        "gate_w": _w((lambda *s: torch.randn(*s, dtype=torch.bfloat16) * 0.05)(448) * 16.0),
    }

def reference(A_x, A_wqkv, A_wo, B_x, B_wqkv, B_wo, gate_w):
    def _A_ref(x, wqkv, wo):
        B, S, D = x.shape
        H = 16; Dh = D // H
        W, dil = 8, 2
        qkv = (lambda x, *d: x.permute(*d))((x @ wqkv).reshape(B, S, 3, H, Dh), 2, 0, 3, 1, 4)
        q, k, v = qkv[0], qkv[1], qkv[2]
        scale = Dh ** -0.5
        pos = torch.arange(S)
        off = torch.arange(W) * dil
        idx = pos[:, None] - off[None, :]
        mask = idx >= 0
        idx_c = torch.where(mask, idx, 0).reshape(-1)
        kg = k[:, :, idx_c, :].reshape(B, H, S, W, Dh)
        vg = v[:, :, idx_c, :].reshape(B, H, S, W, Dh)
        logits = torch.einsum("bhsd,bhswd->bhsw", q, kg) * scale
        logits = torch.where(mask[None, None, :, :], logits, -1e9)
        attn = _softmax(logits, axis=-1)
        o = torch.einsum("bhsw,bhswd->bhsd", attn, vg)
        return (lambda x, *d: x.permute(*d))(o, 0, 2, 1, 3).reshape(B, S, D) @ wo

    def _B_ref(x, wqkv, wo):
        B, S, D = x.shape
        H = 16; Dh = D // H
        qkv = (lambda x, *d: x.permute(*d))((x @ wqkv).reshape(B, S, 3, H, Dh), 2, 0, 3, 1, 4)
        q, k, v = qkv[0], qkv[1], qkv[2]
        phi = lambda t: torch.where(t > 0, t + 1, torch.exp(t)) + 1e-6
        pq, pk = phi(q), phi(k)
        kv = torch.einsum("bhsd,bhse->bhde", pk, v)
        z = torch.einsum("bhsd->bhd", pk)
        num = torch.einsum("bhqd,bhde->bhqe", pq, kv)
        den = torch.einsum("bhqd,bhd->bhq", pq, z)[..., None] + 1e-6
        o = num / den
        return (lambda x, *d: x.permute(*d))(o, 0, 2, 1, 3).reshape(B, S, D) @ wo

    x = A_x
    g = _sigmoid((x * gate_w).sum(-1, keepdims=True))
    a = _A_ref(x, A_wqkv, A_wo)
    b = _B_ref(x, B_wqkv, B_wo)
    return g * a + (1 - g) * b
```

```python
import sys, math

NAME = "gated_mix__sliding_local_dilated__linear_attn_block__prompt"
STAMPS = "--stamps" in sys.argv

WS_EPOCH = 0
WS_F1 = 0x1000
WS_F2 = 0x10000
WS_KV = 0x40000
WS_GATE = 0x180000
WS_STAMP = 0x190000
WS_O = 0x200000
WS_SIZE = 0x800000

A_X = [0, 16384, 32768]
A_W = [49152, 73728, 98304]
A_HALO = 122880
A_EXCH = 137216
B_X = [0, 16384, 32768, 49152]
B_W = [65536, 81920, 98304, 114688]
B_WQ = [131072, 139264, 147456, 155648, 49152, 57344, 114688]
B_KVS = 0
B_KVF = 32768
P2_WO = 0
P2_ZERO = 114688
P2_CB = 115200
P2_CBSZ = 64 * 272
P2_G = P2_CB + 2 * P2_CBSZ
LDS_BYTES = 163840

LOG2E = 1.4426950408889634
import struct
def f2u(x): return struct.unpack("<I", struct.pack("<f", x))[0]

class Asm:
    def __init__(self):
        self.lines = []
        self.vm = []
        self.lbl = 0
    def __call__(self, s):
        self.lines.append("    " + s)
    def c(self, s):
        self.lines.append("    ; " + s)
    def label(self, name):
        self.lines.append(name + ":")
    def newlabel(self, p="L"):
        self.lbl += 1
        return f"{p}_{self.lbl}"
    def vmem(self, s, tag):
        self(s); self.vm.append(tag)
    def vmem_uncounted(self, s):
        self(s)
    def wait_vm(self, tag, extra=""):
        idx = max(i for i, t in enumerate(self.vm) if t == tag)
        n = len(self.vm) - 1 - idx
        assert n <= 63
        self(f"s_waitcnt vmcnt({n}){extra}")
        self.vm = self.vm[idx + 1:]
    def wait_vm_all(self, extra=""):
        self(f"s_waitcnt vmcnt(0){extra}")
        self.vm = []

def vr(b, n=1):
    return f"v{b}" if n == 1 else f"v[{b}:{b+n-1}]"
def sr(b, n=1):
    return f"s{b}" if n == 1 else f"s[{b}:{b+n-1}]"

a = Asm()

SX, SW, SWS, SWOA, SWOB, SOUT, SG = 8, 12, 16, 20, 24, 28, 32
sWAVE, sMI, sNI, sRB, sHP, sTYPE = 36, 37, 38, 39, 40, 41
sTAG = 42
sT0, sT1, sT2, sT3 = 44, 45, 46, 47
sW1K, sW2K, sW3K = 48, 49, 50
sSOX, sSOW = 51, 52
sMASK48 = 54
sODD = 56
sONE = 58
sEXEC = 60
sCB, sHALF = 62, 63
sCNT = 64
sPC = 66
sK0, sK1, sK2 = 68, 69, 70
sST = 72
sPTR = 76

vTID, vLANE, vI16, vG = 0, 1, 2, 3
vT0, vT1, vT2, vT3, vT4, vT5 = 4, 5, 6, 7, 8, 9

stamp_idx = [0]
def stamp(name):
    if not STAMPS: return
    i = stamp_idx[0]; stamp_idx[0] += 1
    a.c(f"stamp {i}: {name}")
    a(f"s_memrealtime {sr(sST,2)}")
    a("s_waitcnt lgkmcnt(0)")
    a(f"v_mov_b32 v23, {sr(sST)}")
    a(f"s_lshl_b32 s74, s2, 3")
    a(f"s_add_u32 s74, s74, {sr(sWAVE)}")
    a(f"s_lshl_b32 s74, s74, 7")
    a(f"s_add_u32 s74, s74, {WS_STAMP + i*4}")
    a(f"s_mov_b64 {sr(sST,2)}, exec")
    a("s_mov_b64 exec, 1")
    a.vmem_uncounted(f"buffer_store_dword v23, off, {sr(SWS,4)}, s74")
    a(f"s_mov_b64 exec, {sr(sST,2)}")

def mfma(d, A, B, C=None):
    c = vr(C, 4) if C is not None else "0"
    a(f"v_mfma_f32_16x16x32_bf16 {vr(d,4)}, {vr(A,4)}, {vr(B,4)}, {c}")

def cvtpk(d, x, y):
    a(f"v_cvt_pk_bf16_f32 {vr(d)}, {vr(x)}, {vr(y)}")

def prologue():
    a.label(f"{NAME}_kernel")
    a("s_cmp_ge_u32 s2, 256")
    a("s_cbranch_scc1 L_end")
    a(f"s_load_dwordx16 {sr(sPTR,16)}, s[0:1], 0")
    a(f"s_load_dwordx4 {sr(sPTR+16,4)}, s[0:1], 64")
    a(f"s_getpc_b64 {sr(sPC,2)}")
    a.label("L_pc")
    a(f"v_lshrrev_b32 {vr(vT0)}, 6, v0")
    a(f"v_and_b32 {vr(vLANE)}, 63, v0")
    a(f"v_readfirstlane_b32 {sr(sWAVE)}, {vr(vT0)}")
    a(f"v_and_b32 {vr(vI16)}, 15, v0")
    a(f"v_bfe_u32 {vr(vG)}, v0, 4, 2")
    a(f"s_and_b32 {sr(sT0)}, s2, 7")
    a(f"s_lshr_b32 {sr(sT1)}, s2, 3")
    a(f"s_lshr_b32 {sr(sT2)}, {sr(sT0)}, 1")
    a(f"s_lshl_b32 {sr(sT2)}, {sr(sT2)}, 2")
    a(f"s_and_b32 {sr(sT3)}, {sr(sT1)}, 3")
    a(f"s_add_u32 {sr(sRB)}, {sr(sT2)}, {sr(sT3)}")
    a(f"s_and_b32 {sr(sHALF)}, {sr(sT0)}, 1")
    a(f"s_lshl_b32 {sr(sT2)}, {sr(sHALF)}, 2")
    a(f"s_bfe_u32 {sr(sT3)}, {sr(sT1)}, 0x20002")
    a(f"s_add_u32 {sr(sHP)}, {sr(sT2)}, {sr(sT3)}")
    a(f"s_lshr_b32 {sr(sTYPE)}, {sr(sT1)}, 4")
    a(f"s_lshl_b32 {sr(sT2)}, {sr(sTYPE)}, 2")
    a(f"s_add_u32 {sr(sCB)}, {sr(sT2)}, {sr(sT3)}")
    a(f"s_lshr_b32 {sr(sMI)}, {sr(sWAVE)}, 1")
    a(f"s_and_b32 {sr(sNI)}, {sr(sWAVE)}, 1")
    a(f"s_lshl_b32 {sr(sW1K)}, {sr(sWAVE)}, 10")
    a(f"s_lshl_b32 {sr(sW2K)}, {sr(sWAVE)}, 11")
    a(f"s_add_u32 {sr(sW3K)}, {sr(sW1K)}, {sr(sW2K)}")
    a(f"s_mov_b32 {sr(sMASK48)}, -1")
    a(f"s_mov_b32 {sr(sMASK48+1)}, 0xffff")
    a(f"s_mov_b32 {sr(sODD)}, 0xaaaaaaaa")
    a(f"s_mov_b32 {sr(sODD+1)}, 0xaaaaaaaa")
    a(f"s_mov_b32 {sr(sONE)}, 0x10001000")
    a(f"s_mov_b32 {sr(sONE+1)}, 0x10001000")
    a(f"s_and_b32 {sr(sT2)}, {sr(sT1)}, 7")
    a(f"s_lshl_b32 {sr(sT2)}, {sr(sT2)}, 3")
    a(f"s_add_u32 {sr(sT2)}, {sr(sT2)}, {sr(sWAVE)}")
    a(f"s_cmp_lg_u32 {sr(sT2)}, 7")
    a("s_cbranch_scc1 L_nopf")
    a(f"v_lshlrev_b32 {vr(vT1)}, 7, {vr(vLANE)}")
    a(f"v_min_u32 {vr(vT2)}, L_end-L_pc-8192, {vr(vT1)}")
    a(f"v_min_u32 {vr(vT3)}, L_end-L_pc-16384, {vr(vT1)}")
    a(f"v_add_u32 {vr(vT2)}, 8192, {vr(vT2)}")
    a(f"v_add_u32 {vr(vT3)}, 16384, {vr(vT3)}")
    a.vmem_uncounted(f"global_load_dword v250, {vr(vT1)}, {sr(sPC,2)}")
    a.vmem_uncounted(f"global_load_dword v251, {vr(vT2)}, {sr(sPC,2)}")
    a.vmem_uncounted(f"global_load_dword v252, {vr(vT3)}, {sr(sPC,2)}")
    a.label("L_nopf")
    a("s_waitcnt lgkmcnt(0)")
    P = sPTR
    def srd(d, p, n):
        a(f"s_mov_b32 {sr(d)}, {sr(p)}")
        a(f"s_mov_b32 {sr(d+1)}, {sr(p+1)}")
        a(f"s_mov_b32 {sr(d+2)}, {n}")
        a(f"s_mov_b32 {sr(d+3)}, 0x00020000")
    srd(SX, P+0, 1835008)
    a(f"s_cmp_eq_u32 {sr(sTYPE)}, 1")
    a(f"s_cselect_b32 {sr(SW)}, {sr(P+2)}, {sr(P+8)}")
    a(f"s_cselect_b32 {sr(SW+1)}, {sr(P+3)}, {sr(P+9)}")
    a(f"s_mov_b32 {sr(SW+2)}, 1204224")
    a(f"s_mov_b32 {sr(SW+3)}, 0x00020000")
    srd(SWS, P+18, WS_SIZE)
    a(f"s_load_dwordx2 {sr(sTAG,2)}, {sr(P+18,2)}, {WS_EPOCH}")
    srd(SWOA, P+4, 401408)
    srd(SWOB, P+10, 401408)
    srd(SOUT, P+14, 1835008)
    srd(SG, P+12, 896)

def dma(voff, srdreg, soff, m0expr, tag, offset=0):
    sreg, imm = m0expr
    if sreg is None:
        a(f"s_mov_b32 m0, {imm}")
    else:
        a(f"s_add_u32 m0, {sr(sreg)}, {imm}")
    so = sr(soff) if soff is not None else "0"
    off = f" offset:{offset}" if offset else ""
    return lambda: a.vmem(f"buffer_load_dwordx4 {vr(voff)}, {sr(srdreg,4)}, {so} offen{off} lds", tag)

vXG0, vXG1, vWG = 10, 11, 12
vXR0, vXR1 = 13, 14

def setup_x_addrs():
    a(f"v_lshrrev_b32 {vr(vT0)}, 3, {vr(vLANE)}")
    a(f"v_and_b32 {vr(vT1)}, 7, {vr(vLANE)}")
    a(f"v_xor_b32 {vr(vT2)}, {vr(vT1)}, {vr(vG)}")
    a(f"s_lshl_b32 {sr(sT0)}, {sr(sRB)}, 7")
    a(f"s_lshl_b32 {sr(sT1)}, {sr(sWAVE)}, 4")
    a(f"s_add_u32 {sr(sT0)}, {sr(sT0)}, {sr(sT1)}")
    a(f"s_mul_i32 {sr(sT0)}, {sr(sT0)}, 896")
    a(f"v_mul_u32_u24 {vr(vT3)}, 896, {vr(vT0)}")
    a(f"v_lshl_add_u32 {vr(vT3)}, {vr(vT2)}, 4, {vr(vT3)}")
    a(f"v_add_u32 {vr(vXG0)}, {sr(sT0)}, {vr(vT3)}")
    a(f"v_xor_b32 {vr(vT4)}, 64, {vr(vT3)}")
    a(f"v_add_u32 {vr(vXG1)}, {sr(sT0)}, {vr(vT4)}")
    a(f"v_add_u32 {vr(vXG1)}, {8*896-1024}, {vr(vXG1)}")
    a(f"v_lshrrev_b32 {vr(vT5)}, 1, {vr(vI16)}")
    a(f"v_xor_b32 {vr(vT5)}, {vr(vG)}, {vr(vT5)}")
    a(f"v_lshlrev_b32 {vr(vT5)}, 4, {vr(vT5)}")
    a(f"v_lshl_add_u32 {vr(vT5)}, {vr(vI16)}, 7, {vr(vT5)}")
    a(f"s_lshl_b32 {sr(sT1)}, {sr(sMI)}, 12")
    a(f"v_add_u32 {vr(vXR0)}, {sr(sT1)}, {vr(vT5)}")
    a(f"v_xor_b32 {vr(vXR1)}, 64, {vr(vXR0)}")

def setup_w_dma_addr():
    a(f"v_and_b32 {vr(vT2)}, 1, {vr(vG)}")
    a(f"v_lshlrev_b32 {vr(vT2)}, 1, {vr(vT2)}")
    a(f"s_lshl_b32 {sr(sT0)}, {sr(sNI)}, 2")
    a(f"v_or_b32 {vr(vT2)}, {sr(sT0)}, {vr(vT2)}")
    a(f"v_xor_b32 {vr(vT2)}, {vr(vT1)}, {vr(vT2)}")
    a(f"v_min_u32 {vr(vT2)}, 6, {vr(vT2)}")
    a(f"s_mul_i32 {sr(sT0)}, {sr(sWAVE)}, {8*2688}")
    a(f"s_mul_i32 {sr(sT1)}, {sr(sHP)}, 112")
    a(f"s_add_u32 {sr(sT0)}, {sr(sT0)}, {sr(sT1)}")
    a(f"v_mul_u32_u24 {vr(vWG)}, 2688, {vr(vT0)}")
    a(f"v_lshl_add_u32 {vr(vWG)}, {vr(vT2)}, 4, {vr(vWG)}")
    a(f"v_add_u32 {vr(vWG)}, {sr(sT0)}, {vr(vWG)}")

def w_read_lane(dst, t, nseg, tmp0, tmp1):
    a(f"v_and_b32 {vr(tmp0)}, 3, {vr(vI16)}")
    a(f"v_lshlrev_b32 {vr(tmp0)}, 3, {vr(tmp0)}")
    a(f"s_mul_i32 {sr(sT0)}, {sr(sNI)}, 56")
    if t is not None:
        a(f"s_add_u32 {sr(sT0)}, {sr(sT0)}, {t*32}")
    else:
        a(f"s_and_b32 {sr(sT1)}, {sr(sMI)}, 1")
        a(f"s_lshl_b32 {sr(sT1)}, {sr(sT1)}, 5")
        a(f"s_add_u32 {sr(sT0)}, {sr(sT0)}, {sr(sT1)}")
    a(f"v_add_u32 {vr(tmp0)}, {sr(sT0)}, {vr(tmp0)}")
    a(f"v_and_b32 {vr(tmp1)}, 8, {vr(vI16)}")
    a(f"v_lshlrev_b32 {vr(tmp1)}, 2, {vr(tmp1)}")
    a(f"v_xor_b32 {vr(tmp0)}, {vr(tmp0)}, {vr(tmp1)}")
    a(f"v_and_b32 {vr(tmp1)}, 1, {vr(vG)}")
    a(f"v_lshlrev_b32 {vr(tmp1)}, 6, {vr(tmp1)}")
    a(f"v_xor_b32 {vr(tmp0)}, {vr(tmp0)}, {vr(tmp1)}")
    a(f"v_lshrrev_b32 {vr(tmp1)}, 2, {vr(vI16)}")
    a(f"v_lshl_add_u32 {vr(tmp0)}, {vr(tmp1)}, 7, {vr(tmp0)}")
    a(f"v_mul_u32_u24 {vr(tmp1)}, {nseg*1024}, {vr(vG)}")
    a(f"v_add_u32 {vr(dst)}, {vr(tmp0)}, {vr(tmp1)}")

def compute_tag():
    a("s_waitcnt lgkmcnt(0)")
    a(f"s_add_u32 {sr(sTAG)}, {sr(sTAG)}, 0x7f4a7c15")
    a(f"s_addc_u32 {sr(sTAG+1)}, {sr(sTAG+1)}, 0x9e3779b9")

def set_flag(soff_sgpr, vtmp):
    a(f"v_mov_b32 {vr(vtmp)}, {sr(sTAG)}")
    a(f"v_mov_b32 {vr(vtmp+1)}, {sr(sTAG+1)}")
    a(f"v_mov_b32 {vr(vtmp+2)}, 0")
    a(f"s_mov_b64 {sr(sEXEC,2)}, exec")
    a("s_mov_b64 exec, 1")
    a.vmem(f"buffer_store_dwordx2 {vr(vtmp,2)}, {vr(vtmp+2)}, {sr(SWS,4)}, {sr(soff_sgpr)} offen sc1", "flag")
    a(f"s_mov_b64 exec, {sr(sEXEC,2)}")

def poll_flags(soff_sgpr, vtmp):
    L = a.newlabel("L_poll"); Ld = a.newlabel("L_polld")
    a(f"v_lshlrev_b32 {vr(vtmp+2)}, 5, {vr(vI16)}")
    a(f"s_mov_b32 {sr(sCNT)}, 0")
    a.label(L)
    a(f"buffer_load_dwordx2 {vr(vtmp,2)}, {vr(vtmp+2)}, {sr(SWS,4)}, {sr(soff_sgpr)} offen sc1")
    a(f"s_add_u32 {sr(sCNT)}, {sr(sCNT)}, 1")
    a("s_waitcnt vmcnt(0)")
    a(f"v_cmp_ne_u64 vcc, {sr(sTAG,2)}, {vr(vtmp,2)}")
    a(f"s_cmp_gt_u32 {sr(sCNT)}, 0x400000")
    a(f"s_cbranch_scc1 {Ld}")
    a(f"s_cbranch_vccz {Ld}")
    a("s_sleep 1")
    a(f"s_branch {L}")
    a.label(Ld)
    a.vm = []

def phase1_A():
    vHR0, vHR1 = 15, 16
    vWR = {(0,0):17, (1,0):18, (0,1):19, (1,1):20}
    vWH = [21, 22]
    SETS = [24, 64]
    ACC = 104
    def accq(t, tl): return ACC + (t*2+tl)*4
    def acck(t, tl): return ACC + 16 + (t*2+tl)*4
    def accv(t, tl): return ACC + 32 + (t*2+tl)*4
    acch = ACC + 48
    a.label("L_typeA")
    setup_x_addrs()
    a(f"s_cmp_eq_u32 {sr(sWAVE)}, 7")
    a("s_cbranch_scc1 L_A_nohalo")
    a(f"s_lshl_b32 {sr(sT0)}, {sr(sRB)}, 7")
    a(f"s_sub_u32 {sr(sT0)}, {sr(sT0)}, 16")
    a(f"s_mul_i32 {sr(sT0)}, {sr(sT0)}, 896")
    a(f"s_lshl_b32 {sr(sT1)}, {sr(sWAVE)}, 7")
    a(f"s_add_u32 {sr(sT0)}, {sr(sT0)}, {sr(sT1)}")
    a(f"v_add_u32 {vr(vHR0)}, {sr(sT0)}, {vr(vT3)}")
    a(f"v_add_u32 {vr(vHR1)}, {sr(sT0)}, {vr(vT4)}")
    a(f"v_add_u32 {vr(vHR1)}, {8*896-1024}, {vr(vHR1)}")
    a(f"s_add_u32 m0, {sr(sW2K)}, {A_HALO}")
    a("s_nop 0")
    a.vmem_uncounted(f"buffer_load_dwordx4 {vr(vHR0)}, {sr(SX,4)}, 0 offen lds")
    a.vmem_uncounted(f"buffer_load_dwordx4 {vr(vHR1)}, {sr(SX,4)}, 0 offen offset:1024 lds")
    a.label("L_A_nohalo")
    setup_w_dma_addr()
    def issue_chunk(c):
        sl = c % 3
        a(f"s_mov_b32 {sr(sSOX)}, {c*128}")
        a(f"s_mov_b32 {sr(sSOW)}, {c*172032}")
        f = dma(vXG0, SX, sSOX, (sW2K, A_X[sl]), f"c{c}")
        a("s_nop 0"); f()
        a.vmem(f"buffer_load_dwordx4 {vr(vXG1)}, {sr(SX,4)}, {sr(sSOX)} offen offset:1024 lds", f"c{c}")
        for sg in range(3):
            f = dma(vWG, SW, sSOW, (sW3K, A_W[sl] + sg*1024 - sg*896), f"c{c}", offset=sg*896)
            a("s_nop 0"); f()
    for c in range(3):
        issue_chunk(c)
    a(f"v_add_u32 {vr(vHR0)}, {A_HALO}, {vr(vT5)}")
    a(f"v_xor_b32 {vr(vHR1)}, 64, {vr(vHR0)}")
    for t in range(2):
        w_read_lane(vWR[(t,0)], t, 3, vT0, vT1)
        a(f"v_add_u32 {vr(vWR[(t,1)])}, {A_W[2]}, {vr(vWR[(t,0)])}")
        a(f"v_add_u32 {vr(vWR[(t,0)])}, {A_W[0]}, {vr(vWR[(t,0)])}")
    w_read_lane(vWH[0], None, 3, vT0, vT1)
    a(f"s_lshr_b32 {sr(sT0)}, {sr(sMI)}, 1")
    a(f"s_lshl_b32 {sr(sT0)}, {sr(sT0)}, 10")
    a(f"s_add_u32 {sr(sT0)}, {sr(sT0)}, 1024")
    a(f"v_add_u32 {vr(vWH[0])}, {sr(sT0)}, {vr(vWH[0])}")
    a(f"v_add_u32 {vr(vWH[1])}, {A_W[2]}, {vr(vWH[0])}")
    a(f"v_add_u32 {vr(vWH[0])}, {A_W[0]}, {vr(vWH[0])}")
    compute_tag()
    stamp("A setup done")

    def reads(c, ks, S):
        sl = c % 3
        out = []
        xr = vXR0 if ks == 0 else vXR1
        hr = vHR0 if ks == 0 else vHR1
        reg = 1 if sl == 2 else 0
        wb = (A_W[sl] - A_W[2*reg]) + ks*4*3072
        def wfrag(dst, base, seg):
            for h in range(2):
                out.append(f"ds_read_b64_tr_b16 {vr(dst+2*h,2)}, {vr(base)} offset:{wb + seg*1024 + h*512}")
        out.append(f"ds_read_b128 {vr(S,4)}, {vr(xr)} offset:{A_X[sl]}")
        wfrag(S+12, vWR[(0,reg)], 0)
        out.append(f"ds_read_b128 {vr(S+4,4)}, {vr(xr)} offset:{A_X[sl]+2048}")
        wfrag(S+16, vWR[(1,reg)], 0)
        for seg in (1, 2):
            for t in range(2):
                wfrag(S+12+(seg*2+t)*4, vWR[(t,reg)], seg)
        out.append(f"ds_read_b128 {vr(S+8,4)}, {vr(hr)} offset:{c*2048}")
        wfrag(S+36, vWH[reg], 0)
        return out
    def mfmas(S, first):
        out = []
        for t in range(2):
            for tl in range(2):
                out.append(("m", accq(t,tl), S+12+t*4, S+tl*4))
        for t in range(2):
            for tl in range(2):
                out.append(("m", acck(t,tl), S+20+t*4, S+tl*4))
        for t in range(2):
            for tl in range(2):
                out.append(("m", accv(t,tl), S+tl*4, S+28+t*4))
        out.append(("h",))
        return out
    def emit_step(S, first, rd):
        ms = mfmas(S, first)
        rd = list(rd)
        for i, m in enumerate(ms):
            if m[0] == "m":
                mfma(m[1], m[2], m[3], None if first else m[1])
            else:
                L1 = a.newlabel("L_h"); L2 = a.newlabel("L_h")
                a(f"s_cmp_ge_u32 {sr(sMI)}, 2")
                a(f"s_cbranch_scc1 {L1}")
                mfma(acch, S+36, S+8, None if first else acch)
                a(f"s_branch {L2}")
                a.label(L1)
                mfma(acch, S+8, S+36, None if first else acch)
                a.label(L2)
            for _ in range(2):
                if rd: a(rd.pop(0))
        for r in rd: a(r)
    for c in range(7):
        a.c(f"---- A chunk {c}")
        a.wait_vm(f"c{c}", " lgkmcnt(0)")
        a("s_barrier")
        if c >= 1 and c + 2 < 7:
            issue_chunk(c + 2)
        r0 = reads(c, 0, SETS[0])
        if c == 0:
            for r in r0: a(r)
        else:
            emit_step(SETS[1], False, r0)
        a("s_waitcnt lgkmcnt(0)")
        emit_step(SETS[0], c == 0, reads(c, 1, SETS[1]))
    a("s_waitcnt lgkmcnt(0)")
    emit_step(SETS[1], False, [])
    stamp("A gemm done")
    QB = [24, 28]
    KB = [32, 36]
    KP = 40
    VE = [44, 50]
    HP_ = 56
    ONES = 58
    BIAS = 62
    SH = 68
    vEX = 69
    vOA = 70
    T = 72
    for i in range(4): a(f"v_mov_b32 {vr(ONES+i)}, 0x3f803f80")
    a(f"v_and_b32 {vr(T)}, 1, {vr(vI16)}")
    a(f"v_lshlrev_b32 {vr(SH)}, 4, {vr(T)}")
    a(f"v_lshl_add_u32 {vr(T+1)}, {vr(vG)}, 2, {vr(T)}")
    a(f"v_mov_b32 {vr(T+2)}, 0xf149f2ca")
    a(f"v_cmp_le_u32 vcc, {vr(T+1)}, {vr(vI16)}")
    a(f"v_add_u32 {vr(T+3)}, 2, {vr(T+1)}")
    a("s_nop 0")
    a(f"v_cndmask_b32 {vr(BIAS+2)}, {vr(T+2)}, 0, vcc")
    a(f"v_cmp_le_u32 vcc, {vr(T+3)}, {vr(vI16)}")
    a(f"v_add_u32 {vr(T+4)}, 2, {vr(vI16)}")
    a("s_nop 0")
    a(f"v_cndmask_b32 {vr(BIAS+3)}, {vr(T+2)}, 0, vcc")
    a(f"v_cmp_ge_u32 vcc, {vr(T+1)}, {vr(T+4)}")
    a("s_nop 1")
    a(f"v_cndmask_b32 {vr(BIAS+0)}, {vr(T+2)}, 0, vcc")
    a(f"v_cmp_ge_u32 vcc, {vr(T+3)}, {vr(T+4)}")
    a("s_nop 1")
    a(f"v_cndmask_b32 {vr(BIAS+1)}, {vr(T+2)}, 0, vcc")
    a(f"s_or_b32 {sr(sT0)}, {sr(sRB)}, {sr(sMI)}")
    a(f"s_cmp_eq_u32 {sr(sT0)}, 0")
    a(f"s_cselect_b32 {sr(sT0)}, 0xf149f2ca, 0")
    a(f"v_min_f32 {vr(BIAS+4)}, {sr(sT0)}, {vr(BIAS+0)}")
    a(f"v_min_f32 {vr(BIAS+5)}, {sr(sT0)}, {vr(BIAS+1)}")
    a(f"s_mul_i32 {sr(sT0)}, {sr(sNI)}, {5*2048}")
    a(f"s_lshl_b32 {sr(sT1)}, {sr(sMI)}, 11")
    a(f"s_add_u32 {sr(sT1)}, {sr(sT1)}, {sr(sT0)}")
    a(f"s_add_u32 {sr(sT1)}, {sr(sT1)}, {A_EXCH}")
    a(f"v_lshlrev_b32 {vr(T)}, 4, {vr(vLANE)}")
    a(f"v_add_u32 {vr(vEX)}, {sr(sT1)}, {vr(T)}")
    a(f"s_lshr_b32 {sr(sT1)}, {sr(sMI)}, 1")
    a(f"s_lshl_b32 {sr(sT1)}, {sr(sT1)}, 10")
    a(f"s_add_u32 {sr(sT0)}, {sr(sT0)}, {sr(sT1)}")
    a(f"s_and_b32 {sr(sT1)}, {sr(sMI)}, 1")
    a(f"s_lshl_b32 {sr(sT1)}, {sr(sT1)}, 3")
    a(f"s_add_u32 {sr(sT0)}, {sr(sT0)}, {sr(sT1)}")
    a(f"s_add_u32 {sr(sT0)}, {sr(sT0)}, {A_EXCH}")
    a(f"v_add_u32 {vr(T+5)}, {sr(sT0)}, {vr(T)}")
    o_store_offset(vOA, 0, T)
    a(f"s_mov_b32 {sr(sK0)}, {f2u(28**-0.5 * LOG2E)}")
    cvtpk(KB[1]+0, acck(0,1)+0, acck(0,1)+1); cvtpk(KB[1]+1, acck(0,1)+2, acck(0,1)+3)
    cvtpk(KB[1]+2, acck(1,1)+0, acck(1,1)+1); cvtpk(KB[1]+3, acck(1,1)+2, acck(1,1)+3)
    for et in range(2):
        cvtpk(VE[et]+4, accv(et,1)+0, accv(et,1)+1); cvtpk(VE[et]+5, accv(et,1)+2, accv(et,1)+3)
    cvtpk(HP_, acch, acch+1); cvtpk(HP_+1, acch+2, acch+3)
    a(f"ds_write_b128 {vr(vEX)}, {vr(KB[1],4)} offset:2048")
    a(f"ds_write_b64 {vr(vEX)}, {vr(VE[0]+4,2)} offset:{2048+1024}")
    a(f"ds_write_b64 {vr(vEX)}, {vr(VE[1]+4,2)} offset:{2048+1024+8}")
    a(f"ds_write_b64 {vr(T+5)}, {vr(HP_,2)}")
    cvtpk(KB[0]+0, acck(0,0)+0, acck(0,0)+1); cvtpk(KB[0]+1, acck(0,0)+2, acck(0,0)+3)
    cvtpk(KB[0]+2, acck(1,0)+0, acck(1,0)+1); cvtpk(KB[0]+3, acck(1,0)+2, acck(1,0)+3)
    for et in range(2):
        cvtpk(VE[et]+2, accv(et,0)+0, accv(et,0)+1); cvtpk(VE[et]+3, accv(et,0)+2, accv(et,0)+3)
    for tl in (1, 0):
        cvtpk(QB[tl]+0, accq(0,tl)+0, accq(0,tl)+1); cvtpk(QB[tl]+1, accq(0,tl)+2, accq(0,tl)+3)
        cvtpk(QB[tl]+2, accq(1,tl)+0, accq(1,tl)+1); cvtpk(QB[tl]+3, accq(1,tl)+2, accq(1,tl)+3)
        a(f"v_cndmask_b32 {vr(QB[tl]+2)}, 0, {vr(QB[tl]+2)}, {sr(sMASK48,2)}")
        a(f"v_cndmask_b32 {vr(QB[tl]+3)}, 0, {vr(QB[tl]+3)}, {sr(sMASK48,2)}")
    def attn(tl):
        kp = KB[0] if tl == 1 else KP
        bp = BIAS if tl == 1 else BIAS + 4
        S0, S1 = T, T+4
        X = T+8
        M = T+12; M2 = T+13
        P = T+16
        O0, O1, L = T+20, T+24, T+28
        a("s_nop 1")
        mfma(S0, kp, QB[tl]); mfma(S1, KB[tl], QB[tl])
        a("s_nop 6")
        a(f"v_cndmask_b32 {vr(X+0)}, {vr(S0+0)}, {vr(S0+1)}, {sr(sODD,2)}")
        a(f"v_cndmask_b32 {vr(X+1)}, {vr(S0+2)}, {vr(S0+3)}, {sr(sODD,2)}")
        a(f"v_cndmask_b32 {vr(X+2)}, {vr(S1+0)}, {vr(S1+1)}, {sr(sODD,2)}")
        a(f"v_cndmask_b32 {vr(X+3)}, {vr(S1+2)}, {vr(S1+3)}, {sr(sODD,2)}")
        a(f"v_fma_f32 {vr(X+0)}, {vr(X+0)}, {sr(sK0)}, {vr(bp+0)}")
        a(f"v_fma_f32 {vr(X+1)}, {vr(X+1)}, {sr(sK0)}, {vr(bp+1)}")
        a(f"v_fma_f32 {vr(X+2)}, {vr(X+2)}, {sr(sK0)}, {vr(BIAS+2)}")
        a(f"v_fma_f32 {vr(X+3)}, {vr(X+3)}, {sr(sK0)}, {vr(BIAS+3)}")
        a(f"v_max3_f32 {vr(M)}, {vr(X+0)}, {vr(X+1)}, {vr(X+2)}")
        a(f"v_max_f32 {vr(M)}, {vr(M)}, {vr(X+3)}")
        a(f"v_mov_b32 {vr(M2)}, {vr(M)}")
        a("s_nop 1")
        a(f"v_permlane32_swap_b32 {vr(M)}, {vr(M2)}")
        a("s_nop 1")
        a(f"v_max_f32 {vr(M)}, {vr(M)}, {vr(M2)}")
        a(f"v_mov_b32 {vr(M2)}, {vr(M)}")
        a("s_nop 1")
        a(f"v_permlane16_swap_b32 {vr(M)}, {vr(M2)}")
        a("s_nop 1")
        a(f"v_max_f32 {vr(M)}, {vr(M)}, {vr(M2)}")
        for i in range(4): a(f"v_sub_f32 {vr(X+i)}, {vr(X+i)}, {vr(M)}")
        for i in range(4): a(f"v_exp_f32 {vr(X+i)}, {vr(X+i)}")
        a("s_nop 0")
        for i in range(4): a(f"v_cvt_pk_bf16_f32 {vr(P+i)}, {vr(X+i)}, 0")
        for i in range(4): a(f"v_lshlrev_b32 {vr(P+i)}, {vr(SH)}, {vr(P+i)}")
        a("s_nop 1")
        off = 2 if tl == 1 else 0
        mfma(L, ONES, P); mfma(O0, VE[0]+off, P); mfma(O1, VE[1]+off, P)
        a("s_nop 5")
        a(f"v_rcp_f32 {vr(M)}, {vr(L)}")
        a("s_nop 1")
        for i in range(4): a(f"v_mul_f32 {vr(O0+i)}, {vr(O0+i)}, {vr(M)}")
        for i in range(4): a(f"v_mul_f32 {vr(O1+i)}, {vr(O1+i)}, {vr(M)}")
        R = 104 + tl*4
        cvtpk(R+0, O0, O0+1); cvtpk(R+1, O0+2, O0+3); cvtpk(R+2, O1, O1+1); cvtpk(R+3, O1+2, O1+3)
        a(f"v_cndmask_b32 {vr(R+2)}, 0, {vr(R+2)}, {sr(sMASK48,2)}")
        a(f"v_cndmask_b32 {vr(R+3)}, 0, {vr(R+3)}, {sr(sMASK48,2)}")
        a(f"s_mov_b32 {sr(sT0)}, {tl*16384}")
        a.vmem(f"buffer_store_dwordx4 {vr(R,4)}, {vr(vOA)}, {sr(SWS,4)}, {sr(sT0)} offen sc1", "ost")
    attn(1)
    a("s_waitcnt lgkmcnt(0)")
    a("s_barrier")
    a(f"ds_read_b128 {vr(KP,4)}, {vr(vEX)}")
    a(f"ds_read_b64 {vr(VE[0],2)}, {vr(vEX)} offset:1024")
    a(f"ds_read_b64 {vr(VE[1],2)}, {vr(vEX)} offset:1032")
    a("s_waitcnt lgkmcnt(0)")
    attn(0)
    stamp("A epilogue done")
    issue_wo(T)
    flag2_offset(0)
    set_flag(sT0, T)
    stamp("A flag set")
    a("s_branch L_phase2")

def o_store_offset(dst, br, tmp):
    a(f"s_lshl_b32 {sr(sT0)}, {sr(sRB)}, 1")
    a(f"s_add_u32 {sr(sT0)}, {sr(sT0)}, {br}")
    a(f"s_lshl_b32 {sr(sT0)}, {sr(sT0)}, 2")
    a(f"s_add_u32 {sr(sT0)}, {sr(sT0)}, {sr(sMI)}")
    a(f"s_lshl_b32 {sr(sT0)}, {sr(sT0)}, 5")
    a(f"s_lshl_b32 {sr(sT1)}, {sr(sHP)}, 1")
    a(f"s_add_u32 {sr(sT0)}, {sr(sT0)}, {sr(sT1)}")
    a(f"s_add_u32 {sr(sT0)}, {sr(sT0)}, {sr(sNI)}")
    a(f"s_lshl_b32 {sr(sT0)}, {sr(sT0)}, 10")
    a(f"s_add_u32 {sr(sT0)}, {sr(sT0)}, {WS_O}")
    a(f"v_lshlrev_b32 {vr(dst)}, 4, {vr(vLANE)}")
    a(f"v_add_u32 {vr(dst)}, {sr(sT0)}, {vr(dst)}")

def flag2_offset(br):
    a(f"s_lshl_b32 {sr(sT0)}, {sr(sRB)}, 1")
    a(f"s_add_u32 {sr(sT0)}, {sr(sT0)}, {br}")
    a(f"s_lshl_b32 {sr(sT0)}, {sr(sT0)}, 2")
    a(f"s_add_u32 {sr(sT0)}, {sr(sT0)}, {sr(sMI)}")
    a(f"s_lshl_b32 {sr(sT0)}, {sr(sT0)}, 4")
    a(f"s_lshl_b32 {sr(sT1)}, {sr(sHP)}, 1")
    a(f"s_add_u32 {sr(sT0)}, {sr(sT0)}, {sr(sT1)}")
    a(f"s_add_u32 {sr(sT0)}, {sr(sT0)}, {sr(sNI)}")
    a(f"s_lshl_b32 {sr(sT0)}, {sr(sT0)}, 5")
    a(f"s_add_u32 {sr(sT0)}, {sr(sT0)}, {WS_F2}")

def issue_wo(tmp):
    L = a.newlabel("L_nowo"); L2 = a.newlabel("L_wod")
    a(f"s_cmp_eq_u32 {sr(sCB)}, 7")
    a(f"s_cbranch_scc1 {L}")
    a(f"v_lshrrev_b32 {vr(tmp)}, 3, {vr(vLANE)}")
    a(f"v_and_b32 {vr(tmp+1)}, 7, {vr(vLANE)}")
    a(f"v_lshlrev_b32 {vr(tmp+2)}, 1, {vr(vG)}")
    a(f"v_xor_b32 {vr(tmp+1)}, {vr(tmp+1)}, {vr(tmp+2)}")
    a(f"v_mul_u32_u24 {vr(tmp)}, 896, {vr(tmp)}")
    a(f"v_lshl_add_u32 {vr(tmp)}, {vr(tmp+1)}, 4, {vr(tmp)}")
    a(f"s_mul_i32 {sr(sT2)}, {sr(sWAVE)}, {8*896}")
    a(f"s_lshl_b32 {sr(sT3)}, {sr(sCB)}, 7")
    a(f"s_add_u32 {sr(sT2)}, {sr(sT2)}, {sr(sT3)}")
    a(f"v_add_u32 {vr(tmp)}, {sr(sT2)}, {vr(tmp)}")
    for n in range(7):
        for b in range(2):
            a(f"s_add_u32 m0, {sr(sW1K)}, {P2_WO + b*57344 + n*8192}")
            a(f"s_mov_b32 {sr(sT2)}, {n*57344}")
            a.vmem_uncounted(f"buffer_load_dwordx4 {vr(tmp)}, {sr(SWOA if b==0 else SWOB,4)}, {sr(sT2)} offen lds")
    a("s_waitcnt vmcnt(14)")
    a(f"s_branch {L2}")
    a.label(L)
    a("s_waitcnt vmcnt(0)")
    a.label(L2)
    a.vm = []

def phi(regs, tmp):
    n = len(regs)
    for i, r in enumerate(regs):
        a(f"v_mul_f32 {vr(tmp+i)}, {sr(sK1)}, {vr(r)}")
    for i, r in enumerate(regs):
        a(f"v_min_f32 {vr(tmp+i)}, 0, {vr(tmp+i)}")
    for i, r in enumerate(regs):
        a(f"v_exp_f32 {vr(tmp+i)}, {vr(tmp+i)}")
    for i, r in enumerate(regs):
        a(f"v_max_f32 {vr(r)}, 0, {vr(r)}")
    for i, r in enumerate(regs):
        a(f"v_add_f32 {vr(tmp+i)}, {sr(sK2)}, {vr(tmp+i)}")
    for i, r in enumerate(regs):
        a(f"v_add_f32 {vr(r)}, {vr(r)}, {vr(tmp+i)}")

def phase1_B():
    vWR = [15, 16]
    vQR = {(0,0):17, (1,0):18, (0,1):19, (1,1):20, (0,2):21, (1,2):22}
    XF = 24
    SETS = [136, 152]
    ACC = 168
    GF = 200
    def xf(k, tl): return XF + (k*2+tl)*4
    def acck(t, tl): return ACC + (t*2+tl)*4
    def accv(t, tl): return ACC + 16 + (t*2+tl)*4
    a.label("L_typeB")
    setup_x_addrs()
    setup_w_dma_addr()
    def issue_chunk(c):
        sl = c % 4
        a(f"s_mov_b32 {sr(sSOX)}, {c*128}")
        a(f"s_mov_b32 {sr(sSOW)}, {c*172032}")
        f = dma(vXG0, SX, sSOX, (sW2K, B_X[sl]), f"c{c}")
        a("s_nop 0"); f()
        a.vmem(f"buffer_load_dwordx4 {vr(vXG1)}, {sr(SX,4)}, {sr(sSOX)} offen offset:1024 lds", f"c{c}")
        for i, sg in enumerate((1, 2)):
            f = dma(vWG, SW, sSOW, (sW2K, B_W[sl] + i*1024 - sg*896), f"c{c}", offset=sg*896)
            a("s_nop 0"); f()
    def issue_wq(c):
        a(f"s_mov_b32 {sr(sSOW)}, {c*172032}")
        f = dma(vWG, SW, sSOW, (sW1K, B_WQ[c]), "wq")
        a("s_nop 0"); f()
    for c in range(4):
        issue_chunk(c)
    for t in range(2):
        w_read_lane(vWR[t], t, 2, vT0, vT1)
        a(f"v_add_u32 {vr(vWR[t])}, {B_W[0]}, {vr(vWR[t])}")
        w_read_lane(vQR[(t,0)], t, 1, vT0, vT1)
        a(f"v_add_u32 {vr(vQR[(t,1)])}, {B_WQ[4]}, {vr(vQR[(t,0)])}")
        a(f"v_add_u32 {vr(vQR[(t,2)])}, {B_WQ[6]}, {vr(vQR[(t,0)])}")
        a(f"v_add_u32 {vr(vQR[(t,0)])}, {B_WQ[0]}, {vr(vQR[(t,0)])}")
    a(f"s_mov_b32 {sr(sK1)}, {f2u(LOG2E)}")
    a(f"s_mov_b32 {sr(sK2)}, {f2u(1e-6)}")
    compute_tag()
    stamp("B setup done")
    def reads(c, ks, S):
        sl = c % 4
        k = c*2 + ks
        xr = vXR0 if ks == 0 else vXR1
        wb = (B_W[sl] - B_W[0]) + ks*4*2048
        out = []
        def wfrag(dst, t, seg):
            for h in range(2):
                out.append(f"ds_read_b64_tr_b16 {vr(dst+2*h,2)}, {vr(vWR[t])} offset:{wb + seg*1024 + h*512}")
        out.append(f"ds_read_b128 {vr(xf(k,0),4)}, {vr(xr)} offset:{B_X[sl]}")
        wfrag(S, 0, 0)
        out.append(f"ds_read_b128 {vr(xf(k,1),4)}, {vr(xr)} offset:{B_X[sl]+2048}")
        wfrag(S+4, 1, 0); wfrag(S+8, 0, 1); wfrag(S+12, 1, 1)
        return out
    def emit_step(k, S, rd):
        rd = list(rd); first = (k == 0)
        for seg in range(2):
            for t in range(2):
                for tl in range(2):
                    d = (acck if seg == 0 else accv)(t, tl)
                    mfma(d, xf(k,tl), S+(seg*2+t)*4, None if first else d)
                    for _ in range(2):
                        if rd: a(rd.pop(0))
        for r in rd: a(r)
    for c in range(7):
        a.c(f"---- B chunk {c}")
        a.wait_vm(f"c{c}", " lgkmcnt(0)")
        a("s_barrier")
        if c >= 1 and c + 3 < 7:
            issue_chunk(c + 3)
        if c == 3:
            for q in range(4): issue_wq(q)
        if c == 4:
            for q in range(4, 7): issue_wq(q)
        r0 = reads(c, 0, SETS[0])
        if c == 0:
            for r in r0: a(r)
        else:
            emit_step(c*2-1, SETS[1], r0)
        a("s_waitcnt lgkmcnt(0)")
        emit_step(c*2, SETS[0], reads(c, 1, SETS[1]))
    a("s_waitcnt lgkmcnt(0)")
    emit_step(13, SETS[1], [])
    stamp("B pass1 done")
    T = 136
    a(f"s_lshl_b32 {sr(sT0)}, {sr(sHP)}, 1")
    a(f"s_cmp_lg_u32 {sr(sT0)}, {sr(sWAVE)}")
    a("s_cbranch_scc1 L_B_nogl")
    a(f"v_lshlrev_b32 {vr(vT0)}, 4, {vr(vG)}")
    for k in range(14):
        a.vmem_uncounted(f"buffer_load_dwordx4 {vr(GF+k*4,4)}, {vr(vT0)}, {sr(SG,4)}, 0 offen offset:{k*64}")
    a.label("L_B_nogl")
    vS = vT1
    a(f"v_lshlrev_b32 {vr(vT2)}, 4, {vr(vLANE)}")
    a(f"s_lshl_b32 {sr(sT0)}, {sr(sNI)}, 14")
    a(f"s_lshl_b32 {sr(sT1)}, {sr(sMI)}, 12")
    a(f"s_add_u32 {sr(sT1)}, {sr(sT1)}, {sr(sT0)}")
    a(f"v_add_u32 {vr(vS)}, {sr(sT1)}, {vr(vT2)}")
    a(f"s_lshl_b32 {sr(sT1)}, {sr(sMI)}, 10")
    a(f"s_add_u32 {sr(sT1)}, {sr(sT1)}, {sr(sT0)}")
    a(f"v_add_u32 {vr(vT3)}, {sr(sT1)}, {vr(vT2)}")
    a(f"s_lshl_b32 {sr(sT0)}, {sr(sHP)}, 3")
    a(f"s_add_u32 {sr(sT0)}, {sr(sT0)}, {sr(sWAVE)}")
    a(f"s_lshl_b32 {sr(sT1)}, {sr(sT0)}, 14")
    a(f"s_add_u32 {sr(sT1)}, {sr(sT1)}, {WS_KV}")
    a(f"v_add_u32 {vr(vT4)}, {sr(sT1)}, {vr(vT2)}")
    a("s_nop 2")
    phi([ACC+i for i in range(16)], T)
    PK = T+16; PV = T+24
    for t in range(2):
        for tl in range(2):
            cvtpk(PK+t*4+tl*2, acck(t,tl), acck(t,tl)+1); cvtpk(PK+t*4+tl*2+1, acck(t,tl)+2, acck(t,tl)+3)
    for t in range(2):
        for tl in range(2):
            cvtpk(PV+t*4+tl*2, accv(t,tl), accv(t,tl)+1); cvtpk(PV+t*4+tl*2+1, accv(t,tl)+2, accv(t,tl)+3)
    a(f"v_mov_b32 {vr(T)}, 0x3f803f80")
    for i in range(4):
        a(f"v_cndmask_b32 {vr(PV+4+i)}, {vr(PV+4+i)}, {vr(T)}, {sr(sONE,2)}")
    a("s_nop 1")
    KV = ACC
    for dt in range(2):
        for et in range(2):
            mfma(KV+(dt*2+et)*4, PK+dt*4, PV+et*4)
    a("s_nop 4")
    for q in range(4):
        a(f"ds_write_b128 {vr(vS)}, {vr(KV+q*4,4)} offset:{B_KVS + q*1024}")
    a.wait_vm("wq", " lgkmcnt(0)")
    a("s_barrier")
    for m in range(4):
        a(f"ds_read_b128 {vr(T+m*4,4)}, {vr(vT3)} offset:{B_KVS + m*4096}")
    QS = [ACC+16, ACC+24]
    AQ = ACC
    AG = T+16
    def qreads(k, S):
        c, ks = divmod(k, 2)
        reg = 0 if c < 4 else (1 if c < 6 else 2)
        base = B_WQ[c] - B_WQ[(0,4,6)[reg]] + ks*4096
        return [f"ds_read_b64_tr_b16 {vr(S+t*4+2*h,2)}, {vr(vQR[(t,reg)])} offset:{base + h*512}" for t in range(2) for h in range(2)]
    a("s_waitcnt lgkmcnt(0)")
    for r in qreads(0, QS[0]): a(r)
    for i in range(4):
        a(f"v_add_f32 {vr(T+i)}, {vr(T+i)}, {vr(T+4+i)}")
        a(f"v_add_f32 {vr(T+8+i)}, {vr(T+8+i)}, {vr(T+12+i)}")
    for i in range(4):
        a(f"v_add_f32 {vr(T+i)}, {vr(T+i)}, {vr(T+8+i)}")
    a(f"s_lshl_b32 {sr(sT1)}, {sr(sRB)}, 10")
    a.vmem(f"buffer_store_dwordx4 {vr(T,4)}, {vr(vT4)}, {sr(SWS,4)}, {sr(sT1)} offen sc1", "kvst")
    stamp("B partial stored")
    def f1_offset(with_rb):
        a(f"s_lshl_b32 {sr(sT0)}, {sr(sHP)}, 3")
        a(f"s_add_u32 {sr(sT0)}, {sr(sT0)}, {sr(sWAVE)}")
        a(f"s_lshl_b32 {sr(sT0)}, {sr(sT0)}, 4")
        if with_rb: a(f"s_add_u32 {sr(sT0)}, {sr(sT0)}, {sr(sRB)}")
        a(f"s_lshl_b32 {sr(sT0)}, {sr(sT0)}, 5")
        a(f"s_add_u32 {sr(sT0)}, {sr(sT0)}, {WS_F1}")
    for k in range(14):
        S = QS[k & 1]
        rd = qreads(k+1, QS[(k+1)&1]) if k < 13 else []
        a("s_waitcnt lgkmcnt(0)")
        for t in range(2):
            for tl in range(2):
                d = AQ + (t*2+tl)*4
                mfma(d, S+t*4, xf(k,tl), None if k == 0 else d)
                if rd: a(rd.pop(0))
        if k == 6:
            a.wait_vm("kvst")
            f1_offset(True)
            set_flag(sT0, T+4)
            stamp("B flag1 set")
    a(f"s_lshl_b32 {sr(sT0)}, {sr(sHP)}, 1")
    a(f"s_cmp_lg_u32 {sr(sT0)}, {sr(sWAVE)}")
    a("s_cbranch_scc1 L_B_nogate")
    for k in range(14):
        for tl in range(2):
            mfma(AG+tl*4, GF+k*4, xf(k,tl), None if k == 0 else AG+tl*4)
    a(f"s_lshl_b32 {sr(sT0)}, {sr(sRB)}, 7")
    a(f"s_lshl_b32 {sr(sT1)}, {sr(sMI)}, 5")
    a(f"s_add_u32 {sr(sT0)}, {sr(sT0)}, {sr(sT1)}")
    a(f"s_lshl_b32 {sr(sT0)}, {sr(sT0)}, 2")
    a(f"s_add_u32 {sr(sT0)}, {sr(sT0)}, {WS_GATE}")
    a(f"v_lshlrev_b32 {vr(T+4)}, 2, {vr(vI16)}")
    a("s_nop 2")
    for tl in range(2):
        a(f"v_mul_f32 {vr(AG+tl*4)}, {sr(sK1)}, {vr(AG+tl*4)}")
    for tl in range(2):
        a(f"v_exp_f32 {vr(AG+tl*4)}, -{vr(AG+tl*4)}")
    a("s_nop 0")
    for tl in range(2):
        a(f"v_add_f32 {vr(AG+tl*4)}, 1.0, {vr(AG+tl*4)}")
    for tl in range(2):
        a(f"v_rcp_f32 {vr(AG+tl*4)}, {vr(AG+tl*4)}")
    a(f"s_mov_b64 {sr(sEXEC,2)}, exec")
    a("s_mov_b64 exec, 0xffff")
    for tl in range(2):
        a.vmem_uncounted(f"buffer_store_dword {vr(AG+tl*4)}, {vr(T+4)}, {sr(SWS,4)}, {sr(sT0)} offen offset:{tl*64} sc1")
    a(f"s_mov_b64 exec, {sr(sEXEC,2)}")
    a.label("L_B_nogate")
    a("s_nop 7")
    phi([AQ+i for i in range(16)], T)
    PQ = [T+16, T+20]
    for tl in range(2):
        for t in range(2):
            d = AQ + (t*2+tl)*4
            cvtpk(PQ[tl]+t*2, d, d+1); cvtpk(PQ[tl]+t*2+1, d+2, d+3)
        a(f"v_cndmask_b32 {vr(PQ[tl]+2)}, 0, {vr(PQ[tl]+2)}, {sr(sMASK48,2)}")
        a(f"v_cndmask_b32 {vr(PQ[tl]+3)}, 0, {vr(PQ[tl]+3)}, {sr(sMASK48,2)}")
    stamp("B pass2 done")
    f1_offset(False)
    poll_flags(sT0, T)
    stamp("B flag1 seen")
    PL = XF
    for r in range(16):
        if r % 4 == 0: a(f"s_mov_b32 {sr(sT1)}, {r*1024}")
        a.vmem(f"buffer_load_dwordx4 {vr(PL+r*4,4)}, {vr(vT4)}, {sr(SWS,4)}, {sr(sT1)} offen offset:{(r%4)*1024} sc1", f"pl{r}")
    vOA = vT0
    o_store_offset(vOA, 1, None)
    a(f"s_lshl_b32 {sr(sT0)}, {sr(sNI)}, 11")
    a(f"s_add_u32 {sr(sT0)}, {sr(sT0)}, {B_KVF}")
    a(f"v_add_u32 {vr(vT3)}, {sr(sT0)}, {vr(vT2)}")
    a(f"s_and_b32 {sr(sT1)}, {sr(sMI)}, 1")
    a(f"s_lshl_b32 {sr(sT1)}, {sr(sT1)}, 10")
    a(f"s_lshr_b32 {sr(sT2)}, {sr(sMI)}, 1")
    a(f"s_lshl_b32 {sr(sT2)}, {sr(sT2)}, 3")
    a(f"s_add_u32 {sr(sT1)}, {sr(sT1)}, {sr(sT2)}")
    a(f"v_add_u32 {vr(vS)}, {sr(sT1)}, {vr(vT3)}")
    a(f"v_lshlrev_b32 {vr(vT5)}, 8, {vr(vG)}")
    a(f"v_add_u32 {vr(vT5)}, {sr(sT0)}, {vr(vT5)}")
    for lvl in (1, 2, 4, 8):
        for r in range(0, 16, 2*lvl):
            if lvl == 1: a.wait_vm(f"pl{r+1}")
            for i in range(4):
                a(f"v_add_f32 {vr(PL+r*4+i)}, {vr(PL+r*4+i)}, {vr(PL+(r+lvl)*4+i)}")
    cvtpk(T, PL, PL+1); cvtpk(T+1, PL+2, PL+3)
    a(f"ds_write_b64 {vr(vS)}, {vr(T,2)}")
    a("s_waitcnt lgkmcnt(0)")
    a("s_barrier")
    KF = [T, T+4]; ZF = T+8
    a(f"ds_read_b128 {vr(ZF,4)}, {vr(vT5)} offset:{1024 + 12*16}")
    a(f"ds_read_b128 {vr(KF[0],4)}, {vr(vT3)}")
    a(f"ds_read_b128 {vr(KF[1],4)}, {vr(vT3)} offset:1024")
    a("s_waitcnt lgkmcnt(0)")
    a("s_barrier")
    O = XF
    for tl in range(2):
        mfma(O+tl*12+8, ZF, PQ[tl]); mfma(O+tl*12, KF[0], PQ[tl]); mfma(O+tl*12+4, KF[1], PQ[tl])
    a("s_nop 4")
    for tl in range(2):
        a(f"v_add_f32 {vr(O+tl*12+8)}, {sr(sK2)}, {vr(O+tl*12+8)}")
    for tl in range(2):
        a(f"v_rcp_f32 {vr(O+tl*12+8)}, {vr(O+tl*12+8)}")
    a("s_nop 0")
    for tl in range(2):
        b = O+tl*12
        for i in range(8): a(f"v_mul_f32 {vr(b+i)}, {vr(b+i)}, {vr(b+8)}")
        R = O+24+tl*4
        for i in range(4): cvtpk(R+i, b+2*i, b+2*i+1)
        a(f"v_cndmask_b32 {vr(R+2)}, 0, {vr(R+2)}, {sr(sMASK48,2)}")
        a(f"v_cndmask_b32 {vr(R+3)}, 0, {vr(R+3)}, {sr(sMASK48,2)}")
        a(f"s_mov_b32 {sr(sT0)}, {tl*16384}")
        a.vmem(f"buffer_store_dwordx4 {vr(R,4)}, {vr(vOA)}, {sr(SWS,4)}, {sr(sT0)} offen sc1", "ost")
    stamp("B o stored")
    issue_wo(T)
    flag2_offset(1)
    set_flag(sT0, T)
    stamp("B flag2 set")

def phase2():
    a.label("L_phase2")
    a(f"s_cmp_eq_u32 {sr(sCB)}, 7")
    a("s_cbranch_scc1 L_idle")
    vWO = [10, 11, 12, 13]
    vOF, vGT, vCW, vCR, vOUT = 14, 15, 16, 17, 18
    ACC = 20
    OF = 36
    WF = 100
    T = 228
    sBR, sMT = sT2, sT3
    a(f"s_lshr_b32 {sr(sMI)}, {sr(sWAVE)}, 2")
    a(f"s_and_b32 {sr(sNI)}, {sr(sWAVE)}, 3")
    sBR, sMT = sMI, sNI
    a(f"v_mov_b32 {vr(T)}, 0")
    a(f"v_mov_b32 {vr(T+1)}, 0")
    a(f"v_lshlrev_b32 {vr(T+2)}, 3, {vr(vLANE)}")
    a(f"ds_write_b64 {vr(T+2)}, {vr(T,2)} offset:{P2_ZERO - 65536*1}") if False else None
    a(f"v_add_u32 {vr(T+2)}, {P2_ZERO}, {vr(T+2)}")
    a(f"ds_write_b64 {vr(T+2)}, {vr(T,2)}")
    a(f"v_lshrrev_b32 {vr(T)}, 2, {vr(vI16)}")
    a(f"v_lshl_add_u32 {vr(T+1)}, {vr(vG)}, 2, {vr(T)}")
    a(f"v_lshlrev_b32 {vr(T+1)}, 7, {vr(T+1)}")
    a(f"v_and_b32 {vr(T+3)}, 3, {vr(vI16)}")
    a(f"v_lshl_add_u32 {vr(T+1)}, {vr(T+3)}, 3, {vr(T+1)}")
    a(f"v_lshrrev_b32 {vr(T)}, 1, {vr(T)}")
    a(f"v_and_b32 {vr(T+3)}, 1, {vr(vG)}")
    a(f"v_lshl_or_b32 {vr(T)}, {vr(T+3)}, 1, {vr(T)}")
    a(f"v_lshl_add_u32 {vr(T+1)}, {vr(T)}, 5, {vr(T+1)}")
    a(f"s_mul_i32 {sr(sT0)}, {sr(sBR)}, 57344")
    a(f"v_add_u32 {vr(vWO[0])}, {sr(sT0)}, {vr(T+1)}")
    for t in range(1, 4):
        a(f"v_xor_b32 {vr(vWO[t])}, {t*32}, {vr(vWO[0])}")
    a(f"s_lshl_b32 {sr(sT0)}, {sr(sRB)}, 1")
    a(f"s_add_u32 {sr(sT0)}, {sr(sT0)}, {sr(sBR)}")
    a(f"s_lshl_b32 {sr(sT1)}, {sr(sT0)}, 3")
    a(f"s_lshl_b32 {sr(sT2)}, {sr(sHALF)}, 2")
    a(f"s_add_u32 {sr(sT2)}, {sr(sT2)}, {sr(sMT)}")
    a(f"s_add_u32 {sr(sT1)}, {sr(sT1)}, {sr(sT2)}")
    a(f"s_lshl_b32 {sr(sT1)}, {sr(sT1)}, 14")
    a(f"s_add_u32 {sr(sT1)}, {sr(sT1)}, {WS_O}")
    a(f"v_lshlrev_b32 {vr(vOF)}, 4, {vr(vLANE)}")
    a(f"v_add_u32 {vr(vOF)}, {sr(sT1)}, {vr(vOF)}")
    a(f"s_lshl_b32 {sr(sT0)}, {sr(sT0)}, 2")
    a(f"s_lshr_b32 {sr(sT1)}, {sr(sT2)}, 1")
    a(f"s_add_u32 {sr(sT0)}, {sr(sT0)}, {sr(sT1)}")
    a(f"s_lshl_b32 {sr(sT0)}, {sr(sT0)}, 9")
    a(f"s_add_u32 {sr(sK2)}, {sr(sT0)}, {WS_F2}")
    a(f"s_lshl_b32 {sr(sT0)}, {sr(sRB)}, 3")
    a(f"s_add_u32 {sr(sT0)}, {sr(sT0)}, {sr(sT2)}")
    a(f"s_lshl_b32 {sr(sT0)}, {sr(sT0)}, 6")
    a(f"s_add_u32 {sr(sK1)}, {sr(sT0)}, {WS_GATE}")
    a(f"v_lshlrev_b32 {vr(vGT)}, 2, {vr(vI16)}")
    a(f"s_mul_i32 {sr(sT0)}, {sr(sBR)}, {P2_CBSZ}")
    a(f"s_mul_i32 {sr(sT1)}, {sr(sMT)}, {16*272}")
    a(f"s_add_u32 {sr(sT0)}, {sr(sT0)}, {sr(sT1)}")
    a(f"s_add_u32 {sr(sT0)}, {sr(sT0)}, {P2_CB}")
    a(f"v_mul_u32_u24 {vr(vCW)}, 272, {vr(vI16)}")
    a(f"v_lshl_add_u32 {vr(vCW)}, {vr(vG)}, 4, {vr(vCW)}")
    a(f"v_add_u32 {vr(vCW)}, {sr(sT0)}, {vr(vCW)}")
    a(f"v_lshrrev_b32 {vr(T)}, 3, {vr(vLANE)}")
    a(f"s_lshl_b32 {sr(sT0)}, {sr(sWAVE)}, 3")
    a(f"v_add_u32 {vr(T)}, {sr(sT0)}, {vr(T)}")
    a(f"v_and_b32 {vr(T+1)}, 7, {vr(vLANE)}")
    a(f"v_mul_u32_u24 {vr(vCR)}, 272, {vr(T)}")
    a(f"v_lshl_add_u32 {vr(vCR)}, {vr(T+1)}, 5, {vr(vCR)}")
    a(f"v_add_u32 {vr(vCR)}, {P2_CB}, {vr(vCR)}")
    a(f"v_lshlrev_b32 {vr(T+4)}, 2, {vr(T)}")
    a(f"v_add_u32 {vr(T+4)}, {P2_G}, {vr(T+4)}")
    a(f"s_lshl_b32 {sr(sT0)}, {sr(sRB)}, 1")
    a(f"s_add_u32 {sr(sT0)}, {sr(sT0)}, {sr(sHALF)}")
    a(f"s_mul_i32 {sr(sT0)}, {sr(sT0)}, {64*896}")
    a(f"s_lshl_b32 {sr(sT1)}, {sr(sCB)}, 7")
    a(f"s_add_u32 {sr(sT0)}, {sr(sT0)}, {sr(sT1)}")
    a(f"v_mul_u32_u24 {vr(vOUT)}, 896, {vr(T)}")
    a(f"v_lshl_add_u32 {vr(vOUT)}, {vr(T+1)}, 4, {vr(vOUT)}")
    a(f"v_add_u32 {vr(vOUT)}, {sr(sT0)}, {vr(vOUT)}")
    a(f"s_lshl_b32 {sr(sT0)}, {sr(sMT)}, 6")
    a(f"s_add_u32 {sr(sT0)}, {sr(sT0)}, {P2_G}")
    a(f"v_add_u32 {vr(T+5)}, {sr(sT0)}, {vr(vGT)}")
    a.wait_vm_all(" lgkmcnt(0)")
    a("s_barrier")
    stamp("P2 wo landed")
    def wreads(h, slot):
        out = []
        for t in range(4):
            base = vWO[t ^ (2 if h & 1 else 0)]
            for hf in range(2):
                out.append(f"ds_read_b64_tr_b16 {vr(WF+slot*16+t*4+hf*2,2)}, {vr(base)} offset:{h*3584 + hf*2048}")
        return out
    for h in range(8):
        for r in wreads(h, h): a(r)
    poll_flags(sK2, T)
    stamp("P2 flags seen")
    for h in range(16):
        if h % 4 == 0: a(f"s_mov_b32 {sr(sT1)}, {h*1024}")
        a.vmem(f"buffer_load_dwordx4 {vr(OF+h*4,4)}, {vr(vOF)}, {sr(SWS,4)}, {sr(sT1)} offen offset:{(h%4)*1024} sc1", f"o{h}")
    a.vmem(f"buffer_load_dword {vr(T+6)}, {vr(vGT)}, {sr(SWS,4)}, {sr(sK1)} offen sc1", "g")
    a("s_waitcnt lgkmcnt(0)")
    for h in range(16):
        a.wait_vm(f"o{h}")
        if h >= 8:
            n_later = min(15, (15 - h) * 8) if h < 15 else 0
            a(f"s_waitcnt lgkmcnt({min(15, max(0, (15-h)*8))})") if False else None
        rd = wreads(h + 8, h) if h < 8 else []
        if h == 8: a("s_waitcnt lgkmcnt(0)")
        for t in range(4):
            mfma(ACC+t*4, WF+(h%8)*16+t*4, OF+h*4, None if h == 0 else ACC+t*4)
            for _ in range(2):
                if rd: a(rd.pop(0))
    a.wait_vm("g")
    a(f"s_cmp_eq_u32 {sr(sBR)}, 0")
    a("s_cbranch_scc1 L_p2_nog")
    a(f"ds_write_b32 {vr(T+5)}, {vr(T+6)}")
    a.label("L_p2_nog")
    a("s_nop 4")
    for t in range(4):
        a(f"ds_write_b128 {vr(vCW)}, {vr(ACC+t*4,4)} offset:{t*64}")
    a("s_waitcnt lgkmcnt(0)")
    a("s_barrier")
    A_, B_ = OF, OF+8
    a(f"ds_read_b32 {vr(T)}, {vr(T+4)}")
    a(f"ds_read_b128 {vr(A_,4)}, {vr(vCR)}")
    a(f"ds_read_b128 {vr(A_+4,4)}, {vr(vCR)} offset:16")
    a(f"ds_read_b128 {vr(B_,4)}, {vr(vCR)} offset:{P2_CBSZ}")
    a(f"ds_read_b128 {vr(B_+4,4)}, {vr(vCR)} offset:{P2_CBSZ+16}")
    a("s_waitcnt lgkmcnt(0)")
    for i in range(8): a(f"v_sub_f32 {vr(A_+i)}, {vr(A_+i)}, {vr(B_+i)}")
    for i in range(8): a(f"v_fma_f32 {vr(A_+i)}, {vr(A_+i)}, {vr(T)}, {vr(B_+i)}")
    for i in range(4): cvtpk(OF+16+i, A_+2*i, A_+2*i+1)
    a(f"buffer_store_dwordx4 {vr(OF+16,4)}, {vr(vOUT)}, {sr(SOUT,4)}, 0 offen")
    stamp("P2 done")
    a("s_endpgm")
    a.label("L_idle")
    a(f"s_lshl_b32 {sr(sT0)}, {sr(sRB)}, 3")
    a(f"s_add_u32 {sr(sT0)}, {sr(sT0)}, {sr(sHP)}")
    a(f"s_cmp_lg_u32 {sr(sT0)}, 127")
    a("s_cbranch_scc1 L_end")
    a(f"v_lshlrev_b32 v10, 5, v0")
    a(f"s_mov_b32 {sr(sCNT)}, 0")
    a.label("L_jan")
    for k in range(4):
        a(f"s_mov_b32 {sr(sT0)}, {WS_F2 + k*16384}")
        a(f"buffer_load_dwordx2 {vr(12+2*k,2)}, v10, {sr(SWS,4)}, {sr(sT0)} offen sc1")
    a(f"s_add_u32 {sr(sCNT)}, {sr(sCNT)}, 1")
    a("s_waitcnt vmcnt(0)")
    a(f"v_cmp_ne_u64 {sr(sT0,2)}, {sr(sTAG,2)}, v[12:13]")
    a(f"v_cmp_ne_u64 {sr(sT2,2)}, {sr(sTAG,2)}, v[14:15]")
    a(f"s_or_b64 {sr(sT0,2)}, {sr(sT0,2)}, {sr(sT2,2)}")
    a(f"v_cmp_ne_u64 {sr(sT2,2)}, {sr(sTAG,2)}, v[16:17]")
    a(f"s_or_b64 {sr(sT0,2)}, {sr(sT0,2)}, {sr(sT2,2)}")
    a(f"v_cmp_ne_u64 {sr(sT2,2)}, {sr(sTAG,2)}, v[18:19]")
    a(f"s_or_b64 {sr(sT0,2)}, {sr(sT0,2)}, {sr(sT2,2)}")
    a("s_cbranch_scc0 L_jand")
    a(f"s_cmp_gt_u32 {sr(sCNT)}, 0x400000")
    a("s_cbranch_scc1 L_jand")
    a("s_sleep 4")
    a("s_branch L_jan")
    a.label("L_jand")
    a("s_barrier")
    a(f"s_cmp_lg_u32 {sr(sWAVE)}, 0")
    a("s_cbranch_scc1 L_end")
    a(f"s_mov_b32 {sr(sT0)}, {WS_EPOCH}")
    set_flag(sT0, 10)
    a.label("L_end")
    a("s_endpgm")

prologue()
a(f"s_cmp_eq_u32 {sr(sTYPE)}, 1")
a("s_cbranch_scc1 L_typeA")
vm0 = list(a.vm)
phase1_B()
a("s_branch L_phase2")
a.vm = list(vm0)
phase1_A()
a.vm = []
phase2()

hdr = f"""; fused gated-mix kernel: generated by gen/gen.py
; @launch grid=(256,1,1) block=(512,1,1) lds={LDS_BYTES}
.amdgcn_target "amdgcn-amd-amdhsa--gfx950"
.text
.globl {NAME}_kernel
.p2align 8
.type {NAME}_kernel,@function
"""
ftr = f"""
.section .rodata,"a"
.p2align 6
.amdhsa_kernel {NAME}_kernel
  .amdhsa_next_free_vgpr 256
  .amdhsa_next_free_sgpr 102
  .amdhsa_accum_offset 256
  .amdhsa_group_segment_fixed_size 0
  .amdhsa_kernarg_size 80
  .amdhsa_user_sgpr_count 2
  .amdhsa_user_sgpr_kernarg_segment_ptr 1
  .amdhsa_system_sgpr_workgroup_id_x 1
.end_amdhsa_kernel
"""
out = [x for x in sys.argv[1:] if not x.startswith("--")]
path = out[0] if out else f"cdna_kernels/{NAME}.s"
open(path, "w").write(hdr + "\n".join(a.lines) + ftr)
print("wrote", path, len(a.lines), "lines")
```

```python
import sys, math

NAME = "gated_mix__sliding_local_dilated__linear_attn_block__prompt"
STAMPS = "--stamps" in sys.argv
DBGST = "--dbgstamps" in sys.argv

WS_EPOCH = 0
WS_F1 = 0x1000
WS_F2 = 0x10000
WS_KV = 0x40000
WS_GATE = 0x180000
WS_STAMP = 0x190000
WS_O = 0x200000
WS_SIZE = 0x800000

A_X = [0, 16384, 32768]
A_W = [49152, 73728, 98304]
A_HALO = 122880
A_EXCH = 137216
B_X = [0, 16384, 32768, 49152]
B_W = [65536, 81920, 98304, 114688]
B_WQ = [131072, 139264, 147456, 155648, 49152, 57344, 114688]
B_KVS = 0
B_KVF = 32768
P2_WO = 0
P2_ZERO = 114688
P2_CB = 115200
P2_CBSZ = 64 * 272
P2_G = P2_CB + 2 * P2_CBSZ
LDS_BYTES = 163840

LOG2E = 1.4426950408889634
import struct
def f2u(x): return struct.unpack("<I", struct.pack("<f", x))[0]

class Asm:
    def __init__(self):
        self.lines = []
        self.vm = []
        self.lbl = 0
    def __call__(self, s):
        self.lines.append("    " + s)
    def c(self, s):
        self.lines.append("    ; " + s)
    def label(self, name):
        self.lines.append(name + ":")
    def newlabel(self, p="L"):
        self.lbl += 1
        return f"{p}_{self.lbl}"
    def vmem(self, s, tag):
        self(s); self.vm.append(tag)
    def vmem_uncounted(self, s):
        self(s)
    def wait_vm(self, tag, extra=""):
        idx = max(i for i, t in enumerate(self.vm) if t == tag)
        n = len(self.vm) - 1 - idx
        assert n <= 63
        self(f"s_waitcnt vmcnt({n}){extra}")
        self.vm = self.vm[idx + 1:]
    def wait_vm_all(self, extra=""):
        self(f"s_waitcnt vmcnt(0){extra}")
        self.vm = []

def vr(b, n=1):
    return f"v{b}" if n == 1 else f"v[{b}:{b+n-1}]"
def sr(b, n=1):
    return f"s{b}" if n == 1 else f"s[{b}:{b+n-1}]"

a = Asm()

SX, SW, SWS, SWOA, SWOB, SOUT, SG = 8, 12, 16, 20, 24, 28, 32
sWAVE, sMI, sNI, sRB, sHP, sTYPE = 36, 37, 38, 39, 40, 41
sTAG = 42
sT0, sT1, sT2, sT3 = 44, 45, 46, 47
sW1K, sW2K, sW3K = 48, 49, 50
sSOX, sSOW = 51, 52
sMASK48 = 54
sODD = 56
sONE = 58
sEXEC = 60
sCB, sHALF = 62, 63
sCNT = 64
sPC = 66
sK0, sK1, sK2 = 68, 69, 70
sST = 72
sPTR = 76

vTID, vLANE, vI16, vG = 0, 1, 2, 3
vT0, vT1, vT2, vT3, vT4, vT5 = 4, 5, 6, 7, 8, 9

stamp_idx = [0]
def stamp(name):
    if DBGST:
        i = stamp_idx[0]; stamp_idx[0] += 1
        L = a.newlabel("L_st")
        a.c(f"stamp {i}: {name}")
        a(f"s_and_b32 s74, s2, 127")
        a(f"s_or_b32 s74, s74, {sr(sWAVE)}")
        if name.startswith("P2"): a(f"s_or_b32 s74, s74, s2")
        a(f"s_cmp_lg_u32 s74, 0")
        a(f"s_cbranch_scc1 {L}")
        a(f"s_memrealtime {sr(sST,2)}")
        a("s_waitcnt lgkmcnt(0)")
        a(f"s_sub_u32 {sr(sST)}, {sr(sST)}, s98")
        a(f"v_mov_b32 v23, {sr(sST)}")
        a(f"v_mov_b32 v22, 0") if False else None
        a(f"s_mov_b64 {sr(sST,2)}, exec")
        a("s_mov_b64 exec, 1")
        a.vmem_uncounted(f"buffer_store_dword v23, off, s[96:99], 0 offset:{i*4}") if False else None
        a.vmem_uncounted(f"buffer_store_dword v23, off, s[{100-4}:{100-1}], 0 offset:{i*4}") if False else None
        a.vmem_uncounted(f"global_store_dword v99, v23, {sr(sPTR+16,2)} offset:{i*4}") if False else None
        a(f"s_mov_b32 s74, {i*4}")
        a.vmem_uncounted(f"buffer_store_dword v23, off, {sr(SG,4)}, s74") if False else None
        a.vmem_uncounted(f"buffer_store_dword v23, off, s[4:7], s74")
        a(f"s_mov_b64 exec, {sr(sST,2)}")
        a.label(L)
        return
    if not STAMPS: return
    i = stamp_idx[0]; stamp_idx[0] += 1
    a.c(f"stamp {i}: {name}")
    a(f"s_memrealtime {sr(sST,2)}")
    a("s_waitcnt lgkmcnt(0)")
    a(f"v_mov_b32 v23, {sr(sST)}")
    a(f"s_lshl_b32 s74, s2, 3")
    a(f"s_add_u32 s74, s74, {sr(sWAVE)}")
    a(f"s_lshl_b32 s74, s74, 7")
    a(f"s_add_u32 s74, s74, {WS_STAMP + i*4}")
    a(f"s_mov_b64 {sr(sST,2)}, exec")
    a("s_mov_b64 exec, 1")
    a.vmem_uncounted(f"buffer_store_dword v23, off, {sr(SWS,4)}, s74")
    a(f"s_mov_b64 exec, {sr(sST,2)}")

def mfma(d, A, B, C=None):
    c = vr(C, 4) if C is not None else "0"
    a(f"v_mfma_f32_16x16x32_bf16 {vr(d,4)}, {vr(A,4)}, {vr(B,4)}, {c}")

def cvtpk(d, x, y):
    a(f"v_cvt_pk_bf16_f32 {vr(d)}, {vr(x)}, {vr(y)}")

def prologue():
    a.label(f"{NAME}_kernel")
    if DBGST: a("s_memrealtime s[98:99]")
    a("s_cmp_ge_u32 s2, 256")
    a("s_cbranch_scc1 L_end")
    a(f"s_load_dwordx16 {sr(sPTR,16)}, s[0:1], 0")
    a(f"s_load_dwordx4 {sr(sPTR+16,4)}, s[0:1], 64")
    a(f"s_getpc_b64 {sr(sPC,2)}")
    a.label("L_pc")
    a(f"v_lshrrev_b32 {vr(vT0)}, 6, v0")
    a(f"v_and_b32 {vr(vLANE)}, 63, v0")
    a(f"v_readfirstlane_b32 {sr(sWAVE)}, {vr(vT0)}")
    a(f"v_and_b32 {vr(vI16)}, 15, v0")
    a(f"v_bfe_u32 {vr(vG)}, v0, 4, 2")
    a(f"s_and_b32 {sr(sT0)}, s2, 7")
    a(f"s_lshr_b32 {sr(sT1)}, s2, 3")
    a(f"s_lshr_b32 {sr(sT2)}, {sr(sT0)}, 1")
    a(f"s_lshl_b32 {sr(sT2)}, {sr(sT2)}, 2")
    a(f"s_and_b32 {sr(sT3)}, {sr(sT1)}, 3")
    a(f"s_add_u32 {sr(sRB)}, {sr(sT2)}, {sr(sT3)}")
    a(f"s_and_b32 {sr(sHALF)}, {sr(sT0)}, 1")
    a(f"s_lshl_b32 {sr(sT2)}, {sr(sHALF)}, 2")
    a(f"s_bfe_u32 {sr(sT3)}, {sr(sT1)}, 0x20002")
    a(f"s_add_u32 {sr(sHP)}, {sr(sT2)}, {sr(sT3)}")
    a(f"s_lshr_b32 {sr(sTYPE)}, {sr(sT1)}, 4")
    a(f"s_lshl_b32 {sr(sT2)}, {sr(sTYPE)}, 2")
    a(f"s_add_u32 {sr(sCB)}, {sr(sT2)}, {sr(sT3)}")
    a(f"s_lshr_b32 {sr(sMI)}, {sr(sWAVE)}, 1")
    a(f"s_and_b32 {sr(sNI)}, {sr(sWAVE)}, 1")
    a(f"s_lshl_b32 {sr(sW1K)}, {sr(sWAVE)}, 10")
    a(f"s_lshl_b32 {sr(sW2K)}, {sr(sWAVE)}, 11")
    a(f"s_add_u32 {sr(sW3K)}, {sr(sW1K)}, {sr(sW2K)}")
    a(f"s_mov_b32 {sr(sMASK48)}, -1")
    a(f"s_mov_b32 {sr(sMASK48+1)}, 0xffff")
    a(f"s_mov_b32 {sr(sODD)}, 0xaaaaaaaa")
    a(f"s_mov_b32 {sr(sODD+1)}, 0xaaaaaaaa")
    a(f"s_mov_b32 {sr(sONE)}, 0x10001000")
    a(f"s_mov_b32 {sr(sONE+1)}, 0x10001000")
    a(f"s_and_b32 {sr(sT2)}, {sr(sT1)}, 7")
    a(f"s_lshl_b32 {sr(sT2)}, {sr(sT2)}, 3")
    a(f"s_add_u32 {sr(sT2)}, {sr(sT2)}, {sr(sWAVE)}")
    a(f"s_cmp_lg_u32 {sr(sT2)}, 7")
    a("s_cbranch_scc1 L_nopf")
    a(f"v_lshlrev_b32 {vr(vT1)}, 7, {vr(vLANE)}")
    a(f"v_min_u32 {vr(vT2)}, L_end-L_pc-8192, {vr(vT1)}")
    a(f"v_min_u32 {vr(vT3)}, L_end-L_pc-16384, {vr(vT1)}")
    a(f"v_add_u32 {vr(vT2)}, 8192, {vr(vT2)}")
    a(f"v_add_u32 {vr(vT3)}, 16384, {vr(vT3)}")
    a.vmem_uncounted(f"global_load_dword v250, {vr(vT1)}, {sr(sPC,2)}")
    a.vmem_uncounted(f"global_load_dword v251, {vr(vT2)}, {sr(sPC,2)}")
    a.vmem_uncounted(f"global_load_dword v252, {vr(vT3)}, {sr(sPC,2)}")
    a.label("L_nopf")
    a("s_waitcnt lgkmcnt(0)")
    P = sPTR
    def srd(d, p, n):
        a(f"s_mov_b32 {sr(d)}, {sr(p)}")
        a(f"s_mov_b32 {sr(d+1)}, {sr(p+1)}")
        a(f"s_mov_b32 {sr(d+2)}, {n}")
        a(f"s_mov_b32 {sr(d+3)}, 0x00020000")
    srd(SX, P+0, 1835008)
    a(f"s_cmp_eq_u32 {sr(sTYPE)}, 1")
    a(f"s_cselect_b32 {sr(SW)}, {sr(P+2)}, {sr(P+8)}")
    a(f"s_cselect_b32 {sr(SW+1)}, {sr(P+3)}, {sr(P+9)}")
    a(f"s_mov_b32 {sr(SW+2)}, 1204224")
    a(f"s_mov_b32 {sr(SW+3)}, 0x00020000")
    srd(SWS, P+18, WS_SIZE)
    a(f"s_load_dwordx2 {sr(sTAG,2)}, {sr(P+18,2)}, {WS_EPOCH}")
    srd(SWOA, P+4, 401408)
    srd(SWOB, P+10, 401408)
    srd(SOUT, P+14, 1835008)
    srd(SG, P+12, 896)
    if DBGST: srd(4, P+16, 256)

def dma(voff, srdreg, soff, m0expr, tag, offset=0):
    sreg, imm = m0expr
    if sreg is None:
        a(f"s_mov_b32 m0, {imm}")
    else:
        a(f"s_add_u32 m0, {sr(sreg)}, {imm}")
    so = sr(soff) if soff is not None else "0"
    off = f" offset:{offset}" if offset else ""
    return lambda: a.vmem(f"buffer_load_dwordx4 {vr(voff)}, {sr(srdreg,4)}, {so} offen{off} lds", tag)

vXG0, vXG1, vWG = 10, 11, 12
vXR0, vXR1 = 13, 14

def setup_x_addrs():
    a(f"v_lshrrev_b32 {vr(vT0)}, 3, {vr(vLANE)}")
    a(f"v_and_b32 {vr(vT1)}, 7, {vr(vLANE)}")
    a(f"v_xor_b32 {vr(vT2)}, {vr(vT1)}, {vr(vG)}")
    a(f"s_lshl_b32 {sr(sT0)}, {sr(sRB)}, 7")
    a(f"s_lshl_b32 {sr(sT1)}, {sr(sWAVE)}, 4")
    a(f"s_add_u32 {sr(sT0)}, {sr(sT0)}, {sr(sT1)}")
    a(f"s_mul_i32 {sr(sT0)}, {sr(sT0)}, 896")
    a(f"v_mul_u32_u24 {vr(vT3)}, 896, {vr(vT0)}")
    a(f"v_lshl_add_u32 {vr(vT3)}, {vr(vT2)}, 4, {vr(vT3)}")
    a(f"v_add_u32 {vr(vXG0)}, {sr(sT0)}, {vr(vT3)}")
    a(f"v_xor_b32 {vr(vT4)}, 64, {vr(vT3)}")
    a(f"v_add_u32 {vr(vXG1)}, {sr(sT0)}, {vr(vT4)}")
    a(f"v_add_u32 {vr(vXG1)}, {8*896-1024}, {vr(vXG1)}")
    a(f"v_lshrrev_b32 {vr(vT5)}, 1, {vr(vI16)}")
    a(f"v_xor_b32 {vr(vT5)}, {vr(vG)}, {vr(vT5)}")
    a(f"v_lshlrev_b32 {vr(vT5)}, 4, {vr(vT5)}")
    a(f"v_lshl_add_u32 {vr(vT5)}, {vr(vI16)}, 7, {vr(vT5)}")
    a(f"s_lshl_b32 {sr(sT1)}, {sr(sMI)}, 12")
    a(f"v_add_u32 {vr(vXR0)}, {sr(sT1)}, {vr(vT5)}")
    a(f"v_xor_b32 {vr(vXR1)}, 64, {vr(vXR0)}")

def setup_w_dma_addr():
    a(f"v_and_b32 {vr(vT2)}, 1, {vr(vG)}")
    a(f"v_lshlrev_b32 {vr(vT2)}, 1, {vr(vT2)}")
    a(f"s_lshl_b32 {sr(sT0)}, {sr(sNI)}, 2")
    a(f"v_or_b32 {vr(vT2)}, {sr(sT0)}, {vr(vT2)}")
    a(f"v_xor_b32 {vr(vT2)}, {vr(vT1)}, {vr(vT2)}")
    a(f"v_min_u32 {vr(vT2)}, 6, {vr(vT2)}")
    a(f"s_mul_i32 {sr(sT0)}, {sr(sWAVE)}, {8*2688}")
    a(f"s_mul_i32 {sr(sT1)}, {sr(sHP)}, 112")
    a(f"s_add_u32 {sr(sT0)}, {sr(sT0)}, {sr(sT1)}")
    a(f"v_mul_u32_u24 {vr(vWG)}, 2688, {vr(vT0)}")
    a(f"v_lshl_add_u32 {vr(vWG)}, {vr(vT2)}, 4, {vr(vWG)}")
    a(f"v_add_u32 {vr(vWG)}, {sr(sT0)}, {vr(vWG)}")

def w_read_lane(dst, t, nseg, tmp0, tmp1):
    a(f"v_and_b32 {vr(tmp0)}, 3, {vr(vI16)}")
    a(f"v_lshlrev_b32 {vr(tmp0)}, 3, {vr(tmp0)}")
    a(f"s_mul_i32 {sr(sT0)}, {sr(sNI)}, 56")
    if t is not None:
        a(f"s_add_u32 {sr(sT0)}, {sr(sT0)}, {t*32}")
    else:
        a(f"s_and_b32 {sr(sT1)}, {sr(sMI)}, 1")
        a(f"s_lshl_b32 {sr(sT1)}, {sr(sT1)}, 5")
        a(f"s_add_u32 {sr(sT0)}, {sr(sT0)}, {sr(sT1)}")
    a(f"v_add_u32 {vr(tmp0)}, {sr(sT0)}, {vr(tmp0)}")
    a(f"v_and_b32 {vr(tmp1)}, 8, {vr(vI16)}")
    a(f"v_lshlrev_b32 {vr(tmp1)}, 2, {vr(tmp1)}")
    a(f"v_xor_b32 {vr(tmp0)}, {vr(tmp0)}, {vr(tmp1)}")
    a(f"v_and_b32 {vr(tmp1)}, 1, {vr(vG)}")
    a(f"v_lshlrev_b32 {vr(tmp1)}, 6, {vr(tmp1)}")
    a(f"v_xor_b32 {vr(tmp0)}, {vr(tmp0)}, {vr(tmp1)}")
    a(f"v_lshrrev_b32 {vr(tmp1)}, 2, {vr(vI16)}")
    a(f"v_lshl_add_u32 {vr(tmp0)}, {vr(tmp1)}, 7, {vr(tmp0)}")
    a(f"v_mul_u32_u24 {vr(tmp1)}, {nseg*1024}, {vr(vG)}")
    a(f"v_add_u32 {vr(dst)}, {vr(tmp0)}, {vr(tmp1)}")

def compute_tag():
    a("s_waitcnt lgkmcnt(0)")
    a(f"s_add_u32 {sr(sTAG)}, {sr(sTAG)}, 0x7f4a7c15")
    a(f"s_addc_u32 {sr(sTAG+1)}, {sr(sTAG+1)}, 0x9e3779b9")

def set_flag(soff_sgpr, vtmp):
    a(f"v_mov_b32 {vr(vtmp)}, {sr(sTAG)}")
    a(f"v_mov_b32 {vr(vtmp+1)}, {sr(sTAG+1)}")
    a(f"v_mov_b32 {vr(vtmp+2)}, 0")
    a(f"s_mov_b64 {sr(sEXEC,2)}, exec")
    a("s_mov_b64 exec, 1")
    a.vmem(f"buffer_store_dwordx2 {vr(vtmp,2)}, {vr(vtmp+2)}, {sr(SWS,4)}, {sr(soff_sgpr)} offen sc1", "flag")
    a(f"s_mov_b64 exec, {sr(sEXEC,2)}")

def poll_flags(soff_sgpr, vtmp):
    L = a.newlabel("L_poll"); Ld = a.newlabel("L_polld")
    a(f"v_lshlrev_b32 {vr(vtmp+2)}, 5, {vr(vI16)}")
    a(f"s_mov_b32 {sr(sCNT)}, 0")
    a.label(L)
    a(f"buffer_load_dwordx2 {vr(vtmp,2)}, {vr(vtmp+2)}, {sr(SWS,4)}, {sr(soff_sgpr)} offen sc1")
    a(f"s_add_u32 {sr(sCNT)}, {sr(sCNT)}, 1")
    a("s_waitcnt vmcnt(0)")
    a(f"v_cmp_ne_u64 vcc, {sr(sTAG,2)}, {vr(vtmp,2)}")
    a(f"s_cmp_gt_u32 {sr(sCNT)}, 0x400000")
    a(f"s_cbranch_scc1 {Ld}")
    a(f"s_cbranch_vccz {Ld}")
    a("s_sleep 1")
    a(f"s_branch {L}")
    a.label(Ld)
    a.vm = []

def phase1_A():
    vHR0, vHR1 = 15, 16
    vWR = {(0,0):17, (1,0):18, (0,1):19, (1,1):20}
    vWH = [21, 22]
    SETS = [24, 64]
    ACC = 104
    def accq(t, tl): return ACC + (t*2+tl)*4
    def acck(t, tl): return ACC + 16 + (t*2+tl)*4
    def accv(t, tl): return ACC + 32 + (t*2+tl)*4
    acch = ACC + 48
    a.label("L_typeA")
    setup_x_addrs()
    a(f"s_cmp_eq_u32 {sr(sWAVE)}, 7")
    a("s_cbranch_scc1 L_A_nohalo")
    a(f"s_lshl_b32 {sr(sT0)}, {sr(sRB)}, 7")
    a(f"s_sub_u32 {sr(sT0)}, {sr(sT0)}, 16")
    a(f"s_mul_i32 {sr(sT0)}, {sr(sT0)}, 896")
    a(f"s_lshl_b32 {sr(sT1)}, {sr(sWAVE)}, 7")
    a(f"s_add_u32 {sr(sT0)}, {sr(sT0)}, {sr(sT1)}")
    a(f"v_add_u32 {vr(vHR0)}, {sr(sT0)}, {vr(vT3)}")
    a(f"v_add_u32 {vr(vHR1)}, {sr(sT0)}, {vr(vT4)}")
    a(f"v_add_u32 {vr(vHR1)}, {8*896-1024}, {vr(vHR1)}")
    a(f"s_add_u32 m0, {sr(sW2K)}, {A_HALO}")
    a("s_nop 0")
    a.vmem_uncounted(f"buffer_load_dwordx4 {vr(vHR0)}, {sr(SX,4)}, 0 offen lds")
    a.vmem_uncounted(f"buffer_load_dwordx4 {vr(vHR1)}, {sr(SX,4)}, 0 offen offset:1024 lds")
    a.label("L_A_nohalo")
    setup_w_dma_addr()
    def issue_chunk(c):
        sl = c % 3
        a(f"s_mov_b32 {sr(sSOX)}, {c*128}")
        a(f"s_mov_b32 {sr(sSOW)}, {c*172032}")
        f = dma(vXG0, SX, sSOX, (sW2K, A_X[sl]), f"c{c}")
        a("s_nop 0"); f()
        a.vmem(f"buffer_load_dwordx4 {vr(vXG1)}, {sr(SX,4)}, {sr(sSOX)} offen offset:1024 lds", f"c{c}")
        for sg in range(3):
            f = dma(vWG, SW, sSOW, (sW3K, A_W[sl] + sg*1024 - sg*896), f"c{c}", offset=sg*896)
            a("s_nop 0"); f()
    for c in range(3):
        issue_chunk(c)
    a(f"v_add_u32 {vr(vHR0)}, {A_HALO}, {vr(vT5)}")
    a(f"v_xor_b32 {vr(vHR1)}, 64, {vr(vHR0)}")
    for t in range(2):
        w_read_lane(vWR[(t,0)], t, 3, vT0, vT1)
        a(f"v_add_u32 {vr(vWR[(t,1)])}, {A_W[2]}, {vr(vWR[(t,0)])}")
        a(f"v_add_u32 {vr(vWR[(t,0)])}, {A_W[0]}, {vr(vWR[(t,0)])}")
    w_read_lane(vWH[0], None, 3, vT0, vT1)
    a(f"s_lshr_b32 {sr(sT0)}, {sr(sMI)}, 1")
    a(f"s_lshl_b32 {sr(sT0)}, {sr(sT0)}, 10")
    a(f"s_add_u32 {sr(sT0)}, {sr(sT0)}, 1024")
    a(f"v_add_u32 {vr(vWH[0])}, {sr(sT0)}, {vr(vWH[0])}")
    a(f"v_add_u32 {vr(vWH[1])}, {A_W[2]}, {vr(vWH[0])}")
    a(f"v_add_u32 {vr(vWH[0])}, {A_W[0]}, {vr(vWH[0])}")
    compute_tag()
    stamp("A setup done")

    def reads(c, ks, S):
        sl = c % 3
        out = []
        xr = vXR0 if ks == 0 else vXR1
        hr = vHR0 if ks == 0 else vHR1
        reg = 1 if sl == 2 else 0
        wb = (A_W[sl] - A_W[2*reg]) + ks*4*3072
        def wfrag(dst, base, seg):
            for h in range(2):
                out.append(f"ds_read_b64_tr_b16 {vr(dst+2*h,2)}, {vr(base)} offset:{wb + seg*1024 + h*512}")
        out.append(f"ds_read_b128 {vr(S,4)}, {vr(xr)} offset:{A_X[sl]}")
        wfrag(S+12, vWR[(0,reg)], 0)
        out.append(f"ds_read_b128 {vr(S+4,4)}, {vr(xr)} offset:{A_X[sl]+2048}")
        wfrag(S+16, vWR[(1,reg)], 0)
        for seg in (1, 2):
            for t in range(2):
                wfrag(S+12+(seg*2+t)*4, vWR[(t,reg)], seg)
        out.append(f"ds_read_b128 {vr(S+8,4)}, {vr(hr)} offset:{c*2048}")
        wfrag(S+36, vWH[reg], 0)
        return out
    def mfmas(S, first):
        out = []
        for t in range(2):
            for tl in range(2):
                out.append(("m", accq(t,tl), S+12+t*4, S+tl*4))
        for t in range(2):
            for tl in range(2):
                out.append(("m", acck(t,tl), S+20+t*4, S+tl*4))
        for t in range(2):
            for tl in range(2):
                out.append(("m", accv(t,tl), S+tl*4, S+28+t*4))
        out.append(("h",))
        return out
    def emit_step(S, first, rd):
        ms = mfmas(S, first)
        rd = list(rd)
        for i, m in enumerate(ms):
            if m[0] == "m":
                mfma(m[1], m[2], m[3], None if first else m[1])
            else:
                L1 = a.newlabel("L_h"); L2 = a.newlabel("L_h")
                a(f"s_cmp_ge_u32 {sr(sMI)}, 2")
                a(f"s_cbranch_scc1 {L1}")
                mfma(acch, S+36, S+8, None if first else acch)
                a(f"s_branch {L2}")
                a.label(L1)
                mfma(acch, S+8, S+36, None if first else acch)
                a.label(L2)
            for _ in range(2):
                if rd: a(rd.pop(0))
        for r in rd: a(r)
    for c in range(7):
        a.c(f"---- A chunk {c}")
        a.wait_vm(f"c{c}", " lgkmcnt(0)")
        a("s_barrier")
        if c >= 1 and c + 2 < 7:
            issue_chunk(c + 2)
        r0 = reads(c, 0, SETS[0])
        if c == 0:
            for r in r0: a(r)
        else:
            emit_step(SETS[1], False, r0)
        a("s_waitcnt lgkmcnt(0)")
        emit_step(SETS[0], c == 0, reads(c, 1, SETS[1]))
    a("s_waitcnt lgkmcnt(0)")
    emit_step(SETS[1], False, [])
    stamp("A gemm done")
    QB = [24, 28]
    KB = [32, 36]
    KP = 40
    VE = [44, 50]
    HP_ = 56
    ONES = 58
    BIAS = 62
    SH = 68
    vEX = 69
    vOA = 70
    T = 72
    for i in range(4): a(f"v_mov_b32 {vr(ONES+i)}, 0x3f803f80")
    a(f"v_and_b32 {vr(T)}, 1, {vr(vI16)}")
    a(f"v_lshlrev_b32 {vr(SH)}, 4, {vr(T)}")
    a(f"v_lshl_add_u32 {vr(T+1)}, {vr(vG)}, 2, {vr(T)}")
    a(f"v_mov_b32 {vr(T+2)}, 0xf149f2ca")
    a(f"v_cmp_le_u32 vcc, {vr(T+1)}, {vr(vI16)}")
    a(f"v_add_u32 {vr(T+3)}, 2, {vr(T+1)}")
    a("s_nop 0")
    a(f"v_cndmask_b32 {vr(BIAS+2)}, {vr(T+2)}, 0, vcc")
    a(f"v_cmp_le_u32 vcc, {vr(T+3)}, {vr(vI16)}")
    a(f"v_add_u32 {vr(T+4)}, 2, {vr(vI16)}")
    a("s_nop 0")
    a(f"v_cndmask_b32 {vr(BIAS+3)}, {vr(T+2)}, 0, vcc")
    a(f"v_cmp_ge_u32 vcc, {vr(T+1)}, {vr(T+4)}")
    a("s_nop 1")
    a(f"v_cndmask_b32 {vr(BIAS+0)}, {vr(T+2)}, 0, vcc")
    a(f"v_cmp_ge_u32 vcc, {vr(T+3)}, {vr(T+4)}")
    a("s_nop 1")
    a(f"v_cndmask_b32 {vr(BIAS+1)}, {vr(T+2)}, 0, vcc")
    a(f"s_or_b32 {sr(sT0)}, {sr(sRB)}, {sr(sMI)}")
    a(f"s_cmp_eq_u32 {sr(sT0)}, 0")
    a(f"s_cselect_b32 {sr(sT0)}, 0xf149f2ca, 0")
    a(f"v_min_f32 {vr(BIAS+4)}, {sr(sT0)}, {vr(BIAS+0)}")
    a(f"v_min_f32 {vr(BIAS+5)}, {sr(sT0)}, {vr(BIAS+1)}")
    a(f"s_mul_i32 {sr(sT0)}, {sr(sNI)}, {5*2048}")
    a(f"s_lshl_b32 {sr(sT1)}, {sr(sMI)}, 11")
    a(f"s_add_u32 {sr(sT1)}, {sr(sT1)}, {sr(sT0)}")
    a(f"s_add_u32 {sr(sT1)}, {sr(sT1)}, {A_EXCH}")
    a(f"v_lshlrev_b32 {vr(T)}, 4, {vr(vLANE)}")
    a(f"v_add_u32 {vr(vEX)}, {sr(sT1)}, {vr(T)}")
    a(f"s_lshr_b32 {sr(sT1)}, {sr(sMI)}, 1")
    a(f"s_lshl_b32 {sr(sT1)}, {sr(sT1)}, 10")
    a(f"s_add_u32 {sr(sT0)}, {sr(sT0)}, {sr(sT1)}")
    a(f"s_and_b32 {sr(sT1)}, {sr(sMI)}, 1")
    a(f"s_lshl_b32 {sr(sT1)}, {sr(sT1)}, 3")
    a(f"s_add_u32 {sr(sT0)}, {sr(sT0)}, {sr(sT1)}")
    a(f"s_add_u32 {sr(sT0)}, {sr(sT0)}, {A_EXCH}")
    a(f"v_add_u32 {vr(T+5)}, {sr(sT0)}, {vr(T)}")
    o_store_offset(vOA, 0, T)
    a(f"s_mov_b32 {sr(sK0)}, {f2u(28**-0.5 * LOG2E)}")
    cvtpk(KB[1]+0, acck(0,1)+0, acck(0,1)+1); cvtpk(KB[1]+1, acck(0,1)+2, acck(0,1)+3)
    cvtpk(KB[1]+2, acck(1,1)+0, acck(1,1)+1); cvtpk(KB[1]+3, acck(1,1)+2, acck(1,1)+3)
    for et in range(2):
        cvtpk(VE[et]+4, accv(et,1)+0, accv(et,1)+1); cvtpk(VE[et]+5, accv(et,1)+2, accv(et,1)+3)
    cvtpk(HP_, acch, acch+1); cvtpk(HP_+1, acch+2, acch+3)
    a(f"ds_write_b128 {vr(vEX)}, {vr(KB[1],4)} offset:2048")
    a(f"ds_write_b64 {vr(vEX)}, {vr(VE[0]+4,2)} offset:{2048+1024}")
    a(f"ds_write_b64 {vr(vEX)}, {vr(VE[1]+4,2)} offset:{2048+1024+8}")
    a(f"ds_write_b64 {vr(T+5)}, {vr(HP_,2)}")
    cvtpk(KB[0]+0, acck(0,0)+0, acck(0,0)+1); cvtpk(KB[0]+1, acck(0,0)+2, acck(0,0)+3)
    cvtpk(KB[0]+2, acck(1,0)+0, acck(1,0)+1); cvtpk(KB[0]+3, acck(1,0)+2, acck(1,0)+3)
    for et in range(2):
        cvtpk(VE[et]+2, accv(et,0)+0, accv(et,0)+1); cvtpk(VE[et]+3, accv(et,0)+2, accv(et,0)+3)
    for tl in (1, 0):
        cvtpk(QB[tl]+0, accq(0,tl)+0, accq(0,tl)+1); cvtpk(QB[tl]+1, accq(0,tl)+2, accq(0,tl)+3)
        cvtpk(QB[tl]+2, accq(1,tl)+0, accq(1,tl)+1); cvtpk(QB[tl]+3, accq(1,tl)+2, accq(1,tl)+3)
        a(f"v_cndmask_b32 {vr(QB[tl]+2)}, 0, {vr(QB[tl]+2)}, {sr(sMASK48,2)}")
        a(f"v_cndmask_b32 {vr(QB[tl]+3)}, 0, {vr(QB[tl]+3)}, {sr(sMASK48,2)}")
    def attn(tl):
        kp = KB[0] if tl == 1 else KP
        bp = BIAS if tl == 1 else BIAS + 4
        S0, S1 = T, T+4
        X = T+8
        M = T+12; M2 = T+13
        P = T+16
        O0, O1, L = T+20, T+24, T+28
        a("s_nop 1")
        mfma(S0, kp, QB[tl]); mfma(S1, KB[tl], QB[tl])
        a("s_nop 6")
        a(f"v_cndmask_b32 {vr(X+0)}, {vr(S0+0)}, {vr(S0+1)}, {sr(sODD,2)}")
        a(f"v_cndmask_b32 {vr(X+1)}, {vr(S0+2)}, {vr(S0+3)}, {sr(sODD,2)}")
        a(f"v_cndmask_b32 {vr(X+2)}, {vr(S1+0)}, {vr(S1+1)}, {sr(sODD,2)}")
        a(f"v_cndmask_b32 {vr(X+3)}, {vr(S1+2)}, {vr(S1+3)}, {sr(sODD,2)}")
        a(f"v_fma_f32 {vr(X+0)}, {vr(X+0)}, {sr(sK0)}, {vr(bp+0)}")
        a(f"v_fma_f32 {vr(X+1)}, {vr(X+1)}, {sr(sK0)}, {vr(bp+1)}")
        a(f"v_fma_f32 {vr(X+2)}, {vr(X+2)}, {sr(sK0)}, {vr(BIAS+2)}")
        a(f"v_fma_f32 {vr(X+3)}, {vr(X+3)}, {sr(sK0)}, {vr(BIAS+3)}")
        a(f"v_max3_f32 {vr(M)}, {vr(X+0)}, {vr(X+1)}, {vr(X+2)}")
        a(f"v_max_f32 {vr(M)}, {vr(M)}, {vr(X+3)}")
        a(f"v_mov_b32 {vr(M2)}, {vr(M)}")
        a("s_nop 1")
        a(f"v_permlane32_swap_b32 {vr(M)}, {vr(M2)}")
        a("s_nop 1")
        a(f"v_max_f32 {vr(M)}, {vr(M)}, {vr(M2)}")
        a(f"v_mov_b32 {vr(M2)}, {vr(M)}")
        a("s_nop 1")
        a(f"v_permlane16_swap_b32 {vr(M)}, {vr(M2)}")
        a("s_nop 1")
        a(f"v_max_f32 {vr(M)}, {vr(M)}, {vr(M2)}")
        for i in range(4): a(f"v_sub_f32 {vr(X+i)}, {vr(X+i)}, {vr(M)}")
        for i in range(4): a(f"v_exp_f32 {vr(X+i)}, {vr(X+i)}")
        a("s_nop 0")
        for i in range(4): a(f"v_cvt_pk_bf16_f32 {vr(P+i)}, {vr(X+i)}, 0")
        for i in range(4): a(f"v_lshlrev_b32 {vr(P+i)}, {vr(SH)}, {vr(P+i)}")
        a("s_nop 1")
        off = 2 if tl == 1 else 0
        mfma(L, ONES, P); mfma(O0, VE[0]+off, P); mfma(O1, VE[1]+off, P)
        a("s_nop 5")
        a(f"v_rcp_f32 {vr(M)}, {vr(L)}")
        a("s_nop 1")
        for i in range(4): a(f"v_mul_f32 {vr(O0+i)}, {vr(O0+i)}, {vr(M)}")
        for i in range(4): a(f"v_mul_f32 {vr(O1+i)}, {vr(O1+i)}, {vr(M)}")
        R = 104 + tl*4
        cvtpk(R+0, O0, O0+1); cvtpk(R+1, O0+2, O0+3); cvtpk(R+2, O1, O1+1); cvtpk(R+3, O1+2, O1+3)
        a(f"v_cndmask_b32 {vr(R+2)}, 0, {vr(R+2)}, {sr(sMASK48,2)}")
        a(f"v_cndmask_b32 {vr(R+3)}, 0, {vr(R+3)}, {sr(sMASK48,2)}")
        a(f"s_mov_b32 {sr(sT0)}, {tl*16384}")
        a.vmem(f"buffer_store_dwordx4 {vr(R,4)}, {vr(vOA)}, {sr(SWS,4)}, {sr(sT0)} offen sc1", "ost")
    attn(1)
    a("s_waitcnt lgkmcnt(0)")
    a("s_barrier")
    a(f"ds_read_b128 {vr(KP,4)}, {vr(vEX)}")
    a(f"ds_read_b64 {vr(VE[0],2)}, {vr(vEX)} offset:1024")
    a(f"ds_read_b64 {vr(VE[1],2)}, {vr(vEX)} offset:1032")
    a("s_waitcnt lgkmcnt(0)")
    attn(0)
    stamp("A epilogue done")
    issue_wo(T)
    flag2_offset(0)
    set_flag(sT0, T)
    stamp("A flag set")
    a("s_branch L_phase2")

def o_store_offset(dst, br, tmp):
    a(f"s_lshl_b32 {sr(sT0)}, {sr(sRB)}, 1")
    a(f"s_add_u32 {sr(sT0)}, {sr(sT0)}, {br}")
    a(f"s_lshl_b32 {sr(sT0)}, {sr(sT0)}, 2")
    a(f"s_add_u32 {sr(sT0)}, {sr(sT0)}, {sr(sMI)}")
    a(f"s_lshl_b32 {sr(sT0)}, {sr(sT0)}, 5")
    a(f"s_lshl_b32 {sr(sT1)}, {sr(sHP)}, 1")
    a(f"s_add_u32 {sr(sT0)}, {sr(sT0)}, {sr(sT1)}")
    a(f"s_add_u32 {sr(sT0)}, {sr(sT0)}, {sr(sNI)}")
    a(f"s_lshl_b32 {sr(sT0)}, {sr(sT0)}, 10")
    a(f"s_add_u32 {sr(sT0)}, {sr(sT0)}, {WS_O}")
    a(f"v_lshlrev_b32 {vr(dst)}, 4, {vr(vLANE)}")
    a(f"v_add_u32 {vr(dst)}, {sr(sT0)}, {vr(dst)}")

def flag2_offset(br):
    a(f"s_lshl_b32 {sr(sT0)}, {sr(sRB)}, 1")
    a(f"s_add_u32 {sr(sT0)}, {sr(sT0)}, {br}")
    a(f"s_lshl_b32 {sr(sT0)}, {sr(sT0)}, 2")
    a(f"s_add_u32 {sr(sT0)}, {sr(sT0)}, {sr(sMI)}")
    a(f"s_lshl_b32 {sr(sT0)}, {sr(sT0)}, 4")
    a(f"s_lshl_b32 {sr(sT1)}, {sr(sHP)}, 1")
    a(f"s_add_u32 {sr(sT0)}, {sr(sT0)}, {sr(sT1)}")
    a(f"s_add_u32 {sr(sT0)}, {sr(sT0)}, {sr(sNI)}")
    a(f"s_lshl_b32 {sr(sT0)}, {sr(sT0)}, 5")
    a(f"s_add_u32 {sr(sT0)}, {sr(sT0)}, {WS_F2}")

def issue_wo(tmp):
    L = a.newlabel("L_nowo"); L2 = a.newlabel("L_wod")
    a(f"s_cmp_eq_u32 {sr(sCB)}, 7")
    a(f"s_cbranch_scc1 {L}")
    a(f"v_lshrrev_b32 {vr(tmp)}, 3, {vr(vLANE)}")
    a(f"v_and_b32 {vr(tmp+1)}, 7, {vr(vLANE)}")
    a(f"v_lshlrev_b32 {vr(tmp+2)}, 1, {vr(vG)}")
    a(f"v_xor_b32 {vr(tmp+1)}, {vr(tmp+1)}, {vr(tmp+2)}")
    a(f"v_mul_u32_u24 {vr(tmp)}, 896, {vr(tmp)}")
    a(f"v_lshl_add_u32 {vr(tmp)}, {vr(tmp+1)}, 4, {vr(tmp)}")
    a(f"s_mul_i32 {sr(sT2)}, {sr(sWAVE)}, {8*896}")
    a(f"s_lshl_b32 {sr(sT3)}, {sr(sCB)}, 7")
    a(f"s_add_u32 {sr(sT2)}, {sr(sT2)}, {sr(sT3)}")
    a(f"v_add_u32 {vr(tmp)}, {sr(sT2)}, {vr(tmp)}")
    for n in range(7):
        for b in range(2):
            a(f"s_add_u32 m0, {sr(sW1K)}, {P2_WO + b*57344 + n*8192}")
            a(f"s_mov_b32 {sr(sT2)}, {n*57344}")
            a.vmem_uncounted(f"buffer_load_dwordx4 {vr(tmp)}, {sr(SWOA if b==0 else SWOB,4)}, {sr(sT2)} offen lds")
    a("s_waitcnt vmcnt(14)")
    a(f"s_branch {L2}")
    a.label(L)
    a("s_waitcnt vmcnt(0)")
    a.label(L2)
    a.vm = []

def phi(regs, tmp):
    n = len(regs)
    for i, r in enumerate(regs):
        a(f"v_mul_f32 {vr(tmp+i)}, {sr(sK1)}, {vr(r)}")
    for i, r in enumerate(regs):
        a(f"v_min_f32 {vr(tmp+i)}, 0, {vr(tmp+i)}")
    for i, r in enumerate(regs):
        a(f"v_exp_f32 {vr(tmp+i)}, {vr(tmp+i)}")
    for i, r in enumerate(regs):
        a(f"v_max_f32 {vr(r)}, 0, {vr(r)}")
    for i, r in enumerate(regs):
        a(f"v_add_f32 {vr(tmp+i)}, {sr(sK2)}, {vr(tmp+i)}")
    for i, r in enumerate(regs):
        a(f"v_add_f32 {vr(r)}, {vr(r)}, {vr(tmp+i)}")

def phase1_B():
    vWR = [15, 16]
    vQR = {(0,0):17, (1,0):18, (0,1):19, (1,1):20, (0,2):21, (1,2):22}
    XF = 24
    SETS = [136, 152]
    ACC = 168
    GF = 200
    def xf(k, tl): return XF + (k*2+tl)*4
    def acck(t, tl): return ACC + (t*2+tl)*4
    def accv(t, tl): return ACC + 16 + (t*2+tl)*4
    a.label("L_typeB")
    setup_x_addrs()
    setup_w_dma_addr()
    def issue_chunk(c):
        sl = c % 4
        a(f"s_mov_b32 {sr(sSOX)}, {c*128}")
        a(f"s_mov_b32 {sr(sSOW)}, {c*172032}")
        f = dma(vXG0, SX, sSOX, (sW2K, B_X[sl]), f"c{c}")
        a("s_nop 0"); f()
        a.vmem(f"buffer_load_dwordx4 {vr(vXG1)}, {sr(SX,4)}, {sr(sSOX)} offen offset:1024 lds", f"c{c}")
        for i, sg in enumerate((1, 2)):
            f = dma(vWG, SW, sSOW, (sW2K, B_W[sl] + i*1024 - sg*896), f"c{c}", offset=sg*896)
            a("s_nop 0"); f()
    def issue_wq(c):
        a(f"s_mov_b32 {sr(sSOW)}, {c*172032}")
        f = dma(vWG, SW, sSOW, (sW1K, B_WQ[c]), "wq")
        a("s_nop 0"); f()
    for c in range(4):
        issue_chunk(c)
    for t in range(2):
        w_read_lane(vWR[t], t, 2, vT0, vT1)
        a(f"v_add_u32 {vr(vWR[t])}, {B_W[0]}, {vr(vWR[t])}")
        w_read_lane(vQR[(t,0)], t, 1, vT0, vT1)
        a(f"v_add_u32 {vr(vQR[(t,1)])}, {B_WQ[4]}, {vr(vQR[(t,0)])}")
        a(f"v_add_u32 {vr(vQR[(t,2)])}, {B_WQ[6]}, {vr(vQR[(t,0)])}")
        a(f"v_add_u32 {vr(vQR[(t,0)])}, {B_WQ[0]}, {vr(vQR[(t,0)])}")
    a(f"s_mov_b32 {sr(sK1)}, {f2u(LOG2E)}")
    a(f"s_mov_b32 {sr(sK2)}, {f2u(1e-6)}")
    compute_tag()
    stamp("B setup done")
    def reads(c, ks, S):
        sl = c % 4
        k = c*2 + ks
        xr = vXR0 if ks == 0 else vXR1
        wb = (B_W[sl] - B_W[0]) + ks*4*2048
        out = []
        def wfrag(dst, t, seg):
            for h in range(2):
                out.append(f"ds_read_b64_tr_b16 {vr(dst+2*h,2)}, {vr(vWR[t])} offset:{wb + seg*1024 + h*512}")
        out.append(f"ds_read_b128 {vr(xf(k,0),4)}, {vr(xr)} offset:{B_X[sl]}")
        wfrag(S, 0, 0)
        out.append(f"ds_read_b128 {vr(xf(k,1),4)}, {vr(xr)} offset:{B_X[sl]+2048}")
        wfrag(S+4, 1, 0); wfrag(S+8, 0, 1); wfrag(S+12, 1, 1)
        return out
    def emit_step(k, S, rd):
        rd = list(rd); first = (k == 0)
        for seg in range(2):
            for t in range(2):
                for tl in range(2):
                    d = (acck if seg == 0 else accv)(t, tl)
                    mfma(d, xf(k,tl), S+(seg*2+t)*4, None if first else d)
                    for _ in range(2):
                        if rd: a(rd.pop(0))
        for r in rd: a(r)
    for c in range(7):
        a.c(f"---- B chunk {c}")
        a.wait_vm(f"c{c}", " lgkmcnt(0)")
        a("s_barrier")
        if c >= 1 and c + 3 < 7:
            issue_chunk(c + 3)
        if c == 3:
            for q in range(4): issue_wq(q)
        if c == 4:
            for q in range(4, 7): issue_wq(q)
        r0 = reads(c, 0, SETS[0])
        if c == 0:
            for r in r0: a(r)
        else:
            emit_step(c*2-1, SETS[1], r0)
        a("s_waitcnt lgkmcnt(0)")
        emit_step(c*2, SETS[0], reads(c, 1, SETS[1]))
    a("s_waitcnt lgkmcnt(0)")
    emit_step(13, SETS[1], [])
    stamp("B pass1 done")
    T = 136
    a(f"s_lshl_b32 {sr(sT0)}, {sr(sHP)}, 1")
    a(f"s_cmp_lg_u32 {sr(sT0)}, {sr(sWAVE)}")
    a("s_cbranch_scc1 L_B_nogl")
    a(f"v_lshlrev_b32 {vr(vT0)}, 4, {vr(vG)}")
    for k in range(14):
        a.vmem_uncounted(f"buffer_load_dwordx4 {vr(GF+k*4,4)}, {vr(vT0)}, {sr(SG,4)}, 0 offen offset:{k*64}")
    a.label("L_B_nogl")
    vS = vT1
    a(f"v_lshlrev_b32 {vr(vT2)}, 4, {vr(vLANE)}")
    a(f"s_lshl_b32 {sr(sT0)}, {sr(sNI)}, 14")
    a(f"s_lshl_b32 {sr(sT1)}, {sr(sMI)}, 12")
    a(f"s_add_u32 {sr(sT1)}, {sr(sT1)}, {sr(sT0)}")
    a(f"v_add_u32 {vr(vS)}, {sr(sT1)}, {vr(vT2)}")
    a(f"s_lshl_b32 {sr(sT1)}, {sr(sMI)}, 10")
    a(f"s_add_u32 {sr(sT1)}, {sr(sT1)}, {sr(sT0)}")
    a(f"v_add_u32 {vr(vT3)}, {sr(sT1)}, {vr(vT2)}")
    a(f"s_lshl_b32 {sr(sT0)}, {sr(sHP)}, 3")
    a(f"s_add_u32 {sr(sT0)}, {sr(sT0)}, {sr(sWAVE)}")
    a(f"s_lshl_b32 {sr(sT1)}, {sr(sT0)}, 14")
    a(f"s_add_u32 {sr(sT1)}, {sr(sT1)}, {WS_KV}")
    a(f"v_add_u32 {vr(vT4)}, {sr(sT1)}, {vr(vT2)}")
    a("s_nop 2")
    phi([ACC+i for i in range(16)], T)
    PK = T+16; PV = T+24
    for t in range(2):
        for tl in range(2):
            cvtpk(PK+t*4+tl*2, acck(t,tl), acck(t,tl)+1); cvtpk(PK+t*4+tl*2+1, acck(t,tl)+2, acck(t,tl)+3)
    for t in range(2):
        for tl in range(2):
            cvtpk(PV+t*4+tl*2, accv(t,tl), accv(t,tl)+1); cvtpk(PV+t*4+tl*2+1, accv(t,tl)+2, accv(t,tl)+3)
    a(f"v_mov_b32 {vr(T)}, 0x3f803f80")
    for i in range(4):
        a(f"v_cndmask_b32 {vr(PV+4+i)}, {vr(PV+4+i)}, {vr(T)}, {sr(sONE,2)}")
    a("s_nop 1")
    KV = ACC
    for dt in range(2):
        for et in range(2):
            mfma(KV+(dt*2+et)*4, PK+dt*4, PV+et*4)
    a("s_nop 4")
    for q in range(4):
        a(f"ds_write_b128 {vr(vS)}, {vr(KV+q*4,4)} offset:{B_KVS + q*1024}")
    a.wait_vm("wq", " lgkmcnt(0)")
    a("s_barrier")
    for m in range(4):
        a(f"ds_read_b128 {vr(T+m*4,4)}, {vr(vT3)} offset:{B_KVS + m*4096}")
    QS = [ACC+16, ACC+24]
    AQ = ACC
    AG = T+16
    def qreads(k, S):
        c, ks = divmod(k, 2)
        reg = 0 if c < 4 else (1 if c < 6 else 2)
        base = B_WQ[c] - B_WQ[(0,4,6)[reg]] + ks*4096
        return [f"ds_read_b64_tr_b16 {vr(S+t*4+2*h,2)}, {vr(vQR[(t,reg)])} offset:{base + h*512}" for t in range(2) for h in range(2)]
    a("s_waitcnt lgkmcnt(0)")
    for r in qreads(0, QS[0]): a(r)
    for i in range(4):
        a(f"v_add_f32 {vr(T+i)}, {vr(T+i)}, {vr(T+4+i)}")
        a(f"v_add_f32 {vr(T+8+i)}, {vr(T+8+i)}, {vr(T+12+i)}")
    for i in range(4):
        a(f"v_add_f32 {vr(T+i)}, {vr(T+i)}, {vr(T+8+i)}")
    a(f"s_lshl_b32 {sr(sT1)}, {sr(sRB)}, 10")
    a.vmem(f"buffer_store_dwordx4 {vr(T,4)}, {vr(vT4)}, {sr(SWS,4)}, {sr(sT1)} offen sc1", "kvst")
    stamp("B partial stored")
    def f1_offset(with_rb):
        a(f"s_lshl_b32 {sr(sT0)}, {sr(sHP)}, 3")
        a(f"s_add_u32 {sr(sT0)}, {sr(sT0)}, {sr(sWAVE)}")
        a(f"s_lshl_b32 {sr(sT0)}, {sr(sT0)}, 4")
        if with_rb: a(f"s_add_u32 {sr(sT0)}, {sr(sT0)}, {sr(sRB)}")
        a(f"s_lshl_b32 {sr(sT0)}, {sr(sT0)}, 5")
        a(f"s_add_u32 {sr(sT0)}, {sr(sT0)}, {WS_F1}")
    for k in range(14):
        S = QS[k & 1]
        rd = qreads(k+1, QS[(k+1)&1]) if k < 13 else []
        a("s_waitcnt lgkmcnt(0)")
        for t in range(2):
            for tl in range(2):
                d = AQ + (t*2+tl)*4
                mfma(d, S+t*4, xf(k,tl), None if k == 0 else d)
                if rd: a(rd.pop(0))
        if k == 6:
            a.wait_vm("kvst")
            f1_offset(True)
            set_flag(sT0, T+4)
            stamp("B flag1 set")
    a(f"s_lshl_b32 {sr(sT0)}, {sr(sHP)}, 1")
    a(f"s_cmp_lg_u32 {sr(sT0)}, {sr(sWAVE)}")
    a("s_cbranch_scc1 L_B_nogate")
    for k in range(14):
        for tl in range(2):
            mfma(AG+tl*4, GF+k*4, xf(k,tl), None if k == 0 else AG+tl*4)
    a(f"s_lshl_b32 {sr(sT0)}, {sr(sRB)}, 7")
    a(f"s_lshl_b32 {sr(sT1)}, {sr(sMI)}, 5")
    a(f"s_add_u32 {sr(sT0)}, {sr(sT0)}, {sr(sT1)}")
    a(f"s_lshl_b32 {sr(sT0)}, {sr(sT0)}, 2")
    a(f"s_add_u32 {sr(sT0)}, {sr(sT0)}, {WS_GATE}")
    a(f"v_lshlrev_b32 {vr(T+4)}, 2, {vr(vI16)}")
    a("s_nop 2")
    for tl in range(2):
        a(f"v_mul_f32 {vr(AG+tl*4)}, {sr(sK1)}, {vr(AG+tl*4)}")
    for tl in range(2):
        a(f"v_exp_f32 {vr(AG+tl*4)}, -{vr(AG+tl*4)}")
    a("s_nop 0")
    for tl in range(2):
        a(f"v_add_f32 {vr(AG+tl*4)}, 1.0, {vr(AG+tl*4)}")
    for tl in range(2):
        a(f"v_rcp_f32 {vr(AG+tl*4)}, {vr(AG+tl*4)}")
    a(f"s_mov_b64 {sr(sEXEC,2)}, exec")
    a("s_mov_b64 exec, 0xffff")
    for tl in range(2):
        a.vmem_uncounted(f"buffer_store_dword {vr(AG+tl*4)}, {vr(T+4)}, {sr(SWS,4)}, {sr(sT0)} offen offset:{tl*64} sc1")
    a(f"s_mov_b64 exec, {sr(sEXEC,2)}")
    a.label("L_B_nogate")
    a("s_nop 7")
    phi([AQ+i for i in range(16)], T)
    PQ = [T+16, T+20]
    for tl in range(2):
        for t in range(2):
            d = AQ + (t*2+tl)*4
            cvtpk(PQ[tl]+t*2, d, d+1); cvtpk(PQ[tl]+t*2+1, d+2, d+3)
        a(f"v_cndmask_b32 {vr(PQ[tl]+2)}, 0, {vr(PQ[tl]+2)}, {sr(sMASK48,2)}")
        a(f"v_cndmask_b32 {vr(PQ[tl]+3)}, 0, {vr(PQ[tl]+3)}, {sr(sMASK48,2)}")
    stamp("B pass2 done")
    f1_offset(False)
    poll_flags(sT0, T)
    stamp("B flag1 seen")
    PL = XF
    for r in range(16):
        if r % 4 == 0: a(f"s_mov_b32 {sr(sT1)}, {r*1024}")
        a.vmem(f"buffer_load_dwordx4 {vr(PL+r*4,4)}, {vr(vT4)}, {sr(SWS,4)}, {sr(sT1)} offen offset:{(r%4)*1024} sc1", f"pl{r}")
    vOA = vT0
    o_store_offset(vOA, 1, None)
    a(f"s_lshl_b32 {sr(sT0)}, {sr(sNI)}, 11")
    a(f"s_add_u32 {sr(sT0)}, {sr(sT0)}, {B_KVF}")
    a(f"v_add_u32 {vr(vT3)}, {sr(sT0)}, {vr(vT2)}")
    a(f"s_and_b32 {sr(sT1)}, {sr(sMI)}, 1")
    a(f"s_lshl_b32 {sr(sT1)}, {sr(sT1)}, 10")
    a(f"s_lshr_b32 {sr(sT2)}, {sr(sMI)}, 1")
    a(f"s_lshl_b32 {sr(sT2)}, {sr(sT2)}, 3")
    a(f"s_add_u32 {sr(sT1)}, {sr(sT1)}, {sr(sT2)}")
    a(f"v_add_u32 {vr(vS)}, {sr(sT1)}, {vr(vT3)}")
    a(f"v_lshlrev_b32 {vr(vT5)}, 8, {vr(vG)}")
    a(f"v_add_u32 {vr(vT5)}, {sr(sT0)}, {vr(vT5)}")
    for lvl in (1, 2, 4, 8):
        for r in range(0, 16, 2*lvl):
            if lvl == 1: a.wait_vm(f"pl{r+1}")
            for i in range(4):
                a(f"v_add_f32 {vr(PL+r*4+i)}, {vr(PL+r*4+i)}, {vr(PL+(r+lvl)*4+i)}")
    cvtpk(T, PL, PL+1); cvtpk(T+1, PL+2, PL+3)
    a(f"ds_write_b64 {vr(vS)}, {vr(T,2)}")
    a("s_waitcnt lgkmcnt(0)")
    a("s_barrier")
    KF = [T, T+4]; ZF = T+8
    a(f"ds_read_b128 {vr(ZF,4)}, {vr(vT5)} offset:{1024 + 12*16}")
    a(f"ds_read_b128 {vr(KF[0],4)}, {vr(vT3)}")
    a(f"ds_read_b128 {vr(KF[1],4)}, {vr(vT3)} offset:1024")
    a("s_waitcnt lgkmcnt(0)")
    a("s_barrier")
    O = XF
    for tl in range(2):
        mfma(O+tl*12+8, ZF, PQ[tl]); mfma(O+tl*12, KF[0], PQ[tl]); mfma(O+tl*12+4, KF[1], PQ[tl])
    a("s_nop 4")
    for tl in range(2):
        a(f"v_add_f32 {vr(O+tl*12+8)}, {sr(sK2)}, {vr(O+tl*12+8)}")
    for tl in range(2):
        a(f"v_rcp_f32 {vr(O+tl*12+8)}, {vr(O+tl*12+8)}")
    a("s_nop 0")
    for tl in range(2):
        b = O+tl*12
        for i in range(8): a(f"v_mul_f32 {vr(b+i)}, {vr(b+i)}, {vr(b+8)}")
        R = O+24+tl*4
        for i in range(4): cvtpk(R+i, b+2*i, b+2*i+1)
        a(f"v_cndmask_b32 {vr(R+2)}, 0, {vr(R+2)}, {sr(sMASK48,2)}")
        a(f"v_cndmask_b32 {vr(R+3)}, 0, {vr(R+3)}, {sr(sMASK48,2)}")
        a(f"s_mov_b32 {sr(sT0)}, {tl*16384}")
        a.vmem(f"buffer_store_dwordx4 {vr(R,4)}, {vr(vOA)}, {sr(SWS,4)}, {sr(sT0)} offen sc1", "ost")
    stamp("B o stored")
    issue_wo(T)
    flag2_offset(1)
    set_flag(sT0, T)
    stamp("B flag2 set")

def phase2():
    a.label("L_phase2")
    a(f"s_cmp_eq_u32 {sr(sCB)}, 7")
    a("s_cbranch_scc1 L_idle")
    vWO = [10, 11, 12, 13]
    vOF, vGT, vCW, vCR, vOUT = 14, 15, 16, 17, 18
    ACC = 20
    OF = 36
    WF = 100
    T = 228
    sBR, sMT = sT2, sT3
    a(f"s_lshr_b32 {sr(sMI)}, {sr(sWAVE)}, 2")
    a(f"s_and_b32 {sr(sNI)}, {sr(sWAVE)}, 3")
    sBR, sMT = sMI, sNI
    a(f"v_mov_b32 {vr(T)}, 0")
    a(f"v_mov_b32 {vr(T+1)}, 0")
    a(f"v_lshlrev_b32 {vr(T+2)}, 3, {vr(vLANE)}")
    a(f"ds_write_b64 {vr(T+2)}, {vr(T,2)} offset:{P2_ZERO - 65536*1}") if False else None
    a(f"v_add_u32 {vr(T+2)}, {P2_ZERO}, {vr(T+2)}")
    a(f"ds_write_b64 {vr(T+2)}, {vr(T,2)}")
    a(f"v_lshrrev_b32 {vr(T)}, 2, {vr(vI16)}")
    a(f"v_lshl_add_u32 {vr(T+1)}, {vr(vG)}, 2, {vr(T)}")
    a(f"v_lshlrev_b32 {vr(T+1)}, 7, {vr(T+1)}")
    a(f"v_and_b32 {vr(T+3)}, 3, {vr(vI16)}")
    a(f"v_lshl_add_u32 {vr(T+1)}, {vr(T+3)}, 3, {vr(T+1)}")
    a(f"v_lshrrev_b32 {vr(T)}, 1, {vr(T)}")
    a(f"v_and_b32 {vr(T+3)}, 1, {vr(vG)}")
    a(f"v_lshl_or_b32 {vr(T)}, {vr(T+3)}, 1, {vr(T)}")
    a(f"v_lshl_add_u32 {vr(T+1)}, {vr(T)}, 5, {vr(T+1)}")
    a(f"s_mul_i32 {sr(sT0)}, {sr(sBR)}, 57344")
    a(f"v_add_u32 {vr(vWO[0])}, {sr(sT0)}, {vr(T+1)}")
    for t in range(1, 4):
        a(f"v_xor_b32 {vr(vWO[t])}, {t*32}, {vr(vWO[0])}")
    a(f"s_lshl_b32 {sr(sT0)}, {sr(sRB)}, 1")
    a(f"s_add_u32 {sr(sT0)}, {sr(sT0)}, {sr(sBR)}")
    a(f"s_lshl_b32 {sr(sT1)}, {sr(sT0)}, 3")
    a(f"s_lshl_b32 {sr(sT2)}, {sr(sHALF)}, 2")
    a(f"s_add_u32 {sr(sT2)}, {sr(sT2)}, {sr(sMT)}")
    a(f"s_add_u32 {sr(sT1)}, {sr(sT1)}, {sr(sT2)}")
    a(f"s_lshl_b32 {sr(sT1)}, {sr(sT1)}, 14")
    a(f"s_add_u32 {sr(sT1)}, {sr(sT1)}, {WS_O}")
    a(f"v_lshlrev_b32 {vr(vOF)}, 4, {vr(vLANE)}")
    a(f"v_add_u32 {vr(vOF)}, {sr(sT1)}, {vr(vOF)}")
    a(f"s_lshl_b32 {sr(sT0)}, {sr(sT0)}, 2")
    a(f"s_lshr_b32 {sr(sT1)}, {sr(sT2)}, 1")
    a(f"s_add_u32 {sr(sT0)}, {sr(sT0)}, {sr(sT1)}")
    a(f"s_lshl_b32 {sr(sT0)}, {sr(sT0)}, 9")
    a(f"s_add_u32 {sr(sK2)}, {sr(sT0)}, {WS_F2}")
    a(f"s_lshl_b32 {sr(sT0)}, {sr(sRB)}, 3")
    a(f"s_add_u32 {sr(sT0)}, {sr(sT0)}, {sr(sT2)}")
    a(f"s_lshl_b32 {sr(sT0)}, {sr(sT0)}, 6")
    a(f"s_add_u32 {sr(sK1)}, {sr(sT0)}, {WS_GATE}")
    a(f"v_lshlrev_b32 {vr(vGT)}, 2, {vr(vI16)}")
    a(f"s_mul_i32 {sr(sT0)}, {sr(sBR)}, {P2_CBSZ}")
    a(f"s_mul_i32 {sr(sT1)}, {sr(sMT)}, {16*272}")
    a(f"s_add_u32 {sr(sT0)}, {sr(sT0)}, {sr(sT1)}")
    a(f"s_add_u32 {sr(sT0)}, {sr(sT0)}, {P2_CB}")
    a(f"v_mul_u32_u24 {vr(vCW)}, 272, {vr(vI16)}")
    a(f"v_lshl_add_u32 {vr(vCW)}, {vr(vG)}, 4, {vr(vCW)}")
    a(f"v_add_u32 {vr(vCW)}, {sr(sT0)}, {vr(vCW)}")
    a(f"v_lshrrev_b32 {vr(T)}, 3, {vr(vLANE)}")
    a(f"s_lshl_b32 {sr(sT0)}, {sr(sWAVE)}, 3")
    a(f"v_add_u32 {vr(T)}, {sr(sT0)}, {vr(T)}")
    a(f"v_and_b32 {vr(T+1)}, 7, {vr(vLANE)}")
    a(f"v_mul_u32_u24 {vr(vCR)}, 272, {vr(T)}")
    a(f"v_lshl_add_u32 {vr(vCR)}, {vr(T+1)}, 5, {vr(vCR)}")
    a(f"v_add_u32 {vr(vCR)}, {P2_CB}, {vr(vCR)}")
    a(f"v_lshlrev_b32 {vr(T+4)}, 2, {vr(T)}")
    a(f"v_add_u32 {vr(T+4)}, {P2_G}, {vr(T+4)}")
    a(f"s_lshl_b32 {sr(sT0)}, {sr(sRB)}, 1")
    a(f"s_add_u32 {sr(sT0)}, {sr(sT0)}, {sr(sHALF)}")
    a(f"s_mul_i32 {sr(sT0)}, {sr(sT0)}, {64*896}")
    a(f"s_lshl_b32 {sr(sT1)}, {sr(sCB)}, 7")
    a(f"s_add_u32 {sr(sT0)}, {sr(sT0)}, {sr(sT1)}")
    a(f"v_mul_u32_u24 {vr(vOUT)}, 896, {vr(T)}")
    a(f"v_lshl_add_u32 {vr(vOUT)}, {vr(T+1)}, 4, {vr(vOUT)}")
    a(f"v_add_u32 {vr(vOUT)}, {sr(sT0)}, {vr(vOUT)}")
    a(f"s_lshl_b32 {sr(sT0)}, {sr(sMT)}, 6")
    a(f"s_add_u32 {sr(sT0)}, {sr(sT0)}, {P2_G}")
    a(f"v_add_u32 {vr(T+5)}, {sr(sT0)}, {vr(vGT)}")
    a.wait_vm_all(" lgkmcnt(0)")
    a("s_barrier")
    stamp("P2 wo landed")
    def wreads(h, slot):
        out = []
        for t in range(4):
            base = vWO[t ^ (2 if h & 1 else 0)]
            for hf in range(2):
                out.append(f"ds_read_b64_tr_b16 {vr(WF+slot*16+t*4+hf*2,2)}, {vr(base)} offset:{h*3584 + hf*2048}")
        return out
    for h in range(8):
        for r in wreads(h, h): a(r)
    poll_flags(sK2, T)
    stamp("P2 flags seen")
    for h in range(16):
        if h % 4 == 0: a(f"s_mov_b32 {sr(sT1)}, {h*1024}")
        a.vmem(f"buffer_load_dwordx4 {vr(OF+h*4,4)}, {vr(vOF)}, {sr(SWS,4)}, {sr(sT1)} offen offset:{(h%4)*1024} sc1", f"o{h}")
    a.vmem(f"buffer_load_dword {vr(T+6)}, {vr(vGT)}, {sr(SWS,4)}, {sr(sK1)} offen sc1", "g")
    a("s_waitcnt lgkmcnt(0)")
    for h in range(16):
        a.wait_vm(f"o{h}")
        if h >= 8:
            n_later = min(15, (15 - h) * 8) if h < 15 else 0
            a(f"s_waitcnt lgkmcnt({min(15, max(0, (15-h)*8))})") if False else None
        rd = wreads(h + 8, h) if h < 8 else []
        if h == 8: a("s_waitcnt lgkmcnt(0)")
        for t in range(4):
            mfma(ACC+t*4, WF+(h%8)*16+t*4, OF+h*4, None if h == 0 else ACC+t*4)
            for _ in range(2):
                if rd: a(rd.pop(0))
    a.wait_vm("g")
    a(f"s_cmp_eq_u32 {sr(sBR)}, 0")
    a("s_cbranch_scc1 L_p2_nog")
    a(f"ds_write_b32 {vr(T+5)}, {vr(T+6)}")
    a.label("L_p2_nog")
    a("s_nop 4")
    for t in range(4):
        a(f"ds_write_b128 {vr(vCW)}, {vr(ACC+t*4,4)} offset:{t*64}")
    a("s_waitcnt lgkmcnt(0)")
    a("s_barrier")
    A_, B_ = OF, OF+8
    a(f"ds_read_b32 {vr(T)}, {vr(T+4)}")
    a(f"ds_read_b128 {vr(A_,4)}, {vr(vCR)}")
    a(f"ds_read_b128 {vr(A_+4,4)}, {vr(vCR)} offset:16")
    a(f"ds_read_b128 {vr(B_,4)}, {vr(vCR)} offset:{P2_CBSZ}")
    a(f"ds_read_b128 {vr(B_+4,4)}, {vr(vCR)} offset:{P2_CBSZ+16}")
    a("s_waitcnt lgkmcnt(0)")
    for i in range(8): a(f"v_sub_f32 {vr(A_+i)}, {vr(A_+i)}, {vr(B_+i)}")
    for i in range(8): a(f"v_fma_f32 {vr(A_+i)}, {vr(A_+i)}, {vr(T)}, {vr(B_+i)}")
    for i in range(4): cvtpk(OF+16+i, A_+2*i, A_+2*i+1)
    a(f"buffer_store_dwordx4 {vr(OF+16,4)}, {vr(vOUT)}, {sr(SOUT,4)}, 0 offen")
    stamp("P2 done")
    a("s_endpgm")
    a.label("L_idle")
    a(f"s_lshl_b32 {sr(sT0)}, {sr(sRB)}, 3")
    a(f"s_add_u32 {sr(sT0)}, {sr(sT0)}, {sr(sHP)}")
    a(f"s_cmp_lg_u32 {sr(sT0)}, 127")
    a("s_cbranch_scc1 L_end")
    a(f"v_lshlrev_b32 v10, 5, v0")
    a(f"s_mov_b32 {sr(sCNT)}, 0")
    a.label("L_jan")
    for k in range(4):
        a(f"s_mov_b32 {sr(sT0)}, {WS_F2 + k*16384}")
        a(f"buffer_load_dwordx2 {vr(12+2*k,2)}, v10, {sr(SWS,4)}, {sr(sT0)} offen sc1")
    a(f"s_add_u32 {sr(sCNT)}, {sr(sCNT)}, 1")
    a("s_waitcnt vmcnt(0)")
    a(f"v_cmp_ne_u64 {sr(sT0,2)}, {sr(sTAG,2)}, v[12:13]")
    a(f"v_cmp_ne_u64 {sr(sT2,2)}, {sr(sTAG,2)}, v[14:15]")
    a(f"s_or_b64 {sr(sT0,2)}, {sr(sT0,2)}, {sr(sT2,2)}")
    a(f"v_cmp_ne_u64 {sr(sT2,2)}, {sr(sTAG,2)}, v[16:17]")
    a(f"s_or_b64 {sr(sT0,2)}, {sr(sT0,2)}, {sr(sT2,2)}")
    a(f"v_cmp_ne_u64 {sr(sT2,2)}, {sr(sTAG,2)}, v[18:19]")
    a(f"s_or_b64 {sr(sT0,2)}, {sr(sT0,2)}, {sr(sT2,2)}")
    a("s_cbranch_scc0 L_jand")
    a(f"s_cmp_gt_u32 {sr(sCNT)}, 0x400000")
    a("s_cbranch_scc1 L_jand")
    a("s_sleep 4")
    a("s_branch L_jan")
    a.label("L_jand")
    a("s_barrier")
    a(f"s_cmp_lg_u32 {sr(sWAVE)}, 0")
    a("s_cbranch_scc1 L_end")
    a(f"s_mov_b32 {sr(sT0)}, {WS_EPOCH}")
    set_flag(sT0, 10)
    a.label("L_end")
    a("s_endpgm")

prologue()
a(f"s_cmp_eq_u32 {sr(sTYPE)}, 1")
a("s_cbranch_scc1 L_typeA")
vm0 = list(a.vm)
phase1_B()
a("s_branch L_phase2")
a.vm = list(vm0)
phase1_A()
a.vm = []
phase2()

hdr = f"""; fused gated-mix kernel: generated by gen/gen.py
; @launch grid=(256,1,1) block=(512,1,1) lds={LDS_BYTES}
.amdgcn_target "amdgcn-amd-amdhsa--gfx950"
.text
.globl {NAME}_kernel
.p2align 8
.type {NAME}_kernel,@function
"""
ftr = f"""
.section .rodata,"a"
.p2align 6
.amdhsa_kernel {NAME}_kernel
  .amdhsa_next_free_vgpr 256
  .amdhsa_next_free_sgpr 102
  .amdhsa_accum_offset 256
  .amdhsa_group_segment_fixed_size 0
  .amdhsa_kernarg_size 80
  .amdhsa_user_sgpr_count 2
  .amdhsa_user_sgpr_kernarg_segment_ptr 1
  .amdhsa_system_sgpr_workgroup_id_x 1
.end_amdhsa_kernel
"""
out = [x for x in sys.argv[1:] if not x.startswith("--")]
path = out[0] if out else f"cdna_kernels/{NAME}.s"
open(path, "w").write(hdr + "\n".join(a.lines) + ftr)
print("wrote", path, len(a.lines), "lines")
```

```python
import sys, struct

NAME = "gated_mix__sliding_local_dilated__linear_attn_block__prompt"
def flag(n): return ("--" + n) in sys.argv
def opt(n, d):
    for x in sys.argv:
        if x.startswith(f"--{n}="): return int(x.split("=")[1])
    return d
STAMPS, DBGST, FINE, NOCOMP = flag("stamps"), flag("dbgstamps"), flag("fine"), flag("nocompute")
NOPF = flag("nopf")
ALLD = flag("alldepth")
C1EARLY = opt("c1early", 2)
A_INIT = opt("ainit", 2)
B_LATE = opt("blate", 0)
PF_AHEAD = opt("pfahead", 3)

WS_EPOCH = 0
WS_F1 = 0x1000
WS_F2 = 0x10000
WS_KV = 0x40000
WS_GATE = 0x180000
WS_O = 0x200000
WS_STAMP = 0x600000
WS_SIZE = 0x800000

A_X = [0, 16384, 32768]
A_W = [49152, 73728, 98304]
A_HALO = 122880
A_EXCH = 137216
B_X = [0, 16384, 32768, 49152]
B_W = [65536, 81920, 98304, 114688]
B_WQ = [131072, 139264, 147456, 155648, 114688, 122880, 49152]
B_GW = 57344
B_KVF = 59392
B_KVS = 0
P2_WO = 0
P2_ZERO = 114688
P2_CB = 115456
P2_CBSZ = 64 * 272
P2_G = 115200
LDS_BYTES = 163840
assert P2_CB + 2 * P2_CBSZ <= LDS_BYTES

LOG2E = 1.4426950408889634
def f2u(x): return struct.unpack("<I", struct.pack("<f", x))[0]

class Asm:
    def __init__(self):
        self.lines = []; self.vm = []; self.lbl = 0; self.ds = []
    def __call__(self, s): self.lines.append("    " + s)
    def c(self, s): self.lines.append("    ; " + s)
    def label(self, name): self.lines.append(name + ":")
    def newlabel(self, p="L"):
        self.lbl += 1; return f"{p}_{self.lbl}"
    def vmem(self, s, tag): self(s); self.vm.append(tag)
    def vmem_unc(self, s): self(s)
    def wait_vm(self, tag, extra=""):
        idx = max(i for i, t in enumerate(self.vm) if t == tag)
        n = len(self.vm) - 1 - idx
        assert n <= 63
        self(f"s_waitcnt vmcnt({n}){extra}")
        self.vm = self.vm[idx + 1:]
    def dsr(self, text, regs):
        self(text); self.ds.append(set(regs))
    def need(self, regs):
        regs = set(regs)
        idx = max((i for i, r in enumerate(self.ds) if r & regs), default=-1)
        if idx < 0: return
        n = len(self.ds) - 1 - idx
        self(f"s_waitcnt lgkmcnt({min(n, 15)})")
        self.ds = self.ds[idx + 1:] if n <= 15 else self.ds[-15:]
    def ds_all(self): self.ds = []
    def wait_vm_all(self, extra=""):
        self(f"s_waitcnt vmcnt(0){extra}"); self.vm = []

def vr(b, n=1): return f"v{b}" if n == 1 else f"v[{b}:{b+n-1}]"
def sr(b, n=1): return f"s{b}" if n == 1 else f"s[{b}:{b+n-1}]"
a = Asm()

SPF = 4
SX, SW, SWS, SWOA, SWOB, SOUT, SG = 8, 12, 16, 20, 24, 28, 32
sWAVE, sMI, sNI, sRB, sHP, sTYPE = 36, 37, 38, 39, 40, 41
sTAG = 42
sT0, sT1, sT2, sT3 = 44, 45, 46, 47
sW1K, sW2K, sW3K = 48, 49, 50
sSOX, sSOW = 51, 52
sPFS = 53
sMASK48, sODD, sONE, sEXEC = 54, 56, 58, 60
sCB, sHALF, sCNT, sJ = 62, 63, 64, 65
sPC = 66
sL2E, sEPS = 68, 70
sST = 72
sPTR = 76
sOST, sF2W, sF2R, sOLD = 76, 77, 78, 79
sGT, sKVO, sF1W, sF1R, sK0, sBR, sGST = 80, 81, 82, 83, 84, 85, 86
sPFO = 87
sROT = 3
ROT = not flag("norot")

vLANE, vI16, vG = 1, 2, 3
vT0, vT1, vT2, vT3, vT4, vT5 = 4, 5, 6, 7, 8, 9
vXG0, vXG1, vWG, vXR0, vXR1 = 10, 11, 12, 13, 14
vDUM = 23
vL16, vPOLL, vWOD, vPF = 236, 237, 238, 239
vWO = [240, 241, 242, 243]
vGT, vCW, vCR, vGR, vGW, vOUT = 244, 245, 246, 247, 248, 249
vP0 = 250

stamp_idx = [0]
def stamp(name, src=None):
    if DBGST:
        i = stamp_idx[0]; stamp_idx[0] += 1
        L = a.newlabel("L_st")
        a.c(f"stamp {i}: {name}")
        a(f"s_and_b32 s74, s2, 127")
        a(f"s_or_b32 s74, s74, {sr(sWAVE)}")
        if name.startswith("P2"): a(f"s_or_b32 s74, s74, s2")
        a(f"s_cmp_lg_u32 s74, 0")
        a(f"s_cbranch_scc1 {L}")
        a(f"s_memrealtime {sr(sST,2)}")
        a("s_waitcnt lgkmcnt(0)")
        a(f"s_sub_u32 {sr(sST)}, {sr(sST)}, s98")
        a(f"v_mov_b32 v22, {sr(sST)}")
        a(f"v_mov_b32 v21, {i*4}")
        a(f"s_mov_b64 {sr(sST,2)}, exec")
        a("s_mov_b64 exec, 1")
        a.vmem_unc(f"global_store_dword v21, v22, s[96:97]")
        a(f"s_mov_b64 exec, {sr(sST,2)}")
        a.label(L)
        return
    if not STAMPS: return
    if name.endswith("setup done"):
        stamp(name[0] + " entry", 98); stamp(name[0] + " kernarg", 100); stamp(name[0] + " c0 issued", 96); stamp(name[0] + " init issued", 88)
    i = stamp_idx[0]; stamp_idx[0] += 1
    a.c(f"stamp {i}: {name}")
    if src is None:
        a(f"{'s_memtime' if flag('cyc') else 's_memrealtime'} {sr(sST,2)}")
        a("s_waitcnt lgkmcnt(0)")
    else:
        a(f"s_mov_b32 {sr(sST)}, s{src}")
    a(f"v_mov_b32 v22, {sr(sST)}")
    a(f"s_lshl_b32 s74, s2, 3")
    a(f"s_add_u32 s74, s74, {sr(sWAVE)}")
    a(f"s_lshl_b32 s74, s74, 8")
    a(f"s_add_u32 s74, s74, {WS_STAMP + i*4}")
    a(f"s_mov_b64 {sr(sST,2)}, exec")
    a("s_mov_b64 exec, 1")
    a.vmem_unc(f"buffer_store_dword v22, off, {sr(SWS,4)}, s74")
    a(f"s_mov_b64 exec, {sr(sST,2)}")

def mfma(d, A, B, C=None):
    c = vr(C, 4) if C is not None else "0"
    a(f"v_mfma_f32_16x16x32_bf16 {vr(d,4)}, {vr(A,4)}, {vr(B,4)}, {c}")
def cvtpk(d, x, y): a(f"v_cvt_pk_bf16_f32 {vr(d)}, {vr(x)}, {vr(y)}")

def prologue():
    a.label(f"{NAME}_kernel")
    if DBGST or STAMPS: a("s_memrealtime s[98:99]")
    a("s_cmp_ge_u32 s2, 256")
    a("s_cbranch_scc1 L_end")
    a(f"s_load_dwordx16 {sr(sPTR,16)}, s[0:1], 0")
    a(f"s_load_dwordx4 {sr(sPTR+16,4)}, s[0:1], 64")
    a(f"s_getpc_b64 {sr(sPC,2)}")
    a.label("L_pc")
    a(f"v_lshrrev_b32 {vr(vT0)}, 6, v0")
    a(f"v_and_b32 {vr(vLANE)}, 63, v0")
    a(f"v_readfirstlane_b32 {sr(sWAVE)}, {vr(vT0)}")
    a(f"v_and_b32 {vr(vI16)}, 15, v0")
    a(f"v_bfe_u32 {vr(vG)}, v0, 4, 2")
    a(f"s_and_b32 {sr(sT0)}, s2, 7")
    a(f"s_lshr_b32 {sr(sJ)}, s2, 3")
    a(f"s_lshr_b32 {sr(sT2)}, {sr(sT0)}, 1")
    a(f"s_lshl_b32 {sr(sT2)}, {sr(sT2)}, 2")
    a(f"s_and_b32 {sr(sT3)}, {sr(sJ)}, 3")
    a(f"s_add_u32 {sr(sRB)}, {sr(sT2)}, {sr(sT3)}")
    a(f"s_and_b32 {sr(sHALF)}, {sr(sT0)}, 1")
    a(f"s_lshl_b32 {sr(sT2)}, {sr(sHALF)}, 2")
    a(f"s_bfe_u32 {sr(sT3)}, {sr(sJ)}, 0x20002")
    a(f"s_add_u32 {sr(sHP)}, {sr(sT2)}, {sr(sT3)}")
    a(f"s_lshr_b32 {sr(sTYPE)}, {sr(sJ)}, 4")
    a(f"s_lshl_b32 {sr(sT2)}, {sr(sTYPE)}, 2")
    a(f"s_add_u32 {sr(sCB)}, {sr(sT2)}, {sr(sT3)}")
    a(f"s_and_b32 {sr(sT0)}, {sr(sJ)}, 3")
    a(f"s_lshl_b32 {sr(sT0)}, {sr(sT0)}, 1")
    a(f"s_add_u32 {sr(sROT)}, {sr(sT0)}, {sr(sCB)}")
    a(f"s_cmp_ge_u32 {sr(sROT)}, 7")
    a(f"s_cselect_b32 {sr(sT0)}, 7, 0")
    a(f"s_sub_u32 {sr(sROT)}, {sr(sROT)}, {sr(sT0)}")
    if not ROT: a(f"s_mov_b32 {sr(sROT)}, 0")
    a(f"s_lshr_b32 {sr(sMI)}, {sr(sWAVE)}, 1")
    a(f"s_and_b32 {sr(sNI)}, {sr(sWAVE)}, 1")
    a(f"s_lshl_b32 {sr(sW1K)}, {sr(sWAVE)}, 10")
    a(f"s_lshl_b32 {sr(sW2K)}, {sr(sWAVE)}, 11")
    a(f"s_add_u32 {sr(sW3K)}, {sr(sW1K)}, {sr(sW2K)}")
    a(f"s_and_b32 {sr(sT2)}, {sr(sJ)}, 7")
    a(f"s_lshl_b32 {sr(sT2)}, {sr(sT2)}, 3")
    a(f"s_add_u32 {sr(sT2)}, {sr(sT2)}, {sr(sWAVE)}")
    a(f"s_cmp_lg_u32 {sr(sT2)}, 7")
    a("s_cbranch_scc1 L_nopf")
    a(f"v_lshlrev_b32 {vr(vT1)}, 7, {vr(vLANE)}")
    a(f"v_add_u32 {vr(vT2)}, 8192, {vr(vT1)}")
    a(f"v_add_u32 {vr(vT3)}, 16384, {vr(vT1)}")
    a(f"v_min_u32 {vr(vT2)}, L_end-L_pc, {vr(vT2)}")
    a(f"v_min_u32 {vr(vT3)}, L_end-L_pc, {vr(vT3)}")
    a.vmem_unc(f"global_load_dword {vr(vDUM)}, {vr(vT1)}, {sr(sPC,2)}")
    a.vmem_unc(f"global_load_dword {vr(vDUM)}, {vr(vT2)}, {sr(sPC,2)}")
    a.vmem_unc(f"global_load_dword {vr(vDUM)}, {vr(vT3)}, {sr(sPC,2)}")
    a.label("L_nopf")
    a(f"v_lshrrev_b32 {vr(vT0)}, 3, {vr(vLANE)}")
    a(f"v_and_b32 {vr(vT1)}, 7, {vr(vLANE)}")
    a(f"v_xor_b32 {vr(vT2)}, {vr(vT1)}, {vr(vG)}")
    a(f"s_lshl_b32 {sr(sT0)}, {sr(sRB)}, 7")
    a(f"s_lshl_b32 {sr(sT1)}, {sr(sWAVE)}, 4")
    a(f"s_add_u32 {sr(sT0)}, {sr(sT0)}, {sr(sT1)}")
    a(f"s_mul_i32 {sr(sT0)}, {sr(sT0)}, 896")
    a(f"v_mul_u32_u24 {vr(vT3)}, 896, {vr(vT0)}")
    a(f"v_lshl_add_u32 {vr(vT3)}, {vr(vT2)}, 4, {vr(vT3)}")
    a(f"v_add_u32 {vr(vXG0)}, {sr(sT0)}, {vr(vT3)}")
    a(f"v_xor_b32 {vr(vT4)}, 64, {vr(vT3)}")
    a(f"v_add_u32 {vr(vT4)}, {8*896-1024}, {vr(vT4)}")
    a(f"v_add_u32 {vr(vXG1)}, {sr(sT0)}, {vr(vT4)}")
    a(f"v_and_b32 {vr(vT2)}, 1, {vr(vG)}")
    a(f"v_lshlrev_b32 {vr(vT2)}, 1, {vr(vT2)}")
    a(f"s_lshl_b32 {sr(sT0)}, {sr(sNI)}, 2")
    a(f"v_or_b32 {vr(vT2)}, {sr(sT0)}, {vr(vT2)}")
    a(f"v_xor_b32 {vr(vT2)}, {vr(vT1)}, {vr(vT2)}")
    a(f"v_min_u32 {vr(vT2)}, 6, {vr(vT2)}")
    a(f"s_mul_i32 {sr(sT0)}, {sr(sWAVE)}, {8*2688}")
    a(f"s_mul_i32 {sr(sT1)}, {sr(sHP)}, 112")
    a(f"s_add_u32 {sr(sT0)}, {sr(sT0)}, {sr(sT1)}")
    a(f"v_mul_u32_u24 {vr(vWG)}, 2688, {vr(vT0)}")
    a(f"v_lshl_add_u32 {vr(vWG)}, {vr(vT2)}, 4, {vr(vWG)}")
    a(f"v_add_u32 {vr(vWG)}, {sr(sT0)}, {vr(vWG)}")
    a("s_waitcnt lgkmcnt(0)")
    if STAMPS: a("s_memrealtime s[100:101]")
    P = sPTR
    def srd(d, p, n):
        a(f"s_mov_b32 {sr(d)}, {sr(p)}")
        a(f"s_mov_b32 {sr(d+1)}, {sr(p+1)}")
        a(f"s_mov_b32 {sr(d+2)}, {n}")
        a(f"s_mov_b32 {sr(d+3)}, 0x00020000")
    srd(SX, P+0, 1835008)
    a(f"s_cmp_eq_u32 {sr(sTYPE)}, 1")
    a(f"s_cselect_b32 {sr(SW)}, {sr(P+2)}, {sr(P+8)}")
    a(f"s_cselect_b32 {sr(SW+1)}, {sr(P+3)}, {sr(P+9)}")
    a(f"s_mov_b32 {sr(SW+2)}, 1204224")
    a(f"s_mov_b32 {sr(SW+3)}, 0x00020000")
    a("s_cbranch_scc1 L_typeA")

def late_srds():
    P = sPTR
    def srd(d, p, n):
        a(f"s_mov_b32 {sr(d)}, {sr(p)}")
        a(f"s_mov_b32 {sr(d+1)}, {sr(p+1)}")
        a(f"s_mov_b32 {sr(d+2)}, {n}")
        a(f"s_mov_b32 {sr(d+3)}, 0x00020000")
    srd(SWS, P+18, WS_SIZE)
    a(f"s_load_dwordx2 {sr(sTAG,2)}, {sr(P+18,2)}, {WS_EPOCH}")
    srd(SWOA, P+4, 401408)
    srd(SWOB, P+10, 401408)
    srd(SOUT, P+14, 1835008)
    srd(SG, P+12, 896)
    if DBGST:
        a(f"s_mov_b32 s96, {sr(P+16)}"); a(f"s_mov_b32 s97, {sr(P+17)}")
    a(f"s_cmp_lt_u32 {sr(sJ)}, 20")
    a(f"s_cselect_b32 {sr(SPF)}, {sr(P+2)}, {sr(P+8)}")
    a(f"s_cselect_b32 {sr(SPF+1)}, {sr(P+3)}, {sr(P+9)}")
    a(f"s_cselect_b32 {sr(sT2)}, 8, 20")
    a(f"s_cmp_lt_u32 {sr(sJ)}, 8")
    a(f"s_cselect_b32 {sr(SPF)}, {sr(P+0)}, {sr(SPF)}")
    a(f"s_cselect_b32 {sr(SPF+1)}, {sr(P+1)}, {sr(SPF+1)}")
    a(f"s_cselect_b32 {sr(SPF+2)}, {sr(SX+2)}, {sr(SW+2)}")
    a(f"s_mov_b32 {sr(SPF+3)}, 0x00020000")
    a(f"s_mov_b32 {sr(sPFS)}, 172032")
    a(f"s_cselect_b32 {sr(sPFS)}, 128, {sr(sPFS)}")
    a(f"s_cselect_b32 {sr(sT2)}, 0, {sr(sT2)}")
    a(f"s_sub_u32 {sr(sT2)}, {sr(sJ)}, {sr(sT2)}")
    a(f"s_lshl_b32 {sr(sT2)}, {sr(sT2)}, 3")
    a(f"s_add_u32 {sr(sT2)}, {sr(sT2)}, {sr(sWAVE)}")
    a(f"s_lshl_b32 {sr(sT2)}, {sr(sT2)}, 3")
    a(f"v_add_u32 {vr(vT2)}, {sr(sT2)}, {vr(vT0)}")
    a(f"s_lshr_b32 {sr(sT3)}, {sr(sRB)}, 2")
    a(f"s_lshl_b32 {sr(sT3)}, {sr(sT3)}, 9")
    a(f"v_add_u32 {vr(vT5)}, {sr(sT3)}, {vr(vT2)}")
    a(f"v_mul_u32_u24 {vr(vT5)}, 896, {vr(vT5)}")
    a(f"v_mul_u32_u24 {vr(vPF)}, 43691, {vr(vT2)}")
    a(f"v_lshrrev_b32 {vr(vPF)}, 19, {vr(vPF)}")
    a(f"v_mul_u32_u24 {vr(vDUM-1)}, 12, {vr(vPF)}")
    a(f"v_sub_u32 {vr(vT2)}, {vr(vT2)}, {vr(vDUM-1)}")
    a(f"v_mul_u32_u24 {vr(vPF)}, 2688, {vr(vPF)}")
    a(f"v_lshrrev_b32 {vr(vDUM-1)}, 2, {vr(vT2)}")
    a(f"v_mul_u32_u24 {vr(vDUM-1)}, 896, {vr(vDUM-1)}")
    a(f"v_add_u32 {vr(vPF)}, {vr(vPF)}, {vr(vDUM-1)}")
    a(f"v_and_b32 {vr(vT2)}, 3, {vr(vT2)}")
    a(f"v_lshl_add_u32 {vr(vPF)}, {vr(vT2)}, 7, {vr(vPF)}")
    a(f"s_mul_i32 {sr(sT3)}, {sr(sHALF)}, 384")
    a(f"v_add_u32 {vr(vPF)}, {sr(sT3)}, {vr(vPF)}")
    a(f"s_cmp_lt_u32 {sr(sJ)}, 8")
    a(f"s_cselect_b32 {sr(sT2)}, -1, 0")
    a(f"s_cselect_b32 {sr(sT3)}, -1, 0")
    a(f"v_cndmask_b32 {vr(vPF)}, {vr(vPF)}, {vr(vT5)}, {sr(sT2,2)}")

def prefetch_chunk(c):
    if not flag("pfchunk") or c > 6: return
    a(f"s_mul_i32 {sr(sPFO)}, {sr(sPFS)}, {c}")
    a.vmem(f"buffer_load_dword {vr(vDUM)}, {vr(vPF)}, {sr(SPF,4)}, {sr(sPFO)} offen", f"pf{c}")

def prefetch_wo():
    if NOPF: return
    a(f"s_and_b32 {sr(sT0)}, {sr(sJ)}, 15")
    a(f"s_lshl_b32 {sr(sT0)}, {sr(sT0)}, 3")
    a(f"s_add_u32 {sr(sT0)}, {sr(sT0)}, {sr(sWAVE)}")
    a(f"s_lshl_b32 {sr(sT0)}, {sr(sT0)}, 12")
    a(f"v_lshrrev_b32 {vr(vDUM-1)}, 1, {vr(vLANE)}")
    a(f"v_lshlrev_b32 {vr(vDUM-1)}, 7, {vr(vDUM-1)}")
    L1 = a.newlabel("L_pw"); L2 = a.newlabel("L_pw")
    a(f"s_cmp_eq_u32 {sr(sTYPE)}, 1")
    a(f"s_cbranch_scc1 {L1}")
    a(f"buffer_load_dword {vr(vDUM)}, {vr(vDUM-1)}, {sr(SWOA,4)}, {sr(sT0)} offen")
    a(f"s_branch {L2}")
    a.label(L1)
    a(f"buffer_load_dword {vr(vDUM)}, {vr(vDUM-1)}, {sr(SWOB,4)}, {sr(sT0)} offen")
    a.label(L2)
    a.vm.append("pfwo")

def true_chunk(dst, c):
    a(f"s_add_u32 {sr(dst)}, {sr(sROT)}, {c}")
    a(f"s_cmp_ge_u32 {sr(dst)}, 7")
    a(f"s_cselect_b32 s75, 7, 0")
    a(f"s_sub_u32 {sr(dst)}, {sr(dst)}, s75")

def dma(voff, srdreg, soff, m0s, m0imm, tag, offset=0, filler="s_nop 0"):
    a(f"s_add_u32 m0, {sr(m0s)}, {m0imm}")
    a(filler)
    so = sr(soff) if soff is not None else "0"
    off = f" offset:{offset}" if offset else ""
    a.vmem(f"buffer_load_dwordx4 {vr(voff)}, {sr(srdreg,4)}, {so} offen{off} lds", tag)

def x_read_addrs():
    a(f"v_lshrrev_b32 {vr(vT5)}, 1, {vr(vI16)}")
    a(f"v_xor_b32 {vr(vT5)}, {vr(vG)}, {vr(vT5)}")
    a(f"v_lshlrev_b32 {vr(vT5)}, 4, {vr(vT5)}")
    a(f"v_lshl_add_u32 {vr(vT5)}, {vr(vI16)}, 7, {vr(vT5)}")
    a(f"s_lshl_b32 {sr(sT1)}, {sr(sMI)}, 12")
    a(f"v_add_u32 {vr(vXR0)}, {sr(sT1)}, {vr(vT5)}")
    a(f"v_xor_b32 {vr(vXR1)}, 64, {vr(vXR0)}")

def w_lane_common(dst, tmp):
    pass

def w_read_lane(dst, t, nseg, tmp0, tmp1):
    a(f"v_and_b32 {vr(tmp0)}, 3, {vr(vI16)}")
    a(f"v_lshlrev_b32 {vr(tmp0)}, 3, {vr(tmp0)}")
    a(f"s_mul_i32 {sr(sT0)}, {sr(sNI)}, 56")
    if t is not None:
        if t: a(f"s_add_u32 {sr(sT0)}, {sr(sT0)}, {t*32}")
    else:
        a(f"s_and_b32 {sr(sT1)}, {sr(sMI)}, 1")
        a(f"s_lshl_b32 {sr(sT1)}, {sr(sT1)}, 5")
        a(f"s_add_u32 {sr(sT0)}, {sr(sT0)}, {sr(sT1)}")
    a(f"v_add_u32 {vr(tmp0)}, {sr(sT0)}, {vr(tmp0)}")
    a(f"v_and_b32 {vr(tmp1)}, 8, {vr(vI16)}")
    a(f"v_lshlrev_b32 {vr(tmp1)}, 2, {vr(tmp1)}")
    a(f"v_xor_b32 {vr(tmp0)}, {vr(tmp0)}, {vr(tmp1)}")
    a(f"v_and_b32 {vr(tmp1)}, 1, {vr(vG)}")
    a(f"v_lshlrev_b32 {vr(tmp1)}, 6, {vr(tmp1)}")
    a(f"v_xor_b32 {vr(tmp0)}, {vr(tmp0)}, {vr(tmp1)}")
    a(f"v_lshrrev_b32 {vr(tmp1)}, 2, {vr(vI16)}")
    a(f"v_lshl_add_u32 {vr(tmp0)}, {vr(tmp1)}, 7, {vr(tmp0)}")
    a(f"v_mul_u32_u24 {vr(tmp1)}, {nseg*1024}, {vr(vG)}")
    a(f"v_add_u32 {vr(dst)}, {vr(tmp0)}, {vr(tmp1)}")

def late_setup(br):
    T0, T1, T2 = vT0, vT1, vT2
    a(f"s_mov_b32 {sr(sMASK48)}, -1")
    a(f"s_mov_b32 {sr(sMASK48+1)}, 0xffff")
    a(f"v_lshlrev_b32 {vr(vL16)}, 4, {vr(vLANE)}")
    a(f"v_lshlrev_b32 {vr(vPOLL)}, 5, {vr(vI16)}")
    a(f"v_lshlrev_b32 {vr(vGT)}, 2, {vr(vI16)}")
    a(f"s_lshl_b32 {sr(sT0)}, {sr(sRB)}, 3")
    a(f"s_add_u32 {sr(sT0)}, {sr(sT0)}, {br*4}")
    a(f"s_add_u32 {sr(sT0)}, {sr(sT0)}, {sr(sMI)}")
    a(f"s_lshl_b32 {sr(sT1)}, {sr(sHP)}, 1")
    a(f"s_add_u32 {sr(sT1)}, {sr(sT1)}, {sr(sNI)}")
    a(f"s_lshl_b32 {sr(sT2)}, {sr(sT0)}, 5")
    a(f"s_add_u32 {sr(sT2)}, {sr(sT2)}, {sr(sT1)}")
    a(f"s_lshl_b32 {sr(sT2)}, {sr(sT2)}, 10")
    a(f"s_add_u32 {sr(sOST)}, {sr(sT2)}, {WS_O}")
    a(f"s_lshl_b32 {sr(sT2)}, {sr(sT0)}, 4")
    a(f"s_add_u32 {sr(sT2)}, {sr(sT2)}, {sr(sT1)}")
    a(f"s_lshl_b32 {sr(sT2)}, {sr(sT2)}, 5")
    a(f"s_add_u32 {sr(sF2W)}, {sr(sT2)}, {WS_F2}")
    a(f"s_lshr_b32 {sr(sBR)}, {sr(sWAVE)}, 2")
    a(f"s_and_b32 {sr(sT3)}, {sr(sWAVE)}, 3")
    a(f"s_lshl_b32 {sr(sT0)}, {sr(sRB)}, 1")
    a(f"s_add_u32 {sr(sT0)}, {sr(sT0)}, {sr(sBR)}")
    a(f"s_lshl_b32 {sr(sT2)}, {sr(sHALF)}, 2")
    a(f"s_add_u32 {sr(sT2)}, {sr(sT2)}, {sr(sT3)}")
    a(f"s_lshl_b32 {sr(sT1)}, {sr(sT0)}, 3")
    a(f"s_add_u32 {sr(sT1)}, {sr(sT1)}, {sr(sT2)}")
    a(f"s_lshl_b32 {sr(sT1)}, {sr(sT1)}, 14")
    a(f"s_add_u32 {sr(sOLD)}, {sr(sT1)}, {WS_O}")
    a(f"s_lshl_b32 {sr(sT0)}, {sr(sT0)}, 2")
    a(f"s_lshr_b32 {sr(sT1)}, {sr(sT2)}, 1")
    a(f"s_add_u32 {sr(sT0)}, {sr(sT0)}, {sr(sT1)}")
    a(f"s_lshl_b32 {sr(sT0)}, {sr(sT0)}, 9")
    a(f"s_add_u32 {sr(sF2R)}, {sr(sT0)}, {WS_F2}")
    a(f"s_lshl_b32 {sr(sT0)}, {sr(sRB)}, 3")
    a(f"s_add_u32 {sr(sT0)}, {sr(sT0)}, {sr(sT2)}")
    a(f"s_lshl_b32 {sr(sT0)}, {sr(sT0)}, 6")
    a(f"s_add_u32 {sr(sGT)}, {sr(sT0)}, {WS_GATE}")
    a(f"v_lshrrev_b32 {vr(T0)}, 3, {vr(vLANE)}")
    a(f"v_and_b32 {vr(T1)}, 7, {vr(vLANE)}")
    a(f"v_lshlrev_b32 {vr(T2)}, 1, {vr(vG)}")
    a(f"v_xor_b32 {vr(T2)}, {vr(T1)}, {vr(T2)}")
    a(f"v_mul_u32_u24 {vr(vWOD)}, 896, {vr(T0)}")
    a(f"s_mul_i32 {sr(sT0)}, {sr(sWAVE)}, {8*896}")
    a(f"s_lshl_b32 {sr(sT1)}, {sr(sCB)}, 7")
    a(f"s_add_u32 {sr(sT0)}, {sr(sT0)}, {sr(sT1)}")
    a(f"v_add_u32 {vr(vOUT)}, {sr(sT0)}, {vr(vWOD)}")
    a(f"v_lshl_add_u32 {vr(vWOD)}, {vr(T2)}, 4, {vr(vOUT)}")
    a(f"v_lshl_add_u32 {vr(vOUT)}, {vr(T1)}, 4, {vr(vOUT)}")
    a(f"s_lshl_b32 {sr(sT0)}, {sr(sRB)}, 1")
    a(f"s_add_u32 {sr(sT0)}, {sr(sT0)}, {sr(sHALF)}")
    a(f"s_mul_i32 {sr(sT0)}, {sr(sT0)}, {64*896}")
    a(f"v_add_u32 {vr(vOUT)}, {sr(sT0)}, {vr(vOUT)}")
    a(f"s_lshl_b32 {sr(sT0)}, {sr(sWAVE)}, 3")
    a(f"v_add_u32 {vr(T0)}, {sr(sT0)}, {vr(T0)}")
    a(f"v_mul_u32_u24 {vr(vCR)}, 272, {vr(T0)}")
    a(f"v_lshl_add_u32 {vr(vCR)}, {vr(T1)}, 5, {vr(vCR)}")
    a(f"v_add_u32 {vr(vCR)}, {P2_CB}, {vr(vCR)}")
    a(f"v_lshlrev_b32 {vr(vGR)}, 2, {vr(T0)}")
    a(f"v_add_u32 {vr(vGR)}, {P2_G}, {vr(vGR)}")
    a(f"s_mul_i32 {sr(sT0)}, {sr(sBR)}, {P2_CBSZ}")
    a(f"s_mul_i32 {sr(sT1)}, {sr(sT3)}, {16*272}")
    a(f"s_add_u32 {sr(sT0)}, {sr(sT0)}, {sr(sT1)}")
    a(f"s_add_u32 {sr(sT0)}, {sr(sT0)}, {P2_CB}")
    a(f"v_mul_u32_u24 {vr(vCW)}, 272, {vr(vI16)}")
    a(f"v_lshl_add_u32 {vr(vCW)}, {vr(vG)}, 4, {vr(vCW)}")
    a(f"v_add_u32 {vr(vCW)}, {sr(sT0)}, {vr(vCW)}")
    a(f"s_lshl_b32 {sr(sT0)}, {sr(sT3)}, 6")
    a(f"s_add_u32 {sr(sT0)}, {sr(sT0)}, {P2_G}")
    a(f"v_add_u32 {vr(vGW)}, {sr(sT0)}, {vr(vGT)}")
    a(f"v_lshrrev_b32 {vr(T0)}, 2, {vr(vI16)}")
    a(f"v_lshl_add_u32 {vr(T1)}, {vr(vG)}, 2, {vr(T0)}")
    a(f"v_lshlrev_b32 {vr(T1)}, 7, {vr(T1)}")
    a(f"v_and_b32 {vr(T2)}, 3, {vr(vI16)}")
    a(f"v_lshl_add_u32 {vr(T1)}, {vr(T2)}, 3, {vr(T1)}")
    a(f"v_lshrrev_b32 {vr(T0)}, 1, {vr(T0)}")
    a(f"v_and_b32 {vr(T2)}, 1, {vr(vG)}")
    a(f"v_lshl_or_b32 {vr(T0)}, {vr(T2)}, 1, {vr(T0)}")
    a(f"v_lshl_add_u32 {vr(T1)}, {vr(T0)}, 5, {vr(T1)}")
    a(f"s_mul_i32 {sr(sT0)}, {sr(sBR)}, 57344")
    a(f"v_add_u32 {vr(vWO[0])}, {sr(sT0)}, {vr(T1)}")
    for t in range(1, 4):
        a(f"v_xor_b32 {vr(vWO[t])}, {t*32}, {vr(vWO[0])}")

def compute_tag():
    a(f"s_add_u32 {sr(sTAG)}, {sr(sTAG)}, 0x7f4a7c15")
    a(f"s_addc_u32 {sr(sTAG+1)}, {sr(sTAG+1)}, 0x9e3779b9")

def set_flag(soff, vtmp):
    a(f"v_mov_b32 {vr(vtmp)}, {sr(sTAG)}")
    a(f"v_mov_b32 {vr(vtmp+1)}, {sr(sTAG+1)}")
    a(f"s_mov_b64 {sr(sEXEC,2)}, exec")
    a("s_mov_b64 exec, 1")
    a.vmem(f"buffer_store_dwordx2 {vr(vtmp,2)}, off, {sr(SWS,4)}, {sr(soff)} sc1", "flag")
    a(f"s_mov_b64 exec, {sr(sEXEC,2)}")

def poll_issue(soff, vtmp):
    a.vmem(f"buffer_load_dwordx2 {vr(vtmp,2)}, {vr(vPOLL)}, {sr(SWS,4)}, {sr(soff)} offen sc1", "poll")

def poll_finish(soff, vtmp):
    L = a.newlabel("L_poll"); Ld = a.newlabel("L_polld")
    a(f"s_mov_b32 {sr(sCNT)}, 0")
    a.label(L)
    a("s_waitcnt vmcnt(0)")
    a(f"v_cmp_ne_u64 vcc, {sr(sTAG,2)}, {vr(vtmp,2)}")
    a(f"s_add_u32 {sr(sCNT)}, {sr(sCNT)}, 1")
    a(f"s_cbranch_vccz {Ld}")
    a(f"s_cmp_gt_u32 {sr(sCNT)}, 0x400000")
    a(f"s_cbranch_scc1 {Ld}")
    a(f"buffer_load_dwordx2 {vr(vtmp,2)}, {vr(vPOLL)}, {sr(SWS,4)}, {sr(soff)} offen sc1")
    a(f"s_branch {L}")
    a.label(Ld)
    a.vm = []

def issue_wo():
    L = a.newlabel("L_nowo")
    a(f"s_cmp_eq_u32 {sr(sCB)}, 7")
    a(f"s_cbranch_scc1 {L}")
    for n in range(7):
        for b in range(2):
            a(f"s_add_u32 m0, {sr(sW1K)}, {P2_WO + b*57344 + n*8192}")
            a(f"s_mov_b32 {sr(sT2)}, {n*57344}")
            a.vmem_unc(f"buffer_load_dwordx4 {vr(vWOD)}, {sr(SWOA if b==0 else SWOB,4)}, {sr(sT2)} offen lds")
    a.label(L)

def wo_op(n, b):
    def f():
        a(f"s_add_u32 m0, {sr(sW1K)}, {P2_WO + b*57344 + n*8192}")
        a(f"s_mov_b32 {sr(sT2)}, {n*57344}")
        a.vmem(f"buffer_load_dwordx4 {vr(vWOD)}, {sr(SWOA if b==0 else SWOB,4)}, {sr(sT2)} offen lds", "wo")
    return f

def phi(base, n, tmp):
    for i in range(0, n, 2):
        a(f"v_pk_mul_f32 {vr(tmp+i,2)}, {vr(base+i,2)}, {sr(sL2E,2)}")
    for i in range(n): a(f"v_min_f32 {vr(tmp+i)}, 0, {vr(tmp+i)}")
    for i in range(n): a(f"v_exp_f32 {vr(tmp+i)}, {vr(tmp+i)}")
    for i in range(n): a(f"v_max_f32 {vr(base+i)}, 0, {vr(base+i)}")
    for i in range(0, n, 2):
        a(f"v_pk_add_f32 {vr(tmp+i,2)}, {vr(tmp+i,2)}, {sr(sEPS,2)}")
    for i in range(0, n, 2):
        a(f"v_pk_add_f32 {vr(base+i,2)}, {vr(base+i,2)}, {vr(tmp+i,2)}")

def parse_dst(text):
    import re
    m = re.search(r"v\[(\d+):(\d+)\]", text)
    return list(range(int(m.group(1)), int(m.group(2)) + 1))

def sched_step(ms, rd, extra, tail):
    rd = list(rd); extra = list(extra)
    nm = len(ms); nr = len(rd); done = 0
    span = max(1, nm - tail)
    epos = [int((j + 0.5) * nm / max(1, len(extra))) for j in range(len(extra))]
    for i, (fn, A, B) in enumerate(ms):
        a.need(list(range(A, A+4)) + list(range(B, B+4)))
        fn()
        want = min(nr, -(-(i + 1) * nr // span))
        while done < want:
            a.dsr(rd[done], parse_dst(rd[done])); done += 1
        while extra and epos[0] <= i:
            epos.pop(0); extra.pop(0)()
    while done < nr:
        a.dsr(rd[done], parse_dst(rd[done])); done += 1
    for f in extra: f()

def phase1_A():
    vHR0, vHR1 = 15, 16
    vWR = {(0,0):17, (1,0):18, (0,1):19, (1,1):20}
    vWH = [156, 157]
    SETS = [24, 64]
    ACC = 104
    def accq(t, tl): return ACC + (t*2+tl)*4
    def acck(t, tl): return ACC + 16 + (t*2+tl)*4
    def accv(t, tl): return ACC + 32 + (t*2+tl)*4
    acch = ACC + 48
    ONES, BIAS, SH, vEX, vHW = 160, 164, 170, 171, 172
    a.label("L_typeA")
    def chunk_ops(c):
        sl = c % 3
        def x0():
            true_chunk(sSOW, c)
            a(f"s_lshl_b32 {sr(sSOX)}, {sr(sSOW)}, 7")
            dma(vXG0, SX, sSOX, sW2K, A_X[sl], f"c{c}", filler=f"s_mul_i32 {sr(sSOW)}, {sr(sSOW)}, 172032")
            a.vmem(f"buffer_load_dwordx4 {vr(vXG1)}, {sr(SX,4)}, {sr(sSOX)} offen offset:1024 lds", f"c{c}")
        ops = [x0]
        for sg in range(3):
            ops.append(lambda sg=sg: dma(vWG, SW, sSOW, sW3K, A_W[sl] + sg*1024 - sg*896, f"c{c}", offset=sg*896))
        return ops
    def issue_chunk(c):
        for f in chunk_ops(c): f()
    issue_chunk(0)
    if STAMPS: a("s_memrealtime s[96:97]")
    a(f"s_cmp_eq_u32 {sr(sWAVE)}, 7")
    a("s_cbranch_scc1 L_A_nohalo")
    a(f"s_lshl_b32 {sr(sT0)}, {sr(sRB)}, 7")
    a(f"s_sub_u32 {sr(sT0)}, {sr(sT0)}, 16")
    a(f"s_mul_i32 {sr(sT0)}, {sr(sT0)}, 896")
    true_chunk(sT1, sr(sWAVE))
    a(f"s_lshl_b32 {sr(sT1)}, {sr(sT1)}, 7")
    a(f"s_add_u32 {sr(sT0)}, {sr(sT0)}, {sr(sT1)}")
    a(f"v_add_u32 {vr(vHR0)}, {sr(sT0)}, {vr(vT3)}")
    a(f"v_add_u32 {vr(vHR1)}, {sr(sT0)}, {vr(vT4)}")
    a(f"s_add_u32 m0, {sr(sW2K)}, {A_HALO}")
    a("s_nop 0")
    a.vmem_unc(f"buffer_load_dwordx4 {vr(vHR0)}, {sr(SX,4)}, 0 offen lds")
    a.vmem_unc(f"buffer_load_dwordx4 {vr(vHR1)}, {sr(SX,4)}, 0 offen offset:1024 lds")
    a.label("L_A_nohalo")
    if C1EARLY == 1: issue_chunk(1)
    late_srds()
    if C1EARLY == 2: issue_chunk(1)
    for c in range(1, 7): prefetch_chunk(c)
    if STAMPS: a("s_memrealtime s[88:89]")
    x_read_addrs()
    a(f"v_add_u32 {vr(vHR0)}, {A_HALO}, {vr(vT5)}")
    a(f"v_xor_b32 {vr(vHR1)}, 64, {vr(vHR0)}")
    for t in range(2):
        w_read_lane(vWR[(t,0)], t, 3, vT0, vT1)
        a(f"v_add_u32 {vr(vWR[(t,1)])}, {A_W[2]}, {vr(vWR[(t,0)])}")
        a(f"v_add_u32 {vr(vWR[(t,0)])}, {A_W[0]}, {vr(vWR[(t,0)])}")
    w_read_lane(vWH[0], None, 3, vT0, vT1)
    a(f"s_lshr_b32 {sr(sT0)}, {sr(sMI)}, 1")
    a(f"s_lshl_b32 {sr(sT0)}, {sr(sT0)}, 10")
    a(f"s_add_u32 {sr(sT0)}, {sr(sT0)}, 1024")
    a(f"v_add_u32 {vr(vWH[0])}, {sr(sT0)}, {vr(vWH[0])}")
    a(f"v_add_u32 {vr(vWH[1])}, {A_W[2]}, {vr(vWH[0])}")
    a(f"v_add_u32 {vr(vWH[0])}, {A_W[0]}, {vr(vWH[0])}")
    late_setup(0)
    T0, T1, T2, T3, T4 = vT0, vT1, vT2, vT3, vT4
    a(f"s_mov_b32 {sr(sODD)}, 0xaaaaaaaa")
    a(f"s_mov_b32 {sr(sODD+1)}, 0xaaaaaaaa")
    a(f"s_mov_b32 {sr(sK0)}, {f2u(28**-0.5 * LOG2E)}")
    for i in range(4): a(f"v_mov_b32 {vr(ONES+i)}, 0x3f803f80")
    a(f"v_and_b32 {vr(T0)}, 1, {vr(vI16)}")
    a(f"v_lshlrev_b32 {vr(SH)}, 4, {vr(T0)}")
    a(f"v_lshl_add_u32 {vr(T1)}, {vr(vG)}, 2, {vr(T0)}")
    a(f"v_mov_b32 {vr(T2)}, 0xf149f2ca")
    a(f"v_cmp_le_u32 vcc, {vr(T1)}, {vr(vI16)}")
    a(f"v_add_u32 {vr(T3)}, 2, {vr(T1)}")
    a("s_nop 0")
    a(f"v_cndmask_b32 {vr(BIAS+2)}, {vr(T2)}, 0, vcc")
    a(f"v_cmp_le_u32 vcc, {vr(T3)}, {vr(vI16)}")
    a(f"v_add_u32 {vr(T4)}, 2, {vr(vI16)}")
    a("s_nop 0")
    a(f"v_cndmask_b32 {vr(BIAS+3)}, {vr(T2)}, 0, vcc")
    a(f"v_cmp_ge_u32 vcc, {vr(T1)}, {vr(T4)}")
    a("s_nop 1")
    a(f"v_cndmask_b32 {vr(BIAS+0)}, {vr(T2)}, 0, vcc")
    a(f"v_cmp_ge_u32 vcc, {vr(T3)}, {vr(T4)}")
    a("s_nop 1")
    a(f"v_cndmask_b32 {vr(BIAS+1)}, {vr(T2)}, 0, vcc")
    a(f"s_or_b32 {sr(sT0)}, {sr(sRB)}, {sr(sMI)}")
    a(f"s_cmp_eq_u32 {sr(sT0)}, 0")
    a(f"s_cselect_b32 {sr(sT0)}, 0xf149f2ca, 0")
    a(f"v_min_f32 {vr(BIAS+4)}, {sr(sT0)}, {vr(BIAS+0)}")
    a(f"v_min_f32 {vr(BIAS+5)}, {sr(sT0)}, {vr(BIAS+1)}")
    a(f"s_mul_i32 {sr(sT0)}, {sr(sNI)}, {5*2048}")
    a(f"s_add_u32 {sr(sT0)}, {sr(sT0)}, {A_EXCH}")
    a(f"s_lshl_b32 {sr(sT1)}, {sr(sMI)}, 11")
    a(f"s_add_u32 {sr(sT1)}, {sr(sT1)}, {sr(sT0)}")
    a(f"v_add_u32 {vr(vEX)}, {sr(sT1)}, {vr(vL16)}")
    a(f"s_lshr_b32 {sr(sT1)}, {sr(sMI)}, 1")
    a(f"s_lshl_b32 {sr(sT1)}, {sr(sT1)}, 10")
    a(f"s_add_u32 {sr(sT0)}, {sr(sT0)}, {sr(sT1)}")
    a(f"s_and_b32 {sr(sT1)}, {sr(sMI)}, 1")
    a(f"s_lshl_b32 {sr(sT1)}, {sr(sT1)}, 3")
    a(f"s_add_u32 {sr(sT0)}, {sr(sT0)}, {sr(sT1)}")
    a(f"v_add_u32 {vr(vHW)}, {sr(sT0)}, {vr(vL16)}")
    a(f"s_cmp_ge_u32 {sr(sMI)}, 2")
    a("s_cselect_b64 vcc, -1, 0")
    stamp("A setup done")
    if not C1EARLY: issue_chunk(1)
    if ALLD:
        for c in range(2, 7): issue_chunk(c)
        if flag("computeonly"):
            a("s_waitcnt vmcnt(0)"); a("s_barrier"); stamp(("A" if "L_typeA:" in a.lines else "B") + " all landed")
            if flag("twice"):
                a("s_sleep 100")
                stamp(("A" if "L_typeA:" in a.lines else "B") + " second start")
                for c in range(0, 7): issue_chunk(c)
                a("s_waitcnt vmcnt(0)"); a("s_barrier"); stamp(("A" if "L_typeA:" in a.lines else "B") + " second landed")

    def reads(c, ks, S):
        sl = c % 3; out = []
        xr = vXR0 if ks == 0 else vXR1
        hr = vHR0 if ks == 0 else vHR1
        reg = 1 if sl == 2 else 0
        wb = (A_W[sl] - A_W[2*reg]) + ks*4*3072
        def wfrag(dst, base, seg):
            for h in range(2):
                out.append(f"ds_read_b64_tr_b16 {vr(dst+2*h,2)}, {vr(base)} offset:{wb + seg*1024 + h*512}")
        out.append(f"ds_read_b128 {vr(S,4)}, {vr(xr)} offset:{A_X[sl]}")
        wfrag(S+12, vWR[(0,reg)], 0)
        out.append(f"ds_read_b128 {vr(S+4,4)}, {vr(xr)} offset:{A_X[sl]+2048}")
        wfrag(S+16, vWR[(1,reg)], 0)
        for seg in (1, 2):
            for t in range(2):
                wfrag(S+12+(seg*2+t)*4, vWR[(t,reg)], seg)
        out.append(f"ds_read_b128 {vr(S+8,4)}, {vr(hr)} offset:{c*2048}")
        wfrag(S+36, vWH[reg], 0)
        return out
    def emit_step(S, first, rd, extra=(), tail=0):
        if NOCOMP:
            for f in extra: f()
            return
        ms = []
        def M(d, A, B): ms.append((lambda: mfma(d, A, B, None if first else d), A, B))
        for t in range(2):
            for tl in range(2): M(accq(t,tl), S+12+t*4, S+tl*4)
        for t in range(2):
            for tl in range(2): M(acck(t,tl), S+20+t*4, S+tl*4)
        for t in range(2):
            for tl in range(2): M(accv(t,tl), S+tl*4, S+28+t*4)
        def halo():
            L1 = a.newlabel("L_h"); L2 = a.newlabel("L_h")
            a(f"s_cbranch_vccnz {L1}")
            mfma(acch, S+36, S+8, None if first else acch)
            a(f"s_branch {L2}")
            a.label(L1)
            mfma(acch, S+8, S+36, None if first else acch)
            a.label(L2)
        ms.append((halo, S+36, S+8))
        sched_step(ms, rd, extra, tail)
    for c in range(7):
        a.c(f"---- A chunk {c}")
        if c == 0:
            n = len([t for t in a.vm if t != "c0"])
            a(f"s_waitcnt vmcnt({n}) lgkmcnt(0)"); a.vm = [t for t in a.vm if t != "c0"]
        else:
            a.wait_vm(f"c{c}", " lgkmcnt(0)")
        a.ds_all()
        a("s_barrier")
        if c == 0: compute_tag()
        if FINE: stamp(f"A chunk {c} bar")
        ops = chunk_ops(c + 2) if (c + 2 < 7 and not ALLD) else []
        if c == 3: ops.append(prefetch_wo)
        r0 = reads(c, 0, SETS[0])
        if c == 0:
            if not NOCOMP:
                for r in r0: a.dsr(r, parse_dst(r))
        else:
            emit_step(SETS[1], False, r0, ops[:2], 0); ops = ops[2:]
        emit_step(SETS[0], c == 0, reads(c, 1, SETS[1]), ops, 2)
    emit_step(SETS[1], False, [])
    a.ds_all()
    stamp("A gemm done")
    QB = [24, 28]; KB = [32, 36]; KP = 40; VE = [44, 50]; HP_ = 56
    a("s_nop 3")
    cvtpk(KB[1]+0, acck(0,1)+0, acck(0,1)+1); cvtpk(KB[1]+1, acck(0,1)+2, acck(0,1)+3)
    cvtpk(KB[1]+2, acck(1,1)+0, acck(1,1)+1); cvtpk(KB[1]+3, acck(1,1)+2, acck(1,1)+3)
    a(f"ds_write_b128 {vr(vEX)}, {vr(KB[1],4)} offset:2048")
    for et in range(2):
        cvtpk(VE[et]+4, accv(et,1)+0, accv(et,1)+1); cvtpk(VE[et]+5, accv(et,1)+2, accv(et,1)+3)
    a(f"ds_write_b64 {vr(vEX)}, {vr(VE[0]+4,2)} offset:{2048+1024}")
    a(f"ds_write_b64 {vr(vEX)}, {vr(VE[1]+4,2)} offset:{2048+1024+8}")
    cvtpk(HP_, acch, acch+1); cvtpk(HP_+1, acch+2, acch+3)
    a(f"ds_write_b64 {vr(vHW)}, {vr(HP_,2)}")
    cvtpk(KB[0]+0, acck(0,0)+0, acck(0,0)+1); cvtpk(KB[0]+1, acck(0,0)+2, acck(0,0)+3)
    cvtpk(KB[0]+2, acck(1,0)+0, acck(1,0)+1); cvtpk(KB[0]+3, acck(1,0)+2, acck(1,0)+3)
    for tl in (1, 0):
        cvtpk(QB[tl]+0, accq(0,tl)+0, accq(0,tl)+1); cvtpk(QB[tl]+1, accq(0,tl)+2, accq(0,tl)+3)
        cvtpk(QB[tl]+2, accq(1,tl)+0, accq(1,tl)+1); cvtpk(QB[tl]+3, accq(1,tl)+2, accq(1,tl)+3)
        a(f"v_cndmask_b32 {vr(QB[tl]+2)}, 0, {vr(QB[tl]+2)}, {sr(sMASK48,2)}")
        a(f"v_cndmask_b32 {vr(QB[tl]+3)}, 0, {vr(QB[tl]+3)}, {sr(sMASK48,2)}")
    a("s_waitcnt lgkmcnt(0)")
    a("s_barrier")
    a(f"ds_read_b128 {vr(KP,4)}, {vr(vEX)}")
    a(f"ds_read_b64 {vr(VE[0],2)}, {vr(vEX)} offset:1024")
    a(f"ds_read_b64 {vr(VE[1],2)}, {vr(vEX)} offset:1032")
    TT = {1: 60, 0: 176}
    def R(tl, k): return TT[tl] + k
    mfma(R(1,0), KB[0], QB[1]); mfma(R(1,4), KB[1], QB[1]); mfma(R(0,4), KB[0], QB[0])
    for et in range(2):
        cvtpk(VE[et]+2, accv(et,0)+0, accv(et,0)+1); cvtpk(VE[et]+3, accv(et,0)+2, accv(et,0)+3)
    a("s_waitcnt lgkmcnt(0)")
    mfma(R(0,0), KP, QB[0])
    a("s_nop 1")
    order = (1, 0)
    def sel(tl):
        for i, (s, o) in enumerate(((0,0),(0,2),(4,0),(4,2))):
            a(f"v_cndmask_b32 {vr(R(tl,8+i))}, {vr(R(tl,s+o))}, {vr(R(tl,s+o+1))}, {sr(sODD,2)}")
        bp = BIAS if tl == 1 else BIAS + 4
        for i, b in enumerate((bp, bp+1, BIAS+2, BIAS+3)):
            a(f"v_fma_f32 {vr(R(tl,8+i))}, {vr(R(tl,8+i))}, {sr(sK0)}, {vr(b)}")
        a(f"v_max3_f32 {vr(R(tl,12))}, {vr(R(tl,8))}, {vr(R(tl,9))}, {vr(R(tl,10))}")
        a(f"v_max_f32 {vr(R(tl,12))}, {vr(R(tl,12))}, {vr(R(tl,11))}")
        a(f"v_mov_b32 {vr(R(tl,13))}, {vr(R(tl,12))}")
    sel(1)
    sel(0)
    a("s_nop 0")
    for tl in order: a(f"v_permlane32_swap_b32 {vr(R(tl,12))}, {vr(R(tl,13))}")
    a("s_nop 0")
    for tl in order: a(f"v_max_f32 {vr(R(tl,12))}, {vr(R(tl,12))}, {vr(R(tl,13))}")
    for tl in order: a(f"v_mov_b32 {vr(R(tl,13))}, {vr(R(tl,12))}")
    a("s_nop 1")
    for tl in order: a(f"v_permlane16_swap_b32 {vr(R(tl,12))}, {vr(R(tl,13))}")
    a("s_nop 0")
    for tl in order: a(f"v_max_f32 {vr(R(tl,12))}, {vr(R(tl,12))}, {vr(R(tl,13))}")
    for tl in order:
        for i in range(4): a(f"v_sub_f32 {vr(R(tl,8+i))}, {vr(R(tl,8+i))}, {vr(R(tl,12))}")
    for tl in order:
        for i in range(4): a(f"v_exp_f32 {vr(R(tl,8+i))}, {vr(R(tl,8+i))}")
    for tl in order:
        if tl == 0: pass
        for i in range(4): a(f"v_cvt_pk_bf16_f32 {vr(R(tl,16+i))}, {vr(R(tl,8+i))}, 0")
    for tl in order:
        for i in range(4): a(f"v_lshlrev_b32 {vr(R(tl,16+i))}, {vr(SH)}, {vr(R(tl,16+i))}")
    a("s_nop 1")
    for tl in order:
        off = 2 if tl == 1 else 0
        mfma(R(tl,28), ONES, R(tl,16)); mfma(R(tl,20), VE[0]+off, R(tl,16)); mfma(R(tl,24), VE[1]+off, R(tl,16))
    a("s_nop 2")
    a(f"v_rcp_f32 {vr(R(1,12))}, {vr(R(1,28))}")
    a("s_nop 1")
    a(f"v_rcp_f32 {vr(R(0,12))}, {vr(R(0,28))}")
    for tl in order:
        for i in range(8): a(f"v_mul_f32 {vr(R(tl,20+i))}, {vr(R(tl,20+i))}, {vr(R(tl,12))}")
        for i in range(4): cvtpk(R(tl,32+i), R(tl,20+2*i), R(tl,21+2*i))
        a(f"v_cndmask_b32 {vr(R(tl,34))}, 0, {vr(R(tl,34))}, {sr(sMASK48,2)}")
        a(f"v_cndmask_b32 {vr(R(tl,35))}, 0, {vr(R(tl,35))}, {sr(sMASK48,2)}")
        if tl == 1:
            a(f"s_add_u32 {sr(sT0)}, {sr(sOST)}, 16384")
            a.vmem(f"buffer_store_dwordx4 {vr(R(tl,32),4)}, {vr(vL16)}, {sr(SWS,4)}, {sr(sT0)} offen sc1", "ost")
        else:
            a.vmem(f"buffer_store_dwordx4 {vr(R(tl,32),4)}, {vr(vL16)}, {sr(SWS,4)}, {sr(sOST)} offen sc1", "ost")
    stamp("A epilogue done")
    a.wait_vm_all()
    set_flag(sF2W, 24)
    stamp("A flag set")
    issue_wo()
    a("s_waitcnt vmcnt(0)")
    a("s_branch L_phase2")

def phase1_B():
    vWR = [15, 16]
    vQR = {(0,0):17, (1,0):18, (0,1):19, (1,1):20, (0,2):200, (1,2):201}
    XF = 24
    SETS = [136, 152]
    ACC = 168
    vSW, vSR, vKW, vKR, vZR, vGF = 202, 203, 204, 205, 206, 207
    GB = 208
    def xf(k, tl): return XF + (k*2+tl)*4
    def acck(t, tl): return ACC + (t*2+tl)*4
    def accv(t, tl): return ACC + 16 + (t*2+tl)*4
    a.label("L_typeB")
    def chunk_ops(c):
        sl = c % 4
        def x0():
            true_chunk(sSOW, c)
            a(f"s_lshl_b32 {sr(sSOX)}, {sr(sSOW)}, 7")
            dma(vXG0, SX, sSOX, sW2K, B_X[sl], f"c{c}", filler=f"s_mul_i32 {sr(sSOW)}, {sr(sSOW)}, 172032")
            a.vmem(f"buffer_load_dwordx4 {vr(vXG1)}, {sr(SX,4)}, {sr(sSOX)} offen offset:1024 lds", f"c{c}")
        ops = [x0]
        for i, sg in enumerate((1, 2)):
            ops.append(lambda i=i, sg=sg: dma(vWG, SW, sSOW, sW2K, B_W[sl] + i*1024 - sg*896, f"c{c}", offset=sg*896))
        return ops
    def issue_chunk(c):
        for f in chunk_ops(c): f()
    def wq_op(c):
        def f():
            true_chunk(sSOW, c)
            dma(vWG, SW, sSOW, sW1K, B_WQ[c], "wq", filler=f"s_mul_i32 {sr(sSOW)}, {sr(sSOW)}, 172032")
        return f
    issue_chunk(0)
    if STAMPS: a("s_memrealtime s[96:97]")
    if C1EARLY == 1: issue_chunk(1)
    late_srds()
    if C1EARLY == 2: issue_chunk(1)
    for c in range(1, 7): prefetch_chunk(c)
    if STAMPS: a("s_memrealtime s[88:89]")
    x_read_addrs()
    for t in range(2):
        w_read_lane(vWR[t], t, 2, vT0, vT1)
        a(f"v_add_u32 {vr(vWR[t])}, {B_W[0]}, {vr(vWR[t])}")
        w_read_lane(vQR[(t,0)], t, 1, vT0, vT1)
        a(f"v_add_u32 {vr(vQR[(t,2)])}, {B_WQ[6]}, {vr(vQR[(t,0)])}")
        a(f"v_add_u32 {vr(vQR[(t,0)])}, {B_WQ[4]}, {vr(vQR[(t,0)])}")
    late_setup(1)
    a(f"s_mov_b32 {sr(sONE)}, 0x10001000")
    a(f"s_mov_b32 {sr(sONE+1)}, 0x10001000")
    a(f"s_mov_b32 {sr(sL2E)}, {f2u(LOG2E)}"); a(f"s_mov_b32 {sr(sL2E+1)}, {f2u(LOG2E)}")
    a(f"s_mov_b32 {sr(sEPS)}, {f2u(1e-6)}"); a(f"s_mov_b32 {sr(sEPS+1)}, {f2u(1e-6)}")
    a(f"s_lshl_b32 {sr(sT0)}, {sr(sNI)}, 14")
    a(f"s_lshl_b32 {sr(sT1)}, {sr(sMI)}, 12")
    a(f"s_add_u32 {sr(sT1)}, {sr(sT1)}, {sr(sT0)}")
    a(f"v_add_u32 {vr(vSW)}, {sr(sT1)}, {vr(vL16)}")
    a(f"s_lshl_b32 {sr(sT1)}, {sr(sMI)}, 10")
    a(f"s_add_u32 {sr(sT1)}, {sr(sT1)}, {sr(sT0)}")
    a(f"v_add_u32 {vr(vSR)}, {sr(sT1)}, {vr(vL16)}")
    a(f"s_lshl_b32 {sr(sT0)}, {sr(sHP)}, 3")
    a(f"s_add_u32 {sr(sT0)}, {sr(sT0)}, {sr(sWAVE)}")
    a(f"s_lshl_b32 {sr(sT1)}, {sr(sT0)}, 14")
    a(f"s_add_u32 {sr(sKVO)}, {sr(sT1)}, {WS_KV}")
    a(f"s_lshl_b32 {sr(sT1)}, {sr(sT0)}, 9")
    a(f"s_add_u32 {sr(sF1R)}, {sr(sT1)}, {WS_F1}")
    a(f"s_lshl_b32 {sr(sT1)}, {sr(sRB)}, 5")
    a(f"s_add_u32 {sr(sF1W)}, {sr(sF1R)}, {sr(sT1)}")
    a(f"s_lshl_b32 {sr(sT0)}, {sr(sNI)}, 11")
    a(f"s_add_u32 {sr(sT0)}, {sr(sT0)}, {B_KVF}")
    a(f"v_add_u32 {vr(vKR)}, {sr(sT0)}, {vr(vL16)}")
    a(f"s_and_b32 {sr(sT1)}, {sr(sMI)}, 1")
    a(f"s_lshl_b32 {sr(sT1)}, {sr(sT1)}, 10")
    a(f"s_lshr_b32 {sr(sT2)}, {sr(sMI)}, 1")
    a(f"s_lshl_b32 {sr(sT2)}, {sr(sT2)}, 3")
    a(f"s_add_u32 {sr(sT1)}, {sr(sT1)}, {sr(sT2)}")
    a(f"v_add_u32 {vr(vKW)}, {sr(sT1)}, {vr(vKR)}")
    a(f"v_lshlrev_b32 {vr(vZR)}, 8, {vr(vG)}")
    a(f"v_add_u32 {vr(vZR)}, {sr(sT0)}, {vr(vZR)}")
    a(f"v_lshlrev_b32 {vr(vGF)}, 4, {vr(vG)}")
    a(f"s_lshl_b32 {sr(sT1)}, {sr(sROT)}, 7")
    a(f"s_add_u32 {sr(sT1)}, {sr(sT1)}, {B_GW}")
    a(f"v_add_u32 {vr(vGF)}, {sr(sT1)}, {vr(vGF)}")
    a(f"s_lshl_b32 {sr(sT0)}, {sr(sRB)}, 2")
    a(f"s_add_u32 {sr(sT0)}, {sr(sT0)}, {sr(sMI)}")
    a(f"s_lshl_b32 {sr(sT0)}, {sr(sT0)}, 7")
    a(f"s_add_u32 {sr(sGST)}, {sr(sT0)}, {WS_GATE}")
    stamp("B setup done")
    if not C1EARLY: issue_chunk(1)
    if ALLD:
        for c in range(2, 7): issue_chunk(c)
        if flag("computeonly"):
            a("s_waitcnt vmcnt(0)"); a("s_barrier"); stamp(("A" if "L_typeA:" in a.lines else "B") + " all landed")
            if flag("twice"):
                a("s_sleep 100")
                stamp(("A" if "L_typeA:" in a.lines else "B") + " second start")
                for c in range(0, 7): issue_chunk(c)
                a("s_waitcnt vmcnt(0)"); a("s_barrier"); stamp(("A" if "L_typeA:" in a.lines else "B") + " second landed")
    def reads(c, ks, S):
        sl = c % 4; k = c*2 + ks
        xr = vXR0 if ks == 0 else vXR1
        wb = (B_W[sl] - B_W[0]) + ks*4*2048
        out = []
        def wfrag(dst, t, seg):
            for h in range(2):
                out.append(f"ds_read_b64_tr_b16 {vr(dst+2*h,2)}, {vr(vWR[t])} offset:{wb + seg*1024 + h*512}")
        out.append(f"ds_read_b128 {vr(xf(k,0),4)}, {vr(xr)} offset:{B_X[sl]}")
        wfrag(S, 0, 0)
        out.append(f"ds_read_b128 {vr(xf(k,1),4)}, {vr(xr)} offset:{B_X[sl]+2048}")
        wfrag(S+4, 1, 0); wfrag(S+8, 0, 1); wfrag(S+12, 1, 1)
        return out
    def emit_step(k, S, rd, extra=(), tail=0):
        if NOCOMP:
            for f in extra: f()
            return
        first = (k == 0); ms = []
        for seg in range(2):
            for t in range(2):
                for tl in range(2):
                    d = (acck if seg == 0 else accv)(t, tl)
                    A, B = xf(k,tl), S+(seg*2+t)*4
                    ms.append((lambda d=d, A=A, B=B: mfma(d, A, B, None if first else d), A, B))
        sched_step(ms, rd, extra, tail)
    def gw_op():
        L = a.newlabel("L_gw")
        a(f"s_cmp_lg_u32 {sr(sWAVE)}, 0")
        a(f"s_cbranch_scc1 {L}")
        a(f"s_mov_b32 m0, {B_GW}")
        a("s_mov_b32 exec_hi, 0xffffff")
        a.vmem_unc(f"buffer_load_dwordx4 {vr(vL16)}, {sr(SG,4)}, 0 offen lds")
        a("s_waitcnt vmcnt(0)") if False else None
        a(f"s_mov_b32 m0, {B_GW + 896}")
        a("s_nop 0")
        a.vmem_unc(f"buffer_load_dwordx4 {vr(vL16)}, {sr(SG,4)}, 0 offen lds")
        a("s_mov_b32 exec_hi, -1")
        a.label(L)
    def refill_ops(c):
        ops = []
        if ALLD: pass
        elif c == 0: ops += chunk_ops(2) + chunk_ops(3)
        elif c + 3 < 7: ops += chunk_ops(c + 3)
        if c == 3: ops += [wq_op(q) for q in range(4)] + [prefetch_wo]
        if c == 4: ops += [wq_op(q) for q in range(4, 7)] + [gw_op]
        return ops
    for c in range(7):
        a.c(f"---- B chunk {c}")
        a.wait_vm(f"c{c}", " lgkmcnt(0)")
        a.ds_all()
        a("s_barrier")
        if c == 0: compute_tag()
        if FINE: stamp(f"B chunk {c} bar")
        ops = refill_ops(c)
        r0 = reads(c, 0, SETS[0])
        if c == 0:
            if not NOCOMP:
                for r in r0: a.dsr(r, parse_dst(r))
        else:
            h = (len(ops) + 1) // 2
            emit_step(c*2-1, SETS[1], r0, ops[:h], 0); ops = ops[h:]
        emit_step(c*2, SETS[0], reads(c, 1, SETS[1]), ops, 1)
    emit_step(13, SETS[1], [])
    a.ds_all()
    stamp("B pass1 done")
    T = 136
    PK = T+16; PV = T+24
    a("s_nop 3")
    phi(ACC, 16, T)
    for t in range(2):
        for tl in range(2):
            cvtpk(PV+t*4+tl*2, accv(t,tl), accv(t,tl)+1); cvtpk(PV+t*4+tl*2+1, accv(t,tl)+2, accv(t,tl)+3)
    for t in range(2):
        for tl in range(2):
            cvtpk(PK+t*4+tl*2, acck(t,tl), acck(t,tl)+1); cvtpk(PK+t*4+tl*2+1, acck(t,tl)+2, acck(t,tl)+3)
    a(f"v_mov_b32 {vr(T)}, 0x3f803f80")
    for i in range(4):
        a(f"v_cndmask_b32 {vr(PV+4+i)}, {vr(PV+4+i)}, {vr(T)}, {sr(sONE,2)}")
    a("s_nop 1")
    KV = ACC
    for dt in range(2):
        for et in range(2):
            mfma(KV+(dt*2+et)*4, PK+dt*4, PV+et*4)
    a("s_nop 4")
    for q in range(4):
        a(f"ds_write_b128 {vr(vSW)}, {vr(KV+q*4,4)} offset:{B_KVS + q*1024}")
    a.wait_vm_all(" lgkmcnt(0)")
    a("s_barrier")
    for m in range(4):
        a(f"ds_read_b128 {vr(T+m*4,4)}, {vr(vSR)} offset:{B_KVS + m*4096}")
    QS = [ACC+16, ACC+24]; AQ = ACC; AG = 216
    def qreads(k, S):
        c, ks = divmod(k, 2)
        reg = 0 if c < 6 else 2
        base = B_WQ[c] - B_WQ[(4,4,6)[reg]] + ks*4096
        return [f"ds_read_b64_tr_b16 {vr(S+t*4+2*h,2)}, {vr(vQR[(t,reg)])} offset:{base + h*512}" for t in range(2) for h in range(2)]
    for r in qreads(0, QS[0]): a(r)
    a("s_waitcnt lgkmcnt(4)")
    for i in (0, 2):
        a(f"v_pk_add_f32 {vr(T+i,2)}, {vr(T+i,2)}, {vr(T+4+i,2)}")
        a(f"v_pk_add_f32 {vr(T+8+i,2)}, {vr(T+8+i,2)}, {vr(T+12+i,2)}")
    for i in (0, 2):
        a(f"v_pk_add_f32 {vr(T+i,2)}, {vr(T+i,2)}, {vr(T+8+i,2)}")
    a(f"s_lshl_b32 {sr(sT1)}, {sr(sRB)}, 10")
    a(f"s_add_u32 {sr(sT1)}, {sr(sT1)}, {sr(sKVO)}")
    a.vmem(f"buffer_store_dwordx4 {vr(T,4)}, {vr(vL16)}, {sr(SWS,4)}, {sr(sT1)} offen sc1", "kvst")
    stamp("B partial stored")
    FK = opt("fk", 6)
    early = [(4,0),(5,0),(1,1),(2,1),(3,1),(4,1),(5,1),(6,1),(0,0),(1,0),(2,0),(3,0)]
    for k in range(14):
        S = QS[k & 1]
        rd = qreads(k+1, QS[(k+1)&1]) if k < 13 else []
        a("s_waitcnt lgkmcnt(0)")
        if k == 2: a("s_barrier")
        for t in range(2):
            for tl in range(2):
                d = AQ + (t*2+tl)*4
                mfma(d, S+t*4, xf(k,tl), None if k == 0 else d)
                if rd: a(rd.pop(0))
        if k < 12: wo_op(*early[k])()
        if k == FK:
            a.wait_vm("kvst")
            set_flag(sF1W, T+4)
            stamp("B flag1 set")
    poll_issue(sF1R, T+20+4)
    a("s_nop 4")
    phi(AQ, 16, T)
    PQ = [T+16, T+20]
    for tl in range(2):
        for t in range(2):
            d = AQ + (t*2+tl)*4
            cvtpk(PQ[tl]+t*2, d, d+1); cvtpk(PQ[tl]+t*2+1, d+2, d+3)
        a(f"v_cndmask_b32 {vr(PQ[tl]+2)}, 0, {vr(PQ[tl]+2)}, {sr(sMASK48,2)}")
        a(f"v_cndmask_b32 {vr(PQ[tl]+3)}, 0, {vr(PQ[tl]+3)}, {sr(sMASK48,2)}")
    stamp("B pass2 done")
    a(f"s_lshl_b32 {sr(sT0)}, {sr(sHP)}, 1")
    a(f"s_cmp_lg_u32 {sr(sT0)}, {sr(sWAVE)}")
    a("s_cbranch_scc1 L_B_nogate")
    a(f"ds_read_b128 {vr(GB,4)}, {vr(vGF)}")
    for k in range(14):
        if k < 13:
            a(f"ds_read_b128 {vr(GB+((k+1)&1)*4,4)}, {vr(vGF)} offset:{(k+1)*64}")
            a("s_waitcnt lgkmcnt(1)")
        else:
            a("s_waitcnt lgkmcnt(0)")
        for tl in range(2):
            mfma(AG+tl*4, GB+(k&1)*4, xf(k,tl), None if k == 0 else AG+tl*4)
    a("s_nop 7")
    for tl in range(2): a(f"v_mul_f32 {vr(AG+tl*4)}, {sr(sL2E)}, {vr(AG+tl*4)}")
    for tl in range(2): a(f"v_exp_f32 {vr(AG+tl*4)}, -{vr(AG+tl*4)}")
    a("s_nop 0")
    for tl in range(2): a(f"v_add_f32 {vr(AG+tl*4)}, 1.0, {vr(AG+tl*4)}")
    for tl in range(2): a(f"v_rcp_f32 {vr(AG+tl*4)}, {vr(AG+tl*4)}")
    a(f"s_mov_b64 {sr(sEXEC,2)}, exec")
    a("s_mov_b64 exec, 0xffff")
    for tl in range(2):
        a.vmem_unc(f"buffer_store_dword {vr(AG+tl*4)}, {vr(vGT)}, {sr(SWS,4)}, {sr(sGST)} offen offset:{tl*64} sc1")
    a(f"s_mov_b64 exec, {sr(sEXEC,2)}")
    a.label("L_B_nogate")
    poll_finish(sF1R, T+24)
    stamp("B flag1 seen")
    PL = XF
    for r in range(16):
        if r % 4 == 0:
            if r: a(f"s_add_u32 {sr(sT1)}, {sr(sKVO)}, {r*1024}")
        so = sKVO if r < 4 else sT1
        a.vmem(f"buffer_load_dwordx4 {vr(PL+r*4,4)}, {vr(vL16)}, {sr(SWS,4)}, {sr(so)} offen offset:{(r%4)*1024} sc1", f"pl{r}")
    for r in range(0, 16, 2):
        a.wait_vm(f"pl{r+1}")
        for i in (0, 2):
            a(f"v_pk_add_f32 {vr(PL+r*4+i,2)}, {vr(PL+r*4+i,2)}, {vr(PL+(r+1)*4+i,2)}")
    for lvl in (2, 4, 8):
        for r in range(0, 16, 2*lvl):
            for i in (0, 2):
                a(f"v_pk_add_f32 {vr(PL+r*4+i,2)}, {vr(PL+r*4+i,2)}, {vr(PL+(r+lvl)*4+i,2)}")
    cvtpk(T, PL, PL+1); cvtpk(T+1, PL+2, PL+3)
    a(f"ds_write_b64 {vr(vKW)}, {vr(T,2)}")
    a("s_waitcnt lgkmcnt(0)")
    a("s_barrier")
    KF = [T, T+4]; ZF = T+8
    a(f"ds_read_b128 {vr(ZF,4)}, {vr(vZR)} offset:{1024 + 12*16}")
    a(f"ds_read_b128 {vr(KF[0],4)}, {vr(vKR)}")
    a(f"ds_read_b128 {vr(KF[1],4)}, {vr(vKR)} offset:1024")
    O = XF
    a("s_waitcnt lgkmcnt(2)")
    for tl in range(2): mfma(O+tl*12+8, ZF, PQ[tl])
    a("s_waitcnt lgkmcnt(1)")
    for tl in range(2): mfma(O+tl*12, KF[0], PQ[tl])
    a("s_waitcnt lgkmcnt(0)")
    for tl in range(2): mfma(O+tl*12+4, KF[1], PQ[tl])
    a("s_nop 1")
    for tl in range(2): a(f"v_add_f32 {vr(O+tl*12+8)}, {sr(sEPS)}, {vr(O+tl*12+8)}")
    for tl in range(2): a(f"v_rcp_f32 {vr(O+tl*12+8)}, {vr(O+tl*12+8)}")
    a("s_nop 1")
    for tl in range(2):
        b = O+tl*12
        for i in range(8): a(f"v_mul_f32 {vr(b+i)}, {vr(b+i)}, {vr(b+8)}")
        R = O+24+tl*4
        for i in range(4): cvtpk(R+i, b+2*i, b+2*i+1)
        a(f"v_cndmask_b32 {vr(R+2)}, 0, {vr(R+2)}, {sr(sMASK48,2)}")
        a(f"v_cndmask_b32 {vr(R+3)}, 0, {vr(R+3)}, {sr(sMASK48,2)}")
        if tl == 1: a(f"s_add_u32 {sr(sT0)}, {sr(sOST)}, 16384")
        a.vmem(f"buffer_store_dwordx4 {vr(R,4)}, {vr(vL16)}, {sr(SWS,4)}, {sr(sT0 if tl else sOST)} offen sc1", "ost")
    stamp("B o stored")
    a.wait_vm_all()
    set_flag(sF2W, T)
    stamp("B flag2 set")
    a("s_barrier")
    wo_op(6, 0)(); wo_op(0, 1)()
    a("s_waitcnt vmcnt(0)")

def phase2():
    a.label("L_phase2")
    a(f"s_cmp_eq_u32 {sr(sCB)}, 7")
    a("s_cbranch_scc1 L_idle")
    ACC = 20; OF = 36; WF = 100; T = 228
    a(f"v_mov_b32 {vr(T)}, 0")
    a(f"v_mov_b32 {vr(T+1)}, 0")
    a(f"v_lshlrev_b32 {vr(T+2)}, 3, {vr(vLANE)}")
    a(f"v_add_u32 {vr(T+2)}, {P2_ZERO}, {vr(T+2)}")
    a(f"ds_write_b64 {vr(T+2)}, {vr(T,2)}")
    a("s_waitcnt lgkmcnt(0)")
    a("s_barrier")
    stamp("P2 wo landed")
    poll_issue(sF2R, T+4)
    def wreads(h, slot):
        out = []
        for t in range(4):
            base = vWO[t ^ (2 if h & 1 else 0)]
            for hf in range(2):
                out.append(f"ds_read_b64_tr_b16 {vr(WF+slot*16+t*4+hf*2,2)}, {vr(base)} offset:{h*3584 + hf*2048}")
        return out
    for h in range(8):
        for r in wreads(h, h): a(r)
    poll_finish(sF2R, T+4)
    stamp("P2 flags seen")
    for h in range(16):
        if h % 4 == 0 and h: a(f"s_add_u32 {sr(sT1)}, {sr(sOLD)}, {h*1024}")
        a.vmem(f"buffer_load_dwordx4 {vr(OF+h*4,4)}, {vr(vL16)}, {sr(SWS,4)}, {sr(sOLD if h < 4 else sT1)} offen offset:{(h%4)*1024} sc1", f"o{h}")
    a.vmem(f"buffer_load_dword {vr(T+6)}, {vr(vGT)}, {sr(SWS,4)}, {sr(sGT)} offen sc1", "g")
    a("s_waitcnt lgkmcnt(0)")
    for h in range(16):
        a.wait_vm(f"o{h}")
        rd = wreads(h + 8, h) if h < 8 else []
        if h == 8: a("s_waitcnt lgkmcnt(15)")
        if h == 9: a("s_waitcnt lgkmcnt(15)") if False else None
        if h >= 13: a(f"s_waitcnt lgkmcnt({(15-h)*8 if (15-h)*8 <= 15 else 15})")
        for t in range(4):
            mfma(ACC+t*4, WF+(h%8)*16+t*4, OF+h*4, None if h == 0 else ACC+t*4)
            for _ in range(2):
                if rd: a(rd.pop(0))
    a.wait_vm("g")
    a(f"s_cmp_eq_u32 {sr(sBR)}, 0")
    a("s_cbranch_scc1 L_p2_nog")
    a(f"ds_write_b32 {vr(vGW)}, {vr(T+6)}")
    a.label("L_p2_nog")
    a("s_nop 4")
    for t in range(4):
        a(f"ds_write_b128 {vr(vCW)}, {vr(ACC+t*4,4)} offset:{t*64}")
    a("s_waitcnt lgkmcnt(0)")
    a("s_barrier")
    A_, B_ = OF, OF+8
    a(f"ds_read_b32 {vr(T)}, {vr(vGR)}")
    a(f"ds_read_b128 {vr(A_,4)}, {vr(vCR)}")
    a(f"ds_read_b128 {vr(B_,4)}, {vr(vCR)} offset:{P2_CBSZ}")
    a(f"ds_read_b128 {vr(A_+4,4)}, {vr(vCR)} offset:16")
    a(f"ds_read_b128 {vr(B_+4,4)}, {vr(vCR)} offset:{P2_CBSZ+16}")
    a("s_waitcnt lgkmcnt(2)")
    for i in range(4): a(f"v_sub_f32 {vr(A_+i)}, {vr(A_+i)}, {vr(B_+i)}")
    for i in range(4): a(f"v_fma_f32 {vr(A_+i)}, {vr(A_+i)}, {vr(T)}, {vr(B_+i)}")
    a("s_waitcnt lgkmcnt(0)")
    for i in range(4, 8): a(f"v_sub_f32 {vr(A_+i)}, {vr(A_+i)}, {vr(B_+i)}")
    for i in range(4, 8): a(f"v_fma_f32 {vr(A_+i)}, {vr(A_+i)}, {vr(T)}, {vr(B_+i)}")
    for i in range(4): cvtpk(OF+16+i, A_+2*i, A_+2*i+1)
    a(f"buffer_store_dwordx4 {vr(OF+16,4)}, {vr(vOUT)}, {sr(SOUT,4)}, 0 offen")
    stamp("P2 done")
    a("s_endpgm")
    a.label("L_idle")
    a(f"s_lshl_b32 {sr(sT0)}, {sr(sRB)}, 3")
    a(f"s_add_u32 {sr(sT0)}, {sr(sT0)}, {sr(sHP)}")
    a(f"s_cmp_lg_u32 {sr(sT0)}, 127")
    a("s_cbranch_scc1 L_end")
    a(f"v_lshlrev_b32 v10, 5, v0")
    a(f"s_mov_b32 {sr(sCNT)}, 0")
    a.label("L_jan")
    for k in range(4):
        a(f"s_mov_b32 {sr(sT0)}, {WS_F2 + k*16384}")
        a(f"buffer_load_dwordx2 {vr(12+2*k,2)}, v10, {sr(SWS,4)}, {sr(sT0)} offen sc1")
    a(f"s_add_u32 {sr(sCNT)}, {sr(sCNT)}, 1")
    a("s_waitcnt vmcnt(0)")
    a(f"v_cmp_ne_u64 {sr(sT0,2)}, {sr(sTAG,2)}, v[12:13]")
    a(f"v_cmp_ne_u64 {sr(sT2,2)}, {sr(sTAG,2)}, v[14:15]")
    a(f"s_or_b64 {sr(sT0,2)}, {sr(sT0,2)}, {sr(sT2,2)}")
    a(f"v_cmp_ne_u64 {sr(sT2,2)}, {sr(sTAG,2)}, v[16:17]")
    a(f"s_or_b64 {sr(sT0,2)}, {sr(sT0,2)}, {sr(sT2,2)}")
    a(f"v_cmp_ne_u64 {sr(sT2,2)}, {sr(sTAG,2)}, v[18:19]")
    a(f"s_or_b64 {sr(sT0,2)}, {sr(sT0,2)}, {sr(sT2,2)}")
    a("s_cbranch_scc0 L_jand")
    a(f"s_cmp_gt_u32 {sr(sCNT)}, 0x400000")
    a("s_cbranch_scc1 L_jand")
    a("s_sleep 4")
    a("s_branch L_jan")
    a.label("L_jand")
    a("s_barrier")
    a(f"s_cmp_lg_u32 {sr(sWAVE)}, 0")
    a("s_cbranch_scc1 L_end")
    a(f"s_mov_b32 {sr(sT0)}, {WS_EPOCH}")
    set_flag(sT0, 10)
    a.label("L_end")
    a("s_endpgm")

prologue()
phase1_B()
a("s_branch L_phase2")
a.vm = []
phase1_A()
a.vm = []
phase2()

hdr = f"""; fused gated-mix kernel: generated by gen/gen2.py
; @launch grid=(256,1,1) block=(512,1,1) lds={LDS_BYTES}
.amdgcn_target "amdgcn-amd-amdhsa--gfx950"
.text
.globl {NAME}_kernel
.p2align 8
.type {NAME}_kernel,@function
"""
ftr = f"""
.section .rodata,"a"
.p2align 6
.amdhsa_kernel {NAME}_kernel
  .amdhsa_next_free_vgpr 256
  .amdhsa_next_free_sgpr 102
  .amdhsa_accum_offset 256
  .amdhsa_group_segment_fixed_size 0
  .amdhsa_kernarg_size 80
  .amdhsa_user_sgpr_count 2
  .amdhsa_user_sgpr_kernarg_segment_ptr 1
  .amdhsa_system_sgpr_workgroup_id_x 1
.end_amdhsa_kernel
"""
out = [x for x in sys.argv[1:] if not x.startswith("--")]
path = out[0] if out else f"cdna_kernels/{NAME}.s"
open(path, "w").write(hdr + "\n".join(a.lines) + ftr)
print("wrote", path, len(a.lines), "lines")
```

```python
import sys, struct, re

NAME = "gated_mix__sliding_local_dilated__linear_attn_block__prompt"
def flag(n): return ("--" + n) in sys.argv
def opt(n, d):
    for x in sys.argv:
        if x.startswith(f"--{n}="): return int(x.split("=")[1])
    return d
STAMPS, DBGST, FINE = flag("stamps"), flag("dbgstamps"), flag("fine")
ROT = flag("rot")

WS_EPOCH = 0
WS_F1 = 0x1000
WS_F2 = 0x10000
WS_KV = 0x40000
WS_GATE = 0x180000
WS_O = 0x200000
WS_STAMP = 0x600000
WS_SIZE = 0x800000

L_X = [0, 16384, 32768]
L_W = [49152, 73728, 98304]
R0 = 122880
A_HALO = R0
A_HB = R0 + 14336
A_EX = A_HB + 4096
BX = [c*16384 for c in range(7)]
BW = [114688, 131072]
BQS = [131072, 139264, 114688, 122880, 149504, 131072, 139264]
B_GW = 147456
B_KVS = B_GW + 2048
B_KVF = B_KVS + 8192
B_SY = B_KVF + 4096
assert B_SY + 64 <= 163840
P2_WO = 0
P2_ZERO = 114688
P2_G = 115200
P2_CB = 115456
P2_CBSZ = 64 * 272
LDS_BYTES = 163840

LOG2E = 1.4426950408889634
def f2u(x): return struct.unpack("<I", struct.pack("<f", x))[0]

class Asm:
    def __init__(self):
        self.lines = []; self.vm = []; self.lbl = 0; self.ds = []
    def __call__(self, s): self.lines.append("    " + s)
    def c(self, s): self.lines.append("    ; " + s)
    def label(self, name): self.lines.append(name + ":")
    def newlabel(self, p="L"):
        self.lbl += 1; return f"{p}_{self.lbl}"
    def vmem(self, s, tag): self(s); self.vm.append(tag)
    def vmem_unc(self, s): self(s)
    def wait_vm(self, tag, extra=""):
        idx = max(i for i, t in enumerate(self.vm) if t == tag)
        n = len(self.vm) - 1 - idx
        assert n <= 63
        self(f"s_waitcnt vmcnt({n}){extra}")
        self.vm = self.vm[idx + 1:]
    def wait_vm_all(self, extra=""):
        self(f"s_waitcnt vmcnt(0){extra}"); self.vm = []
    def dsr(self, text):
        m = re.search(r"v\[(\d+):(\d+)\]", text)
        self(text); self.ds.append(set(range(int(m.group(1)), int(m.group(2)) + 1)))
    def need(self, regs):
        regs = set(regs)
        idx = max((i for i, r in enumerate(self.ds) if r & regs), default=-1)
        if idx < 0: return
        n = len(self.ds) - 1 - idx
        self(f"s_waitcnt lgkmcnt({min(n, 15)})")
        self.ds = self.ds[idx + 1:] if n <= 15 else self.ds[-15:]
    def ds_all(self): self.ds = []

def vr(b, n=1): return f"v{b}" if n == 1 else f"v[{b}:{b+n-1}]"
def sr(b, n=1): return f"s{b}" if n == 1 else f"s[{b}:{b+n-1}]"
a = Asm()

sROT = 3
sU, sMP, sROLE, sEXB = 4, 5, 6, 7
SX, SW, SWS, SWOA, SWOB, SOUT, SG = 8, 12, 16, 20, 24, 28, 32
sWAVE, sMI, sNI, sRB, sHP, sTYPE = 36, 37, 38, 39, 40, 41
sTAG = 42
sT0, sT1, sT2, sT3 = 44, 45, 46, 47
sW1K, sU4K, sU6K = 48, 49, 50
sSOX, sSOW, sSOX2 = 51, 52, 53
sMASK48, sODD, sONE, sEXEC = 54, 56, 58, 60
sCB, sHALF, sCNT, sJ = 62, 63, 64, 65
sPC = 66
sL2E, sEPS = 68, 70
sST = 72
sPTR = 76
sOST, sF2W, sF2R, sOLD = 76, 77, 78, 79
sGT, sKVO, sF1W, sF1R, sK0, sBR, sGST = 80, 81, 82, 83, 84, 85, 86

vLANE, vI16, vG = 1, 2, 3
vT0, vT1, vT2, vT3, vT4, vT5 = 4, 5, 6, 7, 8, 9
vDUM = 23
vL16, vPOLL, vWOD = 236, 237, 238
vWO = [240, 241, 242, 243]
vGT, vCW, vCR, vGR, vGW, vOUT = 244, 245, 246, 247, 248, 249

stamp_idx = [0]
def stamp(name, src=None):
    if DBGST:
        i = stamp_idx[0]; stamp_idx[0] += 1
        if i > 15: return
        L = a.newlabel("L_st")
        a.c(f"stamp {i}: {name}")
        a(f"s_and_b32 s74, s2, 127")
        a(f"s_and_b32 s75, {sr(sWAVE)}, 3")
        a(f"s_or_b32 s74, s74, s75")
        if name.startswith("P2"): a(f"s_or_b32 s74, s74, s2"); a(f"s_or_b32 s74, s74, {sr(sWAVE)}")
        a(f"s_cmp_lg_u32 s74, 0")
        a(f"s_cbranch_scc1 {L}")
        a(f"s_memrealtime {sr(sST,2)}")
        a("s_waitcnt lgkmcnt(0)")
        a(f"s_sub_u32 {sr(sST)}, {sr(sST)}, s98")
        a(f"v_mov_b32 v22, {sr(sST)}")
        a(f"v_mov_b32 v21, {i*4}")
        a(f"s_mov_b64 {sr(sST,2)}, exec")
        a("s_mov_b64 exec, 1")
        a.vmem_unc(f"global_store_dword v21, v22, s[96:97]")
        a(f"s_mov_b64 exec, {sr(sST,2)}")
        a.label(L)
        return
    if not STAMPS: return
    i = stamp_idx[0]; stamp_idx[0] += 1
    a.c(f"stamp {i}: {name}")
    if src is None:
        a(f"{'s_memtime' if flag('cyc') else 's_memrealtime'} {sr(sST,2)}")
        a("s_waitcnt lgkmcnt(0)")
    else:
        a(f"s_mov_b32 {sr(sST)}, s{src}")
    a(f"v_mov_b32 v22, {sr(sST)}")
    a(f"s_lshl_b32 s74, s2, 3")
    a(f"s_or_b32 s74, s74, {sr(sWAVE)}")
    a(f"s_lshl_b32 s74, s74, 8")
    a(f"s_or_b32 s74, s74, {WS_STAMP + i*4}")
    a(f"s_mov_b64 {sr(sST,2)}, exec")
    a("s_mov_b64 exec, 1")
    a.vmem_unc(f"buffer_store_dword v22, off, {sr(SWS,4)}, s74")
    a(f"s_mov_b64 exec, {sr(sST,2)}")

def mfma(d, A, B, C=None):
    c = vr(C, 4) if C is not None else "0"
    a(f"v_mfma_f32_16x16x32_bf16 {vr(d,4)}, {vr(A,4)}, {vr(B,4)}, {c}")
def cvtpk(d, x, y): a(f"v_cvt_pk_bf16_f32 {vr(d)}, {vr(x)}, {vr(y)}")
def srd(d, p, n):
    a(f"s_mov_b32 {sr(d)}, {sr(p)}"); a(f"s_mov_b32 {sr(d+1)}, {sr(p+1)}")
    a(f"s_mov_b32 {sr(d+2)}, {n}"); a(f"s_mov_b32 {sr(d+3)}, 0x00020000")

def true_chunk(dst, c):
    if not ROT:
        a(f"s_mov_b32 {sr(dst)}, {c}"); return
    a(f"s_add_u32 {sr(dst)}, {sr(sROT)}, {c}")
    a(f"s_cmp_ge_u32 {sr(dst)}, 7")
    a(f"s_cselect_b32 s75, 7, 0")
    a(f"s_sub_u32 {sr(dst)}, {sr(dst)}, s75")

def prologue():
    a.label(f"{NAME}_kernel")
    if DBGST or STAMPS: a("s_memrealtime s[98:99]")
    a("s_cmp_ge_u32 s2, 256")
    a("s_cbranch_scc1 L_end")
    a(f"s_load_dwordx16 {sr(sPTR,16)}, s[0:1], 0")
    a(f"s_load_dwordx4 {sr(sPTR+16,4)}, s[0:1], 64")
    a(f"s_getpc_b64 {sr(sPC,2)}")
    a.label("L_pc")
    a(f"v_lshrrev_b32 {vr(vT0)}, 6, v0")
    a(f"v_and_b32 {vr(vLANE)}, 63, v0")
    a(f"v_readfirstlane_b32 {sr(sWAVE)}, {vr(vT0)}")
    a(f"v_and_b32 {vr(vI16)}, 15, v0")
    a(f"v_bfe_u32 {vr(vG)}, v0, 4, 2")
    a(f"s_and_b32 {sr(sT0)}, s2, 7")
    a(f"s_lshr_b32 {sr(sJ)}, s2, 3")
    a(f"s_lshr_b32 {sr(sT2)}, {sr(sT0)}, 1")
    a(f"s_lshl_b32 {sr(sT2)}, {sr(sT2)}, 2")
    a(f"s_and_b32 {sr(sT1)}, {sr(sJ)}, 3")
    a(f"s_add_u32 {sr(sRB)}, {sr(sT2)}, {sr(sT1)}")
    a(f"s_and_b32 {sr(sHALF)}, {sr(sT0)}, 1")
    a(f"s_lshl_b32 {sr(sT2)}, {sr(sHALF)}, 2")
    a(f"s_lshr_b32 {sr(sCB)}, {sr(sJ)}, 2")
    a(f"s_and_b32 {sr(sT3)}, {sr(sCB)}, 3")
    a(f"s_add_u32 {sr(sHP)}, {sr(sT2)}, {sr(sT3)}")
    a(f"s_lshr_b32 {sr(sTYPE)}, {sr(sJ)}, 4")
    if ROT:
        a(f"s_lshl_b32 {sr(sT1)}, {sr(sT1)}, 1")
        a(f"s_add_u32 {sr(sROT)}, {sr(sT1)}, {sr(sCB)}")
        a(f"s_cmp_ge_u32 {sr(sROT)}, 7")
        a(f"s_cselect_b32 {sr(sT0)}, 7, 0")
        a(f"s_sub_u32 {sr(sROT)}, {sr(sROT)}, {sr(sT0)}")
    else:
        a(f"s_mov_b32 {sr(sROT)}, 0")
    a(f"s_and_b32 {sr(sU)}, {sr(sWAVE)}, 3")
    a(f"s_lshr_b32 {sr(sROLE)}, {sr(sWAVE)}, 2")
    a(f"s_lshr_b32 {sr(sMP)}, {sr(sU)}, 1")
    a(f"s_and_b32 {sr(sNI)}, {sr(sWAVE)}, 1")
    a(f"s_lshl_b32 {sr(sMI)}, {sr(sMP)}, 1")
    a(f"s_add_u32 {sr(sMI)}, {sr(sMI)}, {sr(sROLE)}")
    a(f"s_lshl_b32 {sr(sW1K)}, {sr(sWAVE)}, 10")
    a(f"s_cmp_eq_u32 {sr(sROLE)}, 0")
    a("s_cbranch_scc1 L_compute")

def late_srds():
    P = sPTR
    srd(SWS, P+18, WS_SIZE)
    a(f"s_load_dwordx2 {sr(sTAG,2)}, {sr(P+18,2)}, {WS_EPOCH}")
    srd(SWOA, P+4, 401408); srd(SWOB, P+10, 401408); srd(SOUT, P+14, 1835008); srd(SG, P+12, 896)
    if DBGST:
        a(f"s_mov_b32 s96, {sr(P+16)}"); a(f"s_mov_b32 s97, {sr(P+17)}")

def compute_tag():
    a(f"s_add_u32 {sr(sTAG)}, {sr(sTAG)}, 0x7f4a7c15")
    a(f"s_addc_u32 {sr(sTAG+1)}, {sr(sTAG+1)}, 0x9e3779b9")

def late_setup(p2):
    T0, T1, T2 = vT0, vT1, vT2
    a(f"s_mov_b32 {sr(sMASK48)}, -1")
    a(f"s_mov_b32 {sr(sMASK48+1)}, 0xffff")
    a(f"v_lshlrev_b32 {vr(vL16)}, 4, {vr(vLANE)}")
    a(f"v_lshlrev_b32 {vr(vPOLL)}, 5, {vr(vI16)}")
    a(f"v_lshlrev_b32 {vr(vGT)}, 2, {vr(vI16)}")
    a(f"s_lshl_b32 {sr(sT0)}, {sr(sRB)}, 1")
    a(f"s_add_u32 {sr(sT0)}, {sr(sT0)}, 1")
    a(f"s_sub_u32 {sr(sT0)}, {sr(sT0)}, {sr(sTYPE)}")
    a(f"s_lshl_b32 {sr(sT0)}, {sr(sT0)}, 2")
    a(f"s_add_u32 {sr(sT0)}, {sr(sT0)}, {sr(sMI)}")
    a(f"s_lshl_b32 {sr(sT1)}, {sr(sHP)}, 1")
    a(f"s_add_u32 {sr(sT1)}, {sr(sT1)}, {sr(sNI)}")
    a(f"s_lshl_b32 {sr(sT2)}, {sr(sT0)}, 5")
    a(f"s_add_u32 {sr(sT2)}, {sr(sT2)}, {sr(sT1)}")
    a(f"s_lshl_b32 {sr(sT2)}, {sr(sT2)}, 10")
    a(f"s_add_u32 {sr(sOST)}, {sr(sT2)}, {WS_O}")
    a(f"s_lshl_b32 {sr(sT2)}, {sr(sT0)}, 4")
    a(f"s_add_u32 {sr(sT2)}, {sr(sT2)}, {sr(sT1)}")
    a(f"s_lshl_b32 {sr(sT2)}, {sr(sT2)}, 5")
    a(f"s_add_u32 {sr(sF2W)}, {sr(sT2)}, {WS_F2}")
    if not p2: return
    a(f"s_lshl_b32 {sr(sT0)}, {sr(sRB)}, 4")
    a(f"s_add_u32 {sr(sT0)}, {sr(sT0)}, {sr(sWAVE)}")
    a(f"s_lshl_b32 {sr(sT1)}, {sr(sT0)}, 14")
    a(f"s_add_u32 {sr(sOLD)}, {sr(sT1)}, {WS_O}")
    a(f"s_lshl_b32 {sr(sT0)}, {sr(sRB)}, 3")
    a(f"s_lshr_b32 {sr(sT1)}, {sr(sWAVE)}, 1")
    a(f"s_add_u32 {sr(sT1)}, {sr(sT1)}, {sr(sT0)}")
    a(f"s_lshl_b32 {sr(sT1)}, {sr(sT1)}, 9")
    a(f"s_add_u32 {sr(sF2R)}, {sr(sT1)}, {WS_F2}")
    a(f"s_add_u32 {sr(sT0)}, {sr(sT0)}, {sr(sWAVE)}")
    a(f"s_lshl_b32 {sr(sT0)}, {sr(sT0)}, 6")
    a(f"s_add_u32 {sr(sGT)}, {sr(sT0)}, {WS_GATE}")
    a(f"v_lshrrev_b32 {vr(T0)}, 3, {vr(vLANE)}")
    a(f"v_and_b32 {vr(T1)}, 7, {vr(vLANE)}")
    a(f"v_lshlrev_b32 {vr(T2)}, 1, {vr(vG)}")
    a(f"v_xor_b32 {vr(T2)}, {vr(T1)}, {vr(T2)}")
    a(f"v_mul_u32_u24 {vr(vOUT)}, 896, {vr(T0)}")
    a(f"s_mul_i32 {sr(sT0)}, {sr(sWAVE)}, {8*896}")
    a(f"s_lshl_b32 {sr(sT1)}, {sr(sHP)}, 7")
    a(f"s_add_u32 {sr(sT0)}, {sr(sT0)}, {sr(sT1)}")
    a(f"v_add_u32 {vr(vWOD)}, {sr(sT0)}, {vr(vOUT)}")
    a(f"v_lshl_add_u32 {vr(vWOD)}, {vr(T2)}, 4, {vr(vWOD)}")
    a(f"v_lshl_add_u32 {vr(vOUT)}, {vr(T1)}, 4, {vr(vOUT)}")
    a(f"s_lshl_b32 {sr(sT0)}, {sr(sRB)}, 3")
    a(f"s_add_u32 {sr(sT0)}, {sr(sT0)}, {sr(sWAVE)}")
    a(f"s_mul_i32 {sr(sT0)}, {sr(sT0)}, {16*896}")
    a(f"s_add_u32 {sr(sT0)}, {sr(sT0)}, {sr(sT1)}")
    a(f"v_add_u32 {vr(vOUT)}, {sr(sT0)}, {vr(vOUT)}")
    a(f"s_mul_i32 {sr(sT0)}, {sr(sWAVE)}, {16*144}")
    a(f"s_add_u32 {sr(sT0)}, {sr(sT0)}, {P2_CB}")
    a(f"v_mul_u32_u24 {vr(vCR)}, 144, {vr(T0)}")
    a(f"v_lshl_add_u32 {vr(vCR)}, {vr(T1)}, 4, {vr(vCR)}")
    a(f"v_add_u32 {vr(vCR)}, {sr(sT0)}, {vr(vCR)}")
    a(f"v_mul_u32_u24 {vr(vCW)}, 144, {vr(vI16)}")
    a(f"v_lshl_add_u32 {vr(vCW)}, {vr(vG)}, 3, {vr(vCW)}")
    a(f"v_add_u32 {vr(vCW)}, {sr(sT0)}, {vr(vCW)}")
    a(f"v_lshrrev_b32 {vr(T0)}, 2, {vr(vI16)}")
    a(f"v_lshl_add_u32 {vr(T1)}, {vr(vG)}, 2, {vr(T0)}")
    a(f"v_lshlrev_b32 {vr(T1)}, 7, {vr(T1)}")
    a(f"v_and_b32 {vr(T2)}, 3, {vr(vI16)}")
    a(f"v_lshl_add_u32 {vr(T1)}, {vr(T2)}, 3, {vr(T1)}")
    a(f"v_lshrrev_b32 {vr(T0)}, 1, {vr(T0)}")
    a(f"v_and_b32 {vr(T2)}, 1, {vr(vG)}")
    a(f"v_lshl_or_b32 {vr(T0)}, {vr(T2)}, 1, {vr(T0)}")
    a(f"v_lshl_add_u32 {vr(vWO[0])}, {vr(T0)}, 5, {vr(T1)}")
    for t in range(1, 4):
        a(f"v_xor_b32 {vr(vWO[t])}, {t*32}, {vr(vWO[0])}")

A_ONES, A_BIAS, A_SH, A_vEX, A_vPK, A_vPV, A_vHW = 216, 220, 226, 227, 228, 229, 230
def setup_A_consts():
    T0, T1, T2, T3, T4 = vT0, vT1, vT2, vT3, vT4
    BIAS = A_BIAS
    a(f"s_mov_b32 {sr(sODD)}, 0xaaaaaaaa"); a(f"s_mov_b32 {sr(sODD+1)}, 0xaaaaaaaa")
    a(f"s_mov_b32 {sr(sK0)}, {f2u(28**-0.5 * LOG2E)}")
    for i in range(4): a(f"v_mov_b32 {vr(A_ONES+i)}, 0x3f803f80")
    a(f"v_and_b32 {vr(T0)}, 1, {vr(vI16)}")
    a(f"v_lshlrev_b32 {vr(A_SH)}, 4, {vr(T0)}")
    a(f"v_lshl_add_u32 {vr(T1)}, {vr(vG)}, 2, {vr(T0)}")
    a(f"v_mov_b32 {vr(T2)}, 0xf149f2ca")
    a(f"v_cmp_le_u32 vcc, {vr(T1)}, {vr(vI16)}")
    a(f"v_add_u32 {vr(T3)}, 2, {vr(T1)}")
    a("s_nop 0")
    a(f"v_cndmask_b32 {vr(BIAS+2)}, {vr(T2)}, 0, vcc")
    a(f"v_cmp_le_u32 vcc, {vr(T3)}, {vr(vI16)}")
    a(f"v_add_u32 {vr(T4)}, 2, {vr(vI16)}")
    a("s_nop 0")
    a(f"v_cndmask_b32 {vr(BIAS+3)}, {vr(T2)}, 0, vcc")
    a(f"v_cmp_ge_u32 vcc, {vr(T1)}, {vr(T4)}")
    a("s_nop 1")
    a(f"v_cndmask_b32 {vr(BIAS+0)}, {vr(T2)}, 0, vcc")
    a(f"v_cmp_ge_u32 vcc, {vr(T3)}, {vr(T4)}")
    a("s_nop 1")
    a(f"v_cndmask_b32 {vr(BIAS+1)}, {vr(T2)}, 0, vcc")
    a(f"s_or_b32 {sr(sT0)}, {sr(sRB)}, {sr(sMI)}")
    a(f"s_cmp_eq_u32 {sr(sT0)}, 0")
    a(f"s_cselect_b32 {sr(sT0)}, 0xf149f2ca, 0")
    a(f"v_min_f32 {vr(BIAS+4)}, {sr(sT0)}, {vr(BIAS+0)}")
    a(f"v_min_f32 {vr(BIAS+5)}, {sr(sT0)}, {vr(BIAS+1)}")
    a(f"s_lshl_b32 {sr(sT0)}, {sr(sNI)}, 11")
    a(f"s_add_u32 {sr(sT1)}, {sr(sT0)}, {A_EX}")
    a(f"s_add_u32 {sr(sT0)}, {sr(sT0)}, {A_HB}")
    a(f"v_add_u32 {vr(A_vEX)}, {sr(sT1)}, {vr(vL16)}")
    a(f"s_lshl_b32 {sr(sT2)}, {sr(sMP)}, 12")
    a(f"v_add_u32 {vr(A_vEX)}, {sr(sT2)}, {vr(A_vEX)}")
    a(f"s_cmp_eq_u32 {sr(sMP)}, 0")
    a(f"s_cselect_b32 {sr(sT2)}, {sr(sT0)}, {sr(sT1)}")
    a(f"v_add_u32 {vr(A_vPK)}, {sr(sT2)}, {vr(vL16)}")
    a(f"s_lshl_b32 {sr(sT2)}, {sr(sMP)}, 10")
    a(f"s_add_u32 {sr(sT0)}, {sr(sT0)}, {sr(sT2)}")
    a(f"v_add_u32 {vr(A_vHW)}, {sr(sT0)}, {vr(vL16)}")

B_vSY, B_vSW, B_vSR, B_vPQ, B_vKW, B_vKR, B_vZR, B_SEL = 216, 217, 218, 219, 220, 221, 222, 224
B_EPS4 = 232
B_vSK = 223
B_vONE = 250
def setup_B_consts():
    a(f"s_mov_b32 {sr(sONE)}, 0x10001000"); a(f"s_mov_b32 {sr(sONE+1)}, 0x10001000")
    a(f"s_mov_b32 {sr(sL2E)}, {f2u(LOG2E)}"); a(f"s_mov_b32 {sr(sL2E+1)}, {f2u(LOG2E)}")
    a(f"s_mov_b32 {sr(sEPS)}, {f2u(1e-6)}"); a(f"s_mov_b32 {sr(sEPS+1)}, {f2u(1e-6)}")
    a(f"s_lshl_b32 {sr(sT0)}, {sr(sU)}, 11")
    a(f"s_add_u32 {sr(sT1)}, {sr(sT0)}, {B_KVS}")
    a(f"v_add_u32 {vr(B_vSW)}, {sr(sT1)}, {vr(vL16)}")
    a(f"s_xor_b32 {sr(sT1)}, {sr(sT0)}, 4096")
    a(f"s_add_u32 {sr(sT1)}, {sr(sT1)}, {B_KVS}")
    a(f"v_add_u32 {vr(B_vSR)}, {sr(sT1)}, {vr(vL16)}")
    a(f"v_mov_b32 {vr(B_vSY)}, {B_SY}")
    a(f"s_lshl_b32 {sr(sT1)}, {sr(sU)}, 2")
    a(f"v_add_u32 {vr(B_vPQ)}, {sr(sT1)}, {vr(B_vSY)}")
    a(f"s_lshl_b32 {sr(sT1)}, {sr(sNI)}, 2")
    a(f"s_add_u32 {sr(sT1)}, {sr(sT1)}, 16")
    a(f"v_add_u32 {vr(B_vSK)}, {sr(sT1)}, {vr(B_vSY)}")
    a(f"v_mov_b32 {vr(B_vONE)}, 1")
    a(f"s_lshl_b32 {sr(sT0)}, {sr(sHP)}, 2")
    a(f"s_add_u32 {sr(sT0)}, {sr(sT0)}, {sr(sU)}")
    a(f"s_lshl_b32 {sr(sT1)}, {sr(sT0)}, 14")
    a(f"s_add_u32 {sr(sKVO)}, {sr(sT1)}, {WS_KV}")
    a(f"s_lshl_b32 {sr(sT1)}, {sr(sT0)}, 9")
    a(f"s_add_u32 {sr(sF1R)}, {sr(sT1)}, {WS_F1}")
    a(f"s_lshl_b32 {sr(sT1)}, {sr(sRB)}, 5")
    a(f"s_add_u32 {sr(sF1W)}, {sr(sF1R)}, {sr(sT1)}")
    a(f"s_lshl_b32 {sr(sT0)}, {sr(sNI)}, 11")
    a(f"s_add_u32 {sr(sT0)}, {sr(sT0)}, {B_KVF}")
    a(f"v_add_u32 {vr(B_vKR)}, {sr(sT0)}, {vr(vL16)}")
    a(f"s_lshl_b32 {sr(sT1)}, {sr(sMP)}, 3")
    a(f"v_add_u32 {vr(B_vKW)}, {sr(sT1)}, {vr(B_vKR)}")
    a(f"v_lshlrev_b32 {vr(B_vZR)}, 8, {vr(vG)}")
    a(f"v_add_u32 {vr(B_vZR)}, {sr(sT0)}, {vr(B_vZR)}")
    a(f"s_lshl_b32 {sr(sT0)}, {sr(sRB)}, 2")
    a(f"s_add_u32 {sr(sT0)}, {sr(sT0)}, {sr(sU)}")
    a(f"s_lshl_b32 {sr(sT0)}, {sr(sT0)}, 7")
    a(f"s_add_u32 {sr(sGST)}, {sr(sT0)}, {WS_GATE}")
    T0, T1, T2 = vT0, vT1, vT2
    a(f"v_lshrrev_b32 {vr(T0)}, 2, {vr(vI16)}")
    a(f"v_and_b32 {vr(T1)}, 1, {vr(vI16)}")
    a(f"v_lshlrev_b32 {vr(T1)}, 4, {vr(T1)}")
    a(f"v_mov_b32 {vr(T2)}, 0x3f80")
    a(f"v_lshlrev_b32 {vr(T1)}, {vr(T1)}, {vr(T2)}")
    a(f"v_cmp_eq_u32 vcc, {vr(T0)}, {vr(vG)}")
    a(f"v_and_b32 {vr(T2)}, 2, {vr(vI16)}")
    a("s_nop 0")
    a(f"v_cndmask_b32 {vr(T1)}, 0, {vr(T1)}, vcc")
    a(f"v_cmp_eq_u32 vcc, 0, {vr(T2)}")
    for i in (2, 3, 4, 5): a(f"v_mov_b32 {vr(B_SEL+i)}, 0")
    a(f"v_cndmask_b32 {vr(B_SEL+0)}, 0, {vr(T1)}, vcc")
    a(f"v_cndmask_b32 {vr(B_SEL+1)}, {vr(T1)}, 0, vcc")
    a(f"v_mov_b32 {vr(B_SEL+6)}, {vr(B_SEL+0)}")
    a(f"v_mov_b32 {vr(B_SEL+7)}, {vr(B_SEL+1)}")
    for i in range(4): a(f"v_mov_b32 {vr(B_EPS4+i)}, {sr(sEPS)}")

def set_flag(soff, vtmp):
    a(f"v_mov_b32 {vr(vtmp)}, {sr(sTAG)}")
    a(f"v_mov_b32 {vr(vtmp+1)}, {sr(sTAG+1)}")
    a("s_mov_b64 exec, 1")
    a.vmem(f"buffer_store_dwordx2 {vr(vtmp,2)}, off, {sr(SWS,4)}, {sr(soff)} sc1", "flag")
    a("s_mov_b64 exec, -1")

def poll_issue(soff, vtmp):
    a.vmem(f"buffer_load_dwordx2 {vr(vtmp,2)}, {vr(vPOLL)}, {sr(SWS,4)}, {sr(soff)} offen sc1", "poll")

def poll_finish(soff, vtmp):
    L = a.newlabel("L_poll"); Ld = a.newlabel("L_polld")
    a(f"s_mov_b32 {sr(sCNT)}, 0")
    a.label(L)
    a("s_waitcnt vmcnt(0)")
    a(f"v_cmp_ne_u64 vcc, {sr(sTAG,2)}, {vr(vtmp,2)}")
    a(f"s_add_u32 {sr(sCNT)}, {sr(sCNT)}, 1")
    a(f"s_cbranch_vccz {Ld}")
    a(f"s_cmp_gt_u32 {sr(sCNT)}, 0x400000")
    a(f"s_cbranch_scc1 {Ld}")
    a(f"buffer_load_dwordx2 {vr(vtmp,2)}, {vr(vPOLL)}, {sr(SWS,4)}, {sr(soff)} offen sc1")
    a(f"s_branch {L}")
    a.label(Ld)
    a.vm = []

def lds_signal(addr, off=0):
    a("s_mov_b64 exec, 1")
    a(f"ds_add_u32 {vr(addr)}, {vr(B_vONE)} offset:{off}")
    a("s_mov_b64 exec, -1")

def lds_spin(reads, total, tmp):
    L = a.newlabel("L_spin"); Ld = a.newlabel("L_spind")
    a(f"s_mov_b32 {sr(sCNT)}, 0")
    a.label(L)
    for i, (ad, off) in enumerate(reads): a(f"ds_read_b32 {vr(tmp+i)}, {vr(ad)} offset:{off}")
    a(f"s_add_u32 {sr(sCNT)}, {sr(sCNT)}, 1")
    a("s_waitcnt lgkmcnt(0)")
    for i in range(1, len(reads)): a(f"v_add_u32 {vr(tmp)}, {vr(tmp)}, {vr(tmp+i)}")
    a(f"s_cmp_gt_u32 {sr(sCNT)}, 0x1000000")
    a(f"v_readfirstlane_b32 {sr(sT0)}, {vr(tmp)}")
    a(f"s_cbranch_scc1 {Ld}")
    a(f"s_cmp_lg_u32 {sr(sT0)}, {total}")
    a(f"s_cbranch_scc1 {L}")
    a.label(Ld)

def w_read_addr(dst, t, nseg, base):
    t0, t1 = vT0, vT1
    a(f"v_and_b32 {vr(t0)}, 3, {vr(vI16)}")
    a(f"v_lshlrev_b32 {vr(t0)}, 3, {vr(t0)}")
    a(f"s_mul_i32 {sr(sT0)}, {sr(sNI)}, 56")
    if t: a(f"s_add_u32 {sr(sT0)}, {sr(sT0)}, 32")
    a(f"v_add_u32 {vr(t0)}, {sr(sT0)}, {vr(t0)}")
    a(f"v_and_b32 {vr(t1)}, 8, {vr(vI16)}")
    a(f"v_lshlrev_b32 {vr(t1)}, 2, {vr(t1)}")
    a(f"v_xor_b32 {vr(t0)}, {vr(t0)}, {vr(t1)}")
    a(f"v_and_b32 {vr(t1)}, 1, {vr(vG)}")
    a(f"v_lshlrev_b32 {vr(t1)}, 6, {vr(t1)}")
    a(f"v_xor_b32 {vr(t0)}, {vr(t0)}, {vr(t1)}")
    a(f"v_lshrrev_b32 {vr(t1)}, 2, {vr(vI16)}")
    a(f"v_lshl_add_u32 {vr(t0)}, {vr(t1)}, 7, {vr(t0)}")
    a(f"v_mul_u32_u24 {vr(t1)}, {nseg*1024}, {vr(vG)}")
    a(f"v_add_u32 {vr(t0)}, {vr(t0)}, {vr(t1)}")
    a(f"v_add_u32 {vr(dst)}, {base}, {vr(t0)}")

def x_read_addr(d0, d1, d2, d3):
    a(f"v_lshrrev_b32 {vr(vT5)}, 1, {vr(vI16)}")
    a(f"v_xor_b32 {vr(vT5)}, {vr(vG)}, {vr(vT5)}")
    a(f"v_lshlrev_b32 {vr(vT5)}, 4, {vr(vT5)}")
    a(f"v_lshl_add_u32 {vr(vT5)}, {vr(vI16)}, 7, {vr(vT5)}")
    a(f"s_lshl_b32 {sr(sT1)}, {sr(sMP)}, 13")
    a(f"v_add_u32 {vr(d0)}, {sr(sT1)}, {vr(vT5)}")
    a(f"v_xor_b32 {vr(d1)}, 64, {vr(d0)}")
    if d2 is not None:
        a(f"v_add_u32 {vr(d2)}, 65536, {vr(d0)}")
        a(f"v_add_u32 {vr(d3)}, 65536, {vr(d1)}")

def pack4(d, t0, t1):
    cvtpk(d, t0, t0+1); cvtpk(d+1, t0+2, t0+3); cvtpk(d+2, t1, t1+1); cvtpk(d+3, t1+2, t1+3)

def R4(b): return list(range(b, b+4))

def sched_step(ms, rd, tail):
    rd = list(rd); nm = len(ms); nr = len(rd); done = 0
    span = max(1, nm - tail)
    for i, (fn, regs) in enumerate(ms):
        a.need(regs)
        fn()
        want = min(nr, -(-(i + 1) * nr // span))
        while done < want:
            a.dsr(rd[done]); done += 1
    while done < nr:
        a.dsr(rd[done]); done += 1

def o_B(PQ, T, O, p):
    KF = [T, T+4]; ZF = T+8
    a(f"ds_read_b128 {vr(ZF,4)}, {vr(B_vZR)} offset:{1024 + 12*16}")
    a(f"ds_read_b128 {vr(KF[0],4)}, {vr(B_vKR)}")
    a(f"ds_read_b128 {vr(KF[1],4)}, {vr(B_vKR)} offset:1024")
    a("s_waitcnt lgkmcnt(2)")
    for tl in range(2): mfma(O+tl*12+8, ZF, PQ+tl*4)
    a("s_waitcnt lgkmcnt(1)")
    for tl in range(2): mfma(O+tl*12, KF[0], PQ+tl*4)
    a("s_waitcnt lgkmcnt(0)")
    for tl in range(2): mfma(O+tl*12+4, KF[1], PQ+tl*4)
    a("s_nop 1")
    for tl in range(2): a(f"v_add_f32 {vr(O+tl*12+8)}, {sr(sEPS)}, {vr(O+tl*12+8)}")
    for tl in range(2): a(f"v_rcp_f32 {vr(O+tl*12+8)}, {vr(O+tl*12+8)}")
    a(f"s_add_u32 {sr(sT0)}, {sr(sOST)}, 16384")
    a("s_nop 0")
    for tl in range(2):
        b = O+tl*12
        for i in range(8): a(f"v_mul_f32 {vr(b+i)}, {vr(b+i)}, {vr(b+8)}")
        Rr = O+24+tl*4
        for i in range(4): cvtpk(Rr+i, b+2*i, b+2*i+1)
        a(f"v_cndmask_b32 {vr(Rr+2)}, 0, {vr(Rr+2)}, {sr(sMASK48,2)}")
        a(f"v_cndmask_b32 {vr(Rr+3)}, 0, {vr(Rr+3)}, {sr(sMASK48,2)}")
        a(f"buffer_store_dwordx4 {vr(Rr,4)}, {vr(vL16)}, {sr(SWS,4)}, {sr(sT0 if tl else sOST)} offen sc1")
    stamp(p + " o stored")
    a("s_waitcnt vmcnt(0)")
    set_flag(sF2W, T)
    stamp(p + " flag2 set")
    a("s_endpgm")

def phi_ops(base, n, tmp):
    seq = []
    for i in range(0, n, 2): seq.append(f"v_pk_mul_f32 {vr(tmp+i,2)}, {vr(base+i,2)}, {sr(sL2E,2)}")
    for i in range(n): seq.append(f"v_exp_f32 {vr(tmp+i)}, {vr(tmp+i)} clamp")
    for i in range(n): seq.append(f"v_max_f32 {vr(base+i)}, {sr(sEPS)}, {vr(base+i)}")
    for i in range(0, n, 2): seq.append(f"v_pk_add_f32 {vr(base+i,2)}, {vr(base+i,2)}, {vr(tmp+i,2)}")
    return seq

def loader():
    vXG0, vXG1, vWG0, vWG1, vH0, vH1 = 10, 11, 12, 13, 14, 15
    a.c("================ loader waves")
    a(f"s_lshl_b32 {sr(sU4K)}, {sr(sU)}, 12")
    a(f"s_mul_i32 {sr(sU6K)}, {sr(sU)}, 6144")
    a(f"v_lshrrev_b32 {vr(vT0)}, 3, {vr(vLANE)}")
    a(f"v_and_b32 {vr(vT1)}, 7, {vr(vLANE)}")
    a(f"v_xor_b32 {vr(vT2)}, {vr(vT1)}, {vr(vG)}")
    a(f"s_lshl_b32 {sr(sT0)}, {sr(sRB)}, 7")
    a(f"s_lshl_b32 {sr(sT1)}, {sr(sU)}, 5")
    a(f"s_add_u32 {sr(sT0)}, {sr(sT0)}, {sr(sT1)}")
    a(f"s_mul_i32 {sr(sT0)}, {sr(sT0)}, 896")
    a(f"v_mul_u32_u24 {vr(vT3)}, 896, {vr(vT0)}")
    a(f"v_lshl_add_u32 {vr(vT3)}, {vr(vT2)}, 4, {vr(vT3)}")
    a(f"v_add_u32 {vr(vXG0)}, {sr(sT0)}, {vr(vT3)}")
    a(f"v_xor_b32 {vr(vT4)}, 64, {vr(vT3)}")
    a(f"v_add_u32 {vr(vT4)}, {8*896-1024}, {vr(vT4)}")
    a(f"v_add_u32 {vr(vXG1)}, {sr(sT0)}, {vr(vT4)}")
    a(f"v_and_b32 {vr(vT2)}, 1, {vr(vG)}")
    a(f"v_lshlrev_b32 {vr(vT2)}, 1, {vr(vT2)}")
    a(f"v_xor_b32 {vr(vT2)}, {vr(vT1)}, {vr(vT2)}")
    a(f"v_xor_b32 {vr(vT5)}, 4, {vr(vT2)}")
    a(f"v_min_u32 {vr(vT2)}, 6, {vr(vT2)}")
    a(f"v_min_u32 {vr(vT5)}, 6, {vr(vT5)}")
    a(f"s_mul_i32 {sr(sT0)}, {sr(sU)}, {16*2688}")
    a(f"s_mul_i32 {sr(sT1)}, {sr(sHP)}, 112")
    a(f"s_add_u32 {sr(sT0)}, {sr(sT0)}, {sr(sT1)}")
    a(f"v_mul_u32_u24 {vr(vWG0)}, 2688, {vr(vT0)}")
    a(f"v_add_u32 {vr(vWG0)}, {sr(sT0)}, {vr(vWG0)}")
    a(f"v_lshl_add_u32 {vr(vWG1)}, {vr(vT5)}, 4, {vr(vWG0)}")
    a(f"v_add_u32 {vr(vWG1)}, {8*2688}, {vr(vWG1)}")
    a(f"v_lshl_add_u32 {vr(vWG0)}, {vr(vT2)}, 4, {vr(vWG0)}")
    a("s_waitcnt lgkmcnt(0)")
    P = sPTR
    srd(SX, P+0, 1835008)
    a(f"s_cmp_eq_u32 {sr(sTYPE)}, 1")
    a(f"s_cselect_b32 {sr(SW)}, {sr(P+2)}, {sr(P+8)}")
    a(f"s_cselect_b32 {sr(SW+1)}, {sr(P+3)}, {sr(P+9)}")
    a(f"s_mov_b32 {sr(SW+2)}, 1204224")
    a(f"s_mov_b32 {sr(SW+3)}, 0x00020000")
    a("s_cbranch_scc0 L_ldB")
    def issue_x(c, base, tag):
        a(f"s_add_u32 m0, {sr(sU4K)}, {base}")
        a(f"s_mov_b32 {sr(sSOX)}, {c*128}")
        a(f"s_mov_b32 {sr(sSOX2)}, {c*128 + 16*896-2048}")
        a.vmem(f"buffer_load_dwordx4 {vr(vXG0)}, {sr(SX,4)}, {sr(sSOX)} offen lds", tag)
        a.vmem(f"buffer_load_dwordx4 {vr(vXG1)}, {sr(SX,4)}, {sr(sSOX)} offen offset:1024 lds", tag)
        a.vmem(f"buffer_load_dwordx4 {vr(vXG0)}, {sr(SX,4)}, {sr(sSOX2)} offen offset:2048 lds", tag)
        a.vmem(f"buffer_load_dwordx4 {vr(vXG1)}, {sr(SX,4)}, {sr(sSOX2)} offen offset:3072 lds", tag)
    def issue_w(c, base, segs, ubase, tag):
        n = len(segs)
        for v in range(2):
            for i, sg in enumerate(segs):
                a(f"s_add_u32 m0, {sr(ubase)}, {base + v*n*1024 + i*1024 - sg*896}")
                a(f"s_mov_b32 {sr(sSOW)}, {c*172032}")
                off = f" offset:{sg*896}" if sg else ""
                a.vmem(f"buffer_load_dwordx4 {vr(vWG0 if v == 0 else vWG1)}, {sr(SW,4)}, {sr(sSOW)} offen{off} lds", tag)
    def wo_prefetch(srdreg):
        a(f"s_and_b32 {sr(sT0)}, {sr(sJ)}, 15")
        a(f"s_lshl_b32 {sr(sT0)}, {sr(sT0)}, 2")
        a(f"s_add_u32 {sr(sT0)}, {sr(sT0)}, {sr(sU)}")
        a(f"s_lshl_b32 {sr(sT0)}, {sr(sT0)}, 13")
        a(f"v_lshlrev_b32 {vr(vH0)}, 7, {vr(vLANE)}")
        a.vmem(f"buffer_load_dword {vr(vDUM)}, {vr(vH0)}, {sr(srdreg,4)}, {sr(sT0)} offen", "pfwo")
    def first_stamps(p):
        if STAMPS:
            a("s_memrealtime s[88:89]")
            a("s_waitcnt lgkmcnt(0)")
            stamp(p + " entry", 98); stamp(p + " c0 issued", 96); stamp(p + " c1 issued", 88)
    def chunkA(c):
        issue_x(c, L_X[c % 3], f"c{c}"); issue_w(c, L_W[c % 3], (0, 1, 2), sU6K, f"c{c}")
    chunkA(0)
    if STAMPS: a("s_memrealtime s[96:97]")
    a(f"s_lshl_b32 {sr(sT0)}, {sr(sRB)}, 7")
    a(f"s_sub_u32 {sr(sT0)}, {sr(sT0)}, 16")
    a(f"s_mul_i32 {sr(sT0)}, {sr(sT0)}, 896")
    a(f"v_add_u32 {vr(vH0)}, {sr(sT0)}, {vr(vT3)}")
    a(f"v_add_u32 {vr(vH1)}, {sr(sT0)}, {vr(vT4)}")
    a(f"s_lshl_b32 {sr(sT2)}, {sr(sU)}, 11")
    a(f"s_lshl_b32 {sr(sT1)}, {sr(sU)}, 7")
    a(f"s_add_u32 {sr(sT3)}, {sr(sT1)}, 512")
    a(f"s_add_u32 m0, {sr(sT2)}, {A_HALO}")
    a(f"s_cmp_eq_u32 {sr(sRB)}, 0")
    a(f"s_cselect_b32 {sr(sT1)}, 0, {sr(sT1)}")
    a(f"s_cselect_b32 {sr(sT3)}, 0, {sr(sT3)}")
    a.vmem_unc(f"buffer_load_dwordx4 {vr(vH0)}, {sr(SX,4)}, {sr(sT1)} offen lds")
    a.vmem_unc(f"buffer_load_dwordx4 {vr(vH1)}, {sr(SX,4)}, {sr(sT1)} offen offset:1024 lds")
    a(f"s_cmp_eq_u32 {sr(sU)}, 3")
    a("s_cbranch_scc1 L_ld_sided")
    a(f"s_add_u32 m0, {sr(sT2)}, {A_HALO + 8192}")
    a("s_nop 0")
    a.vmem_unc(f"buffer_load_dwordx4 {vr(vH0)}, {sr(SX,4)}, {sr(sT3)} offen lds")
    a.vmem_unc(f"buffer_load_dwordx4 {vr(vH1)}, {sr(SX,4)}, {sr(sT3)} offen offset:1024 lds")
    a.label("L_ld_sided")
    chunkA(1)
    late_srds()
    first_stamps("L")
    for c in range(7):
        if c == 0:
            n = len([t for t in a.vm if t != "c0"])
            a(f"s_waitcnt vmcnt({n}) lgkmcnt(0)"); a.vm = [t for t in a.vm if t != "c0"]
        else:
            a.wait_vm(f"c{c}")
        a("s_barrier")
        if c == 0: compute_tag()
        if c + 2 < 7: chunkA(c + 2)
        if c == 4:
            wo_prefetch(SWOB); late_setup(True)
    a("s_barrier")
    if flag("wolate"): a("s_barrier")
    a(f"s_cmp_eq_u32 {sr(sHP)}, 7")
    a("s_cbranch_scc1 L_idle2")
    a(f"v_subrev_u32 v16, {32*896}, {vr(vWOD)}")
    for b in range(2):
        for n in range(7):
            for hw in range(2):
                a(f"s_add_u32 m0, {sr(sW1K)}, {P2_WO + b*57344 + n*8192 - hw*4096}")
                a(f"s_mov_b32 {sr(sT2)}, {n*57344}")
                a(f"buffer_load_dwordx4 {vr(vWOD if hw == 0 else 16)}, {sr(SWOA if b==0 else SWOB,4)}, {sr(sT2)} offen lds")
    stamp("L wo issued")
    a("s_branch L_phase2")
    a.label("L_ldB")
    a.vm = []
    sU2K = sU6K
    a(f"s_lshl_b32 {sr(sU2K)}, {sr(sU)}, 11")
    issue_x(0, BX[0], "c0"); issue_w(0, BW[0], (1, 2), sU4K, "c0")
    if STAMPS: a("s_memrealtime s[96:97]")
    issue_x(1, BX[1], "c1"); issue_w(1, BW[1], (1, 2), sU4K, "c1")
    issue_x(2, BX[2], "c2")
    late_srds()
    first_stamps("M")
    vXR = [16, 17, 18, 19]; vQR = [251, 252]; vGR_ = 15
    for c in range(7):
        a.wait_vm(f"c{c}", " lgkmcnt(0)" if c == 0 else "")
        a("s_barrier")
        if c == 0: compute_tag()
        if 1 <= c <= 5: issue_w(c + 1, BW[(c + 1) % 2], (1, 2), sU4K, f"c{c+1}")
        if c + 3 < 7: issue_x(c + 3, BX[c + 3], f"c{c+3}")
        if c == 3:
            L = a.newlabel("L_gw")
            a(f"s_cmp_lg_u32 {sr(sU)}, 0")
            a(f"s_cbranch_scc1 {L}")
            a(f"v_lshlrev_b32 {vr(vH0)}, 4, {vr(vLANE)}")
            a(f"s_mov_b32 m0, {B_GW}")
            a("s_nop 0")
            a.vmem_unc(f"buffer_load_dwordx4 {vr(vH0)}, {sr(SG,4)}, 0 offen lds")
            a.label(L)
        if c == 4:
            late_setup(False); setup_B_consts()
            x_read_addr(*vXR)
            for t in range(2): w_read_addr(vQR[t], t, 1, BW[0])
            a(f"v_lshlrev_b32 {vr(vGR_)}, 4, {vr(vG)}")
            a(f"v_add_u32 {vr(vGR_)}, {B_GW}, {vr(vGR_)}")
        if c == 5: wo_prefetch(SWOA)
        if c == 6:
            for q in (0, 1): issue_w(q, BQS[q], (0,), sU2K, "g0")
    a("s_barrier")
    stamp("M barH")
    SETS = [24, 52]; AQ = 112; AG = 144; EPS4 = B_EPS4
    def qreads(k, S):
        c, ks = divmod(k, 2)
        xr = vXR[(2 if c >= 4 else 0) + ks]; xo = BX[c] - (65536 if c >= 4 else 0)
        wb = BQS[c] - BW[0] + ks*4096
        out = [f"ds_read_b128 {vr(S,4)}, {vr(xr)} offset:{xo}"]
        out += [f"ds_read_b64_tr_b16 {vr(S+20+2*h,2)}, {vr(vQR[0])} offset:{wb + h*512}" for h in range(2)]
        out += [f"ds_read_b128 {vr(S+tl*4,4)}, {vr(xr)} offset:{xo + tl*2048}" for tl in (1, 2, 3)]
        out += [f"ds_read_b64_tr_b16 {vr(S+24+2*h,2)}, {vr(vQR[1])} offset:{wb + h*512}" for h in range(2)]
        out.append(f"ds_read_b128 {vr(S+16,4)}, {vr(vGR_)} offset:{k*64}")
        return out
    def qm(k, S):
        ms = []
        for t in range(2):
            for tl in range(4):
                d = AQ + (tl*2+t)*4
                ms.append((lambda d=d, t=t, tl=tl: mfma(d, S+20+t*4, S+tl*4, EPS4 if k == 0 else d), R4(S+20+t*4) + R4(S+tl*4)))
        def side():
            L1 = a.newlabel("L_s"); L2 = a.newlabel("L_s")
            C0 = None if k == 0 else AG; C1 = None if k == 0 else AG+4
            a(f"s_cbranch_vccnz {L2}")
            a(f"s_cmp_eq_u32 {sr(sNI)}, 1")
            a(f"s_cbranch_scc1 {L1}")
            mfma(AG, S+16, S+0, C0); mfma(AG+4, S+16, S+4, C1)
            a(f"s_branch {L2}")
            a.label(L1)
            mfma(AG, S+16, S+8, C0); mfma(AG+4, S+16, S+12, C1)
            a.label(L2)
        ms.append((side, R4(S+16)))
        return ms
    a(f"s_cmp_lg_u32 {sr(sHP)}, 0")
    a("s_cselect_b64 vcc, -1, 0")
    groups = [(0, 1), (2, 3, 4), (5, 6)]
    for q in (2, 3): issue_w(q, BQS[q], (0,), sU2K, "g1")
    lds_spin([(B_vSY, 24)], 4, vT0)
    issue_w(4, BQS[4], (0,), sU2K, "g1")
    for g, chs in enumerate(groups):
        a.wait_vm(f"g{g}")
        lds_signal(B_vSY, 32 + 4*g)
        lds_spin([(B_vSY, 32 + 4*g)], 4, vT0)
        a.ds_all()
        ks_list = [2*c + ks for c in chs for ks in range(2)]
        for r in qreads(ks_list[0], SETS[0]): a.dsr(r)
        for i, k in enumerate(ks_list):
            nxt = qreads(ks_list[i+1], SETS[(i+1) & 1]) if i + 1 < len(ks_list) else []
            if not nxt and g == 0:
                a("s_waitcnt lgkmcnt(0)"); a.ds_all()
                lds_signal(B_vSY, 48)
            sched_step(qm(k, SETS[i & 1]), nxt, 2)
        if g == 0:
            lds_spin([(B_vSY, 48)], 4, vT0)
            for q in groups[2]: issue_w(q, BQS[q], (0,), sU2K, "g2")
    a.ds_all()
    stamp("M pass2 done")
    TM = 24
    a("s_nop 4")
    for t_ in phi_ops(AQ, 32, TM): a(t_)
    a(f"s_cbranch_vccnz L_M_nogate")
    for tl in range(2): a(f"v_mul_f32 {vr(AG+tl*4)}, {sr(sL2E)}, {vr(AG+tl*4)}")
    for tl in range(2): a(f"v_exp_f32 {vr(AG+tl*4)}, -{vr(AG+tl*4)}")
    a("s_nop 0")
    for tl in range(2): a(f"v_add_f32 {vr(AG+tl*4)}, 1.0, {vr(AG+tl*4)}")
    for tl in range(2): a(f"v_rcp_f32 {vr(AG+tl*4)}, {vr(AG+tl*4)}")
    a("s_mov_b64 exec, 0xffff")
    for tl in range(2):
        a.vmem_unc(f"buffer_store_dword {vr(AG+tl*4)}, {vr(vGT)}, {sr(SWS,4)}, {sr(sGST)} offen offset:{tl*64} sc1")
    a("s_mov_b64 exec, -1")
    a.label("L_M_nogate")
    PQ = 56
    for tl in range(4):
        d = PQ + tl*4
        pack4(d, AQ+tl*8, AQ+tl*8+4)
        a(f"v_cndmask_b32 {vr(d+2)}, 0, {vr(d+2)}, {sr(sMASK48,2)}")
        a(f"v_cndmask_b32 {vr(d+3)}, 0, {vr(d+3)}, {sr(sMASK48,2)}")
    a(f"v_subrev_u32 {vr(vT1)}, {B_KVS}, {vr(B_vSW)}")
    for tl in range(2): a(f"ds_write_b128 {vr(vT1)}, {vr(PQ+tl*4,4)} offset:{tl*1024}")
    a("s_waitcnt vmcnt(0) lgkmcnt(0)")
    lds_signal(B_vPQ)
    stamp("M pq done")
    lds_spin([(B_vSK, 0)], 2, vT0)
    a.vm = []
    o_B(PQ + 8, 24, 112, "M")

EA_Q = [24, 28]; EA_K = [32, 36]; EA_KP = 40; EA_V = [44, 54]
EA_Q23 = [64, 68]; EA_K23 = [72, 76]; EA_H = 80

def compute():
    a.label("L_compute")
    a(f"s_and_b32 {sr(sT2)}, {sr(sJ)}, 7")
    a(f"s_or_b32 {sr(sT2)}, {sr(sT2)}, {sr(sWAVE)}")
    a(f"s_cmp_lg_u32 {sr(sT2)}, 0")
    a("s_cbranch_scc1 L_nopf")
    a(f"v_lshlrev_b32 {vr(vT1)}, 7, {vr(vLANE)}")
    for i in range(4):
        if i:
            a(f"v_add_u32 {vr(vT1)}, 8192, {vr(vT1)}")
            a(f"v_min_u32 {vr(vT1)}, L_end-L_pc, {vr(vT1)}")
        a.vmem_unc(f"global_load_dword {vr(vDUM)}, {vr(vT1)}, {sr(sPC,2)}")
    a.label("L_nopf")
    a(f"s_cmp_eq_u32 {sr(sTYPE)}, 0")
    a("s_cbranch_scc1 L_cB")
    vXR0, vXR1, vHR0, vHR1 = 10, 11, 12, 13
    vWR = {(0,0):14, (1,0):15, (0,1):16, (1,1):17}
    SETS = [24, 68]
    ACC = 112; ACX = 208
    def acc(seg, t, tl): return ACC + ((seg*2+t)*4+tl)*4
    x_read_addr(vXR0, vXR1, None, None)
    a(f"v_add_u32 {vr(vHR0)}, {A_HALO}, {vr(vT5)}")
    a(f"v_xor_b32 {vr(vHR1)}, 64, {vr(vHR0)}")
    for t in range(2):
        w_read_addr(vWR[(t,0)], t, 3, L_W[0])
        a(f"v_add_u32 {vr(vWR[(t,1)])}, {L_W[2]-L_W[0]}, {vr(vWR[(t,0)])}")
    a("s_waitcnt lgkmcnt(0)")
    late_srds(); late_setup(True); setup_A_consts()
    def reads(c, ks, S):
        sl = c % 3; out = []
        xr = vXR0 if ks == 0 else vXR1
        reg = 1 if sl == 2 else 0
        wb = (L_W[sl] - L_W[2*reg]) + ks*4*3072
        def wfrag(seg, t):
            for h in range(2):
                out.append(f"ds_read_b64_tr_b16 {vr(S+20+(seg*2+t)*4+2*h,2)}, {vr(vWR[(t,reg)])} offset:{wb + seg*1024 + h*512}")
        def xfrag(tl): out.append(f"ds_read_b128 {vr(S+tl*4,4)}, {vr(xr)} offset:{L_X[sl] + tl*2048}")
        xfrag(0); wfrag(0, 0); xfrag(1); xfrag(2); xfrag(3); wfrag(0, 1)
        for seg in (1, 2):
            for t in range(2): wfrag(seg, t)
        out.append(f"ds_read_b128 {vr(S+16,4)}, {vr(vHR0 if ks == 0 else vHR1)} offset:{c*2048}")
        return out
    def mlist(S, first):
        ms = []
        for seg in range(3):
            for t in range(2):
                for tl in range(4):
                    d = acc(seg, t, tl); W = S+20+(seg*2+t)*4; X = S+tl*4
                    A_, B_ = (W, X) if seg < 2 else (X, W)
                    ms.append((lambda d=d, A_=A_, B_=B_: mfma(d, A_, B_, None if first else d), R4(W) + R4(X)))
        def side():
            L1 = a.newlabel("L_s"); L2 = a.newlabel("L_s")
            C0 = None if first else ACX; C1 = None if first else ACX+4
            a(f"s_cbranch_scc1 {L1}")
            mfma(ACX, S+28, S+16, C0); mfma(ACX+4, S+32, S+16, C1)
            a(f"s_branch {L2}")
            a.label(L1)
            mfma(ACX, S+16, S+36, C0); mfma(ACX+4, S+16, S+40, C1)
            a.label(L2)
        ms.append((side, R4(S+16)))
        return ms
    a("s_waitcnt lgkmcnt(0)")
    compute_tag()
    stamp("A setup done")
    a(f"s_cmp_eq_u32 {sr(sMP)}, 1")
    for c in range(7):
        a.c(f"---- A chunk {c}")
        a("s_waitcnt lgkmcnt(0)")
        a.ds_all()
        a("s_barrier")
        r0 = reads(c, 0, SETS[0])
        if c == 0:
            for r in r0: a.dsr(r)
        else:
            sched_step(mlist(SETS[1], False), r0, 2)
        sched_step(mlist(SETS[0], c == 0), reads(c, 1, SETS[1]), 6)
    sched_step(mlist(SETS[1], False), [], 0)
    a.ds_all()
    stamp("A gemm done")
    KB = 24; QB = 44; VB = [60, 70]; HB_ = 80
    pack4(KB+16, acc(1,0,3), acc(1,1,3))
    a(f"ds_write_b128 {vr(A_vEX)}, {vr(KB+16,4)}")
    for et in range(2):
        cvtpk(VB[et]+8, acc(2,et,3), acc(2,et,3)+1); cvtpk(VB[et]+9, acc(2,et,3)+2, acc(2,et,3)+3)
        a(f"ds_write_b64 {vr(A_vEX)}, {vr(VB[et]+8,2)} offset:{1024 + et*8}")
    for tl in range(3): pack4(KB+4+tl*4, acc(1,0,tl), acc(1,1,tl))
    pack4(HB_, ACX, ACX+4)
    a(f"ds_write_b128 {vr(A_vHW)}, {vr(HB_,4)}")
    for tl in range(4):
        pack4(QB+tl*4, acc(0,0,tl), acc(0,1,tl))
        a(f"v_cndmask_b32 {vr(QB+tl*4+2)}, 0, {vr(QB+tl*4+2)}, {sr(sMASK48,2)}")
        a(f"v_cndmask_b32 {vr(QB+tl*4+3)}, 0, {vr(QB+tl*4+3)}, {sr(sMASK48,2)}")
    a("s_waitcnt lgkmcnt(0)")
    a("s_barrier")
    a(f"ds_read_b128 {vr(KB,4)}, {vr(A_vPK)}")
    a(f"ds_read_b64 {vr(VB[0],2)}, {vr(A_vPK)} offset:1024")
    a(f"ds_read_b64 {vr(VB[1],2)}, {vr(A_vPK)} offset:1032")
    for tl in range(3):
        for et in range(2):
            d = VB[et] + 2 + tl*2
            cvtpk(d, acc(2,et,tl), acc(2,et,tl)+1); cvtpk(d+1, acc(2,et,tl)+2, acc(2,et,tl)+3)
    BIAS = A_BIAS
    TT = [84, 112, 140, 168]
    def R(tl, k): return TT[tl] + k
    order = (3, 2, 1, 0)
    for tl in (3, 2, 1):
        mfma(R(tl,0), KB+tl*4, QB+tl*4); mfma(R(tl,4), KB+4+tl*4, QB+tl*4)
    mfma(R(0,4), KB+4, QB)
    a("s_waitcnt lgkmcnt(0)")
    mfma(R(0,0), KB, QB)
    for tl in order:
        for i, (s_, o) in enumerate(((0,0),(0,2),(4,0),(4,2))):
            a(f"v_cndmask_b32 {vr(R(tl,8+i))}, {vr(R(tl,s_+o))}, {vr(R(tl,s_+o+1))}, {sr(sODD,2)}")
        bp = BIAS if tl else BIAS + 4
        for i, b in enumerate((bp, bp+1, BIAS+2, BIAS+3)):
            a(f"v_fma_f32 {vr(R(tl,8+i))}, {vr(R(tl,8+i))}, {sr(sK0)}, {vr(b)}")
        a(f"v_max3_f32 {vr(R(tl,12))}, {vr(R(tl,8))}, {vr(R(tl,9))}, {vr(R(tl,10))}")
        a(f"v_max_f32 {vr(R(tl,12))}, {vr(R(tl,12))}, {vr(R(tl,11))}")
        a(f"v_mov_b32 {vr(R(tl,13))}, {vr(R(tl,12))}")
    for tl in order: a(f"v_permlane32_swap_b32 {vr(R(tl,12))}, {vr(R(tl,13))}")
    for tl in order: a(f"v_max_f32 {vr(R(tl,12))}, {vr(R(tl,12))}, {vr(R(tl,13))}")
    for tl in order: a(f"v_mov_b32 {vr(R(tl,13))}, {vr(R(tl,12))}")
    for tl in order: a(f"v_permlane16_swap_b32 {vr(R(tl,12))}, {vr(R(tl,13))}")
    for tl in order: a(f"v_max_f32 {vr(R(tl,12))}, {vr(R(tl,12))}, {vr(R(tl,13))}")
    for tl in order:
        for i in range(4): a(f"v_sub_f32 {vr(R(tl,8+i))}, {vr(R(tl,8+i))}, {vr(R(tl,12))}")
        for i in range(4): a(f"v_exp_f32 {vr(R(tl,8+i))}, {vr(R(tl,8+i))}")
    for tl in order:
        for i in range(4): a(f"v_cvt_pk_bf16_f32 {vr(R(tl,16+i))}, {vr(R(tl,8+i))}, 0")
        for i in range(4): a(f"v_lshlrev_b32 {vr(R(tl,16+i))}, {vr(A_SH)}, {vr(R(tl,16+i))}")
        if tl == 3: continue
        p = tl + 1
        mfma(R(p,20), A_ONES, R(p,16)); mfma(R(p,0), VB[0]+2*p, R(p,16)); mfma(R(p,4), VB[1]+2*p, R(p,16))
    a("s_nop 1")
    mfma(R(0,20), A_ONES, R(0,16)); mfma(R(0,0), VB[0], R(0,16)); mfma(R(0,4), VB[1], R(0,16))
    for tl in order:
        a(f"v_rcp_f32 {vr(R(tl,12))}, {vr(R(tl,20))}")
        if tl: a(f"s_add_u32 {sr(sT0)}, {sr(sOST)}, {tl*16384}")
        else: a("s_nop 0")
        for i in range(8): a(f"v_mul_f32 {vr(R(tl,i))}, {vr(R(tl,i))}, {vr(R(tl,12))}")
        for i in range(4): cvtpk(R(tl,24+i), R(tl,2*i), R(tl,2*i+1))
        a(f"v_cndmask_b32 {vr(R(tl,26))}, 0, {vr(R(tl,26))}, {sr(sMASK48,2)}")
        a(f"v_cndmask_b32 {vr(R(tl,27))}, 0, {vr(R(tl,27))}, {sr(sMASK48,2)}")
        a(f"buffer_store_dwordx4 {vr(R(tl,24),4)}, {vr(vL16)}, {sr(SWS,4)}, {sr(sT0 if tl else sOST)} offen sc1")
    if flag("wolate"): a("s_barrier")
    stamp("A attn done")
    a(f"v_mov_b32 v24, {sr(sTAG)}")
    a(f"v_mov_b32 v25, {sr(sTAG+1)}")
    a(f"v_lshlrev_b32 v26, 9, {vr(vLANE)}")
    a("s_waitcnt vmcnt(0)")
    a("s_mov_b64 exec, 3")
    a(f"buffer_store_dwordx2 v[24:25], v26, {sr(SWS,4)}, {sr(sF2W)} offen sc1")
    a("s_mov_b64 exec, -1")
    stamp("A flag set")
    a(f"s_cmp_eq_u32 {sr(sHP)}, 7")
    a("s_cbranch_scc1 L_idle2")
    a("s_branch L_phase2")

    a.label("L_cB")
    a.vm = []
    vXR = [10, 11, 12, 13]; vWB = [14, 15]
    SB = [24, 56]; AB = 112
    def accB(seg, t, tl): return AB + ((seg*2+t)*4+tl)*4
    x_read_addr(*vXR)
    for t in range(2): w_read_addr(vWB[t], t, 2, BW[0])
    a("s_waitcnt lgkmcnt(0)")
    late_srds(); late_setup(False); setup_B_consts()
    a(f"v_lshlrev_b32 {vr(vT0)}, 2, {vr(vI16)}")
    a(f"v_add_u32 {vr(vT0)}, {B_SY}, {vr(vT0)}")
    a(f"v_mov_b32 {vr(vT1)}, 0")
    a(f"ds_write_b32 {vr(vT0)}, {vr(vT1)}")
    a("s_waitcnt lgkmcnt(0)")
    compute_tag()
    stamp("B setup done")
    def breads(c, ks, S):
        xr = vXR[(2 if c >= 4 else 0) + ks]; xo = BX[c] - (65536 if c >= 4 else 0)
        wb = BW[c % 2] - BW[0] + ks*4*2048
        out = []
        def wfrag(seg, t):
            for h in range(2):
                out.append(f"ds_read_b64_tr_b16 {vr(S+16+(seg*2+t)*4+2*h,2)}, {vr(vWB[t])} offset:{wb + seg*1024 + h*512}")
        def xfrag(tl): out.append(f"ds_read_b128 {vr(S+tl*4,4)}, {vr(xr)} offset:{xo + tl*2048}")
        xfrag(0); wfrag(0, 0); xfrag(1); xfrag(2); xfrag(3); wfrag(0, 1); wfrag(1, 0); wfrag(1, 1)
        return out
    def bm(S, first):
        ms = []
        for seg in range(2):
            for t in range(2):
                for tl in range(4):
                    d = accB(seg, t, tl); W = S+16+(seg*2+t)*4; X = S+tl*4
                    c0 = B_EPS4 if seg == 0 else None
                    ms.append((lambda d=d, X=X, W=W, c0=c0: mfma(d, X, W, c0 if first else d), R4(W) + R4(X)))
        return ms
    T = 176
    for c in range(7):
        a.c(f"---- B chunk {c}")
        a("s_waitcnt lgkmcnt(0)")
        a.ds_all()
        a("s_barrier")
        r0 = breads(c, 0, SB[0])
        if c == 0:
            for r in r0: a.dsr(r)
        else:
            sched_step(bm(SB[1], False), r0, 2)
        if c < 6:
            sched_step(bm(SB[0], c == 0), breads(c, 1, SB[1]), 4)
    m0, m1 = bm(SB[0], False), bm(SB[1], False)
    sched_step(m0[:12], breads(6, 1, SB[1]), 4)
    for fn, regs in m1[:8]:
        a.need(regs); fn()
    rest = m0[12:] + m1[8:]
    ph = phi_ops(AB, 32, T)
    per = -(-len(ph) // (len(rest) - 3))
    for i, (fn, regs) in enumerate(rest):
        a.need(regs); fn()
        if i == 3: a("s_nop 3")
        if i >= 3:
            for _ in range(per):
                if ph: a(ph.pop(0))
    for t_ in ph: a(t_)
    a.ds_all()
    stamp("B gemm done")
    PK = 24; PV = 40; KV = 56
    for ks in range(2):
        for dt in range(2): pack4(PK+(ks*2+dt)*4, accB(0,dt,2*ks), accB(0,dt,2*ks+1))
    for ks in range(2):
        for et in range(2): pack4(PV+(ks*2+et)*4, accB(1,et,2*ks), accB(1,et,2*ks+1))
    a(f"v_mov_b32 {vr(T)}, 0x3f803f80")
    for ks in range(2):
        for i in range(4):
            r = PV+(ks*2+1)*4+i
            a(f"v_cndmask_b32 {vr(r)}, {vr(r)}, {vr(T)}, {sr(sONE,2)}")
    a(f"s_cmp_eq_u32 {sr(sMP)}, 0")
    a("s_nop 0")
    a("s_cbranch_scc1 L_B_s0")
    for dts, base in ((0, KV), (1, KV+8)):
        for ks in range(2):
            for et in range(2): mfma(base+et*4, PK+(ks*2+dts)*4, PV+(ks*2+et)*4, None if ks == 0 else base+et*4)
    a("s_branch L_B_s1")
    a.label("L_B_s0")
    for dts, base in ((1, KV), (0, KV+8)):
        for ks in range(2):
            for et in range(2): mfma(base+et*4, PK+(ks*2+dts)*4, PV+(ks*2+et)*4, None if ks == 0 else base+et*4)
    a.label("L_B_s1")
    a(f"s_lshl_b32 {sr(sT1)}, {sr(sRB)}, 10")
    a(f"s_add_u32 {sr(sT1)}, {sr(sT1)}, {sr(sKVO)}")
    a("s_nop 1")
    a(f"ds_write_b128 {vr(B_vSW)}, {vr(KV,4)}")
    a(f"ds_write_b128 {vr(B_vSW)}, {vr(KV+4,4)} offset:1024")
    a("s_waitcnt lgkmcnt(0)")
    a("s_barrier")
    a(f"ds_read_b128 {vr(KV+16,4)}, {vr(B_vSR)}")
    a(f"ds_read_b128 {vr(KV+20,4)}, {vr(B_vSR)} offset:1024")
    a("s_waitcnt lgkmcnt(0)")
    for i in range(0, 8, 2):
        a(f"v_pk_add_f32 {vr(KV+8+i,2)}, {vr(KV+8+i,2)}, {vr(KV+16+i,2)}")
    pack4(KV+24, KV+8, KV+12)
    a(f"buffer_store_dwordx4 {vr(KV+24,4)}, {vr(vL16)}, {sr(SWS,4)}, {sr(sT1)} offen sc1")
    lds_signal(B_vSY, 24)
    stamp("B partial stored")
    a("s_waitcnt vmcnt(0)")
    set_flag(sF1W, T)
    stamp("B flag1 set")
    poll_issue(sF1R, T+2)
    poll_finish(sF1R, T+2)
    stamp("B flag1 seen")
    PL = 112; T = 24
    for r in range(16):
        if r % 4 == 0 and r: a(f"s_add_u32 {sr(sT1)}, {sr(sKVO)}, {r*1024}")
        a.vmem(f"buffer_load_dwordx4 {vr(PL+r*4,4)}, {vr(vL16)}, {sr(SWS,4)}, {sr(sKVO if r < 4 else sT1)} offen offset:{(r%4)*1024} sc1", f"pl{r}")
    for r in range(16):
        a.wait_vm(f"pl{r}")
        mfma(T, B_SEL, PL+r*4, None if r == 0 else T)
        mfma(T+4, B_SEL+4, PL+r*4, None if r == 0 else T+4)
    a("s_nop 6")
    cvtpk(T+8, T, T+1); cvtpk(T+9, T+2, T+3)
    cvtpk(T+10, T+4, T+5); cvtpk(T+11, T+6, T+7)
    a(f"ds_write_b64 {vr(B_vKW)}, {vr(T+8,2)}")
    a(f"ds_write_b64 {vr(B_vKW)}, {vr(T+10,2)} offset:1024")
    a("s_waitcnt lgkmcnt(0)")
    lds_signal(B_vSK)
    a(f"v_subrev_u32 {vr(vT2)}, {B_KVS}, {vr(B_vSW)}")
    stamp("B kv done")
    lds_spin([(B_vSK, 0), (B_vPQ, 0)], 3, vT0)
    a(f"ds_read_b128 {vr(64,4)}, {vr(vT2)}")
    a(f"ds_read_b128 {vr(68,4)}, {vr(vT2)} offset:1024")
    a.vm = []
    o_B(64, 24, 112, "B")

def phase2():
    a.label("L_phase2")
    a.vm = []
    ACC = [4, 20]; OF = 36; WF = 100; T = 228
    a(f"v_mov_b32 {vr(T)}, 0")
    a(f"v_mov_b32 {vr(T+1)}, 0")
    a(f"v_lshlrev_b32 {vr(T+2)}, 3, {vr(vLANE)}")
    a(f"v_add_u32 {vr(T+2)}, {P2_ZERO}, {vr(T+2)}")
    a(f"ds_write_b64 {vr(T+2)}, {vr(T,2)}")
    def wreads(h, slot):
        out = []
        for t in range(4):
            base = vWO[t ^ (2 if h & 1 else 0)]
            for hf in range(2):
                out.append(f"ds_read_b64_tr_b16 {vr(WF+slot*16+t*4+hf*2,2)}, {vr(base)} offset:{h*3584 + hf*2048}")
        return out
    for br in range(2):
        if br == 0:
            a("s_waitcnt vmcnt(0) lgkmcnt(0)")
            a("s_barrier")
            stamp("P2 wo landed")
        else:
            for t in range(4): a(f"v_add_u32 {vr(vWO[t])}, 57344, {vr(vWO[t])}")
            a(f"s_add_u32 {sr(sF2R)}, {sr(sF2R)}, 2048")
            a(f"s_add_u32 {sr(sOLD)}, {sr(sOLD)}, {8*16384}")
        poll_issue(sF2R, T+4)
        for h in range(8):
            for r in wreads(h, h): a(r)
        poll_finish(sF2R, T+4)
        stamp(f"P2 flags seen {'AB'[br]}")
        for h in range(16):
            if h % 4 == 0 and h: a(f"s_add_u32 {sr(sT1)}, {sr(sOLD)}, {h*1024}")
            a.vmem(f"buffer_load_dwordx4 {vr(OF+h*4,4)}, {vr(vL16)}, {sr(SWS,4)}, {sr(sOLD if h < 4 else sT1)} offen offset:{(h%4)*1024} sc1", f"o{h}")
        if br == 1:
            a.vmem(f"buffer_load_dword {vr(T+6)}, {vr(vGT)}, {sr(SWS,4)}, {sr(sGT)} offen sc1", "g")
        a("s_waitcnt lgkmcnt(0)")
        for h in range(16):
            a.wait_vm(f"o{h}")
            rd = wreads(h + 8, h) if h < 8 else []
            if h == 8: a("s_waitcnt lgkmcnt(15)")
            if h >= 14: a(f"s_waitcnt lgkmcnt({(15-h)*8})")
            for t in range(4):
                mfma(ACC[br]+t*4, WF+(h%8)*16+t*4, OF+h*4, None if h == 0 else ACC[br]+t*4)
                for _ in range(2):
                    if rd: a(rd.pop(0))
        if br == 0: stamp("P2 A half done")
    a.wait_vm("g")
    a("s_nop 3")
    for t in range(4):
        A_, B_ = ACC[0]+t*4, ACC[1]+t*4
        for i in range(4): a(f"v_sub_f32 {vr(A_+i)}, {vr(A_+i)}, {vr(B_+i)}")
        for i in range(4): a(f"v_fma_f32 {vr(A_+i)}, {vr(A_+i)}, {vr(T+6)}, {vr(B_+i)}")
        cvtpk(OF+2*t, A_, A_+1); cvtpk(OF+2*t+1, A_+2, A_+3)
        a(f"ds_write_b64 {vr(vCW)}, {vr(OF+2*t,2)} offset:{t*32}")
    a("s_waitcnt lgkmcnt(0)")
    a(f"ds_read_b128 {vr(OF+8,4)}, {vr(vCR)}")
    a(f"ds_read_b128 {vr(OF+12,4)}, {vr(vCR)} offset:{8*144}")
    a(f"s_mov_b32 {sr(sT0)}, {8*896}")
    a("s_waitcnt lgkmcnt(1)")
    a(f"buffer_store_dwordx4 {vr(OF+8,4)}, {vr(vOUT)}, {sr(SOUT,4)}, 0 offen")
    a("s_waitcnt lgkmcnt(0)")
    a(f"buffer_store_dwordx4 {vr(OF+12,4)}, {vr(vOUT)}, {sr(SOUT,4)}, {sr(sT0)} offen")
    stamp("P2 done")
    a("s_endpgm")
    a.label("L_idle2")
    a(f"s_cmp_lg_u32 {sr(sRB)}, 15")
    a("s_cbranch_scc1 L_end")
    a(f"v_lshlrev_b32 v10, 5, v0")
    a(f"s_mov_b32 {sr(sCNT)}, 0")
    a.label("L_jan")
    for k in range(4):
        a(f"s_mov_b32 {sr(sT0)}, {WS_F2 + k*16384}")
        a(f"buffer_load_dwordx2 {vr(12+2*k,2)}, v10, {sr(SWS,4)}, {sr(sT0)} offen sc1")
    a(f"s_add_u32 {sr(sCNT)}, {sr(sCNT)}, 1")
    a("s_waitcnt vmcnt(0)")
    a(f"v_cmp_ne_u64 {sr(sT0,2)}, {sr(sTAG,2)}, v[12:13]")
    a(f"v_cmp_ne_u64 {sr(sT2,2)}, {sr(sTAG,2)}, v[14:15]")
    a(f"s_or_b64 {sr(sT0,2)}, {sr(sT0,2)}, {sr(sT2,2)}")
    a(f"v_cmp_ne_u64 {sr(sT2,2)}, {sr(sTAG,2)}, v[16:17]")
    a(f"s_or_b64 {sr(sT0,2)}, {sr(sT0,2)}, {sr(sT2,2)}")
    a(f"v_cmp_ne_u64 {sr(sT2,2)}, {sr(sTAG,2)}, v[18:19]")
    a(f"s_or_b64 {sr(sT0,2)}, {sr(sT0,2)}, {sr(sT2,2)}")
    a("s_cbranch_scc0 L_jand")
    a(f"s_cmp_gt_u32 {sr(sCNT)}, 0x400000")
    a("s_cbranch_scc1 L_jand")
    a("s_sleep 4")
    a("s_branch L_jan")
    a.label("L_jand")
    a("s_barrier")
    a(f"s_cmp_lg_u32 {sr(sWAVE)}, 0")
    a("s_cbranch_scc1 L_end")
    a(f"s_mov_b32 {sr(sT0)}, {WS_EPOCH}")
    set_flag(sT0, 10)
    a.label("L_end")
    a("s_endpgm")

prologue()
loader()
a.vm = []
compute()
phase2()

hdr = f"""; fused gated-mix kernel: generated by gen/gen6.py
; @launch grid=(256,1,1) block=(512,1,1) lds={LDS_BYTES}
.amdgcn_target "amdgcn-amd-amdhsa--gfx950"
.text
.globl {NAME}_kernel
.p2align 8
.type {NAME}_kernel,@function
"""
ftr = f"""
.section .rodata,"a"
.p2align 6
.amdhsa_kernel {NAME}_kernel
  .amdhsa_next_free_vgpr 256
  .amdhsa_next_free_sgpr 102
  .amdhsa_accum_offset 256
  .amdhsa_group_segment_fixed_size 0
  .amdhsa_kernarg_size 80
  .amdhsa_user_sgpr_count 2
  .amdhsa_user_sgpr_kernarg_segment_ptr 1
  .amdhsa_system_sgpr_workgroup_id_x 1
.end_amdhsa_kernel
"""
out = [x for x in sys.argv[1:] if not x.startswith("--")]
path = out[0] if out else f"cdna_kernels/{NAME}.s"
open(path, "w").write(hdr + "\n".join(a.lines) + ftr)
print("wrote", path, len(a.lines), "lines")
```

```python
import sys, struct, re

NAME = "gated_mix__sliding_local_dilated__linear_attn_block__prompt"
def flag(n): return ("--" + n) in sys.argv
def opt(n, d):
    for x in sys.argv:
        if x.startswith(f"--{n}="): return int(x.split("=")[1])
    return d
STAMPS, DBGST, FINE = flag("stamps"), flag("dbgstamps"), flag("fine")
ROT = flag("rot")

WS_EPOCH = 0
WS_F1 = 0x1000
WS_F2 = 0x10000
WS_KV = 0x40000
WS_GATE = 0x180000
WS_O = 0x200000
WS_STAMP = 0x600000
WS_SIZE = 0x800000

L_X = [0, 16384, 32768]
L_W = [49152, 73728, 98304]
R0 = 122880
A_HALO = R0
A_HB = R0 + 14336
A_EX = A_HB + 4096
BX = [c*16384 for c in range(7)]
BW = [114688, 131072]
BQS = [131072, 139264, 114688, 122880, 149504, 131072, 139264]
B_GW = 147456
B_KVS = B_GW + 2048
B_KVF = B_KVS + 8192
B_SY = B_KVF + 4096
assert B_SY + 64 <= 163840
P2_WO = 0
P2_ZERO = 114688
P2_G = 115200
P2_CB = 115456
P2_CBSZ = 64 * 272
LDS_BYTES = 163840

LOG2E = 1.4426950408889634
def f2u(x): return struct.unpack("<I", struct.pack("<f", x))[0]

class Asm:
    def __init__(self):
        self.lines = []; self.vm = []; self.lbl = 0; self.ds = []
    def __call__(self, s): self.lines.append("    " + s)
    def c(self, s): self.lines.append("    ; " + s)
    def label(self, name): self.lines.append(name + ":")
    def newlabel(self, p="L"):
        self.lbl += 1; return f"{p}_{self.lbl}"
    def vmem(self, s, tag): self(s); self.vm.append(tag)
    def vmem_unc(self, s): self(s)
    def wait_vm(self, tag, extra=""):
        idx = max(i for i, t in enumerate(self.vm) if t == tag)
        n = len(self.vm) - 1 - idx
        assert n <= 63
        self(f"s_waitcnt vmcnt({n}){extra}")
        self.vm = self.vm[idx + 1:]
    def wait_vm_all(self, extra=""):
        self(f"s_waitcnt vmcnt(0){extra}"); self.vm = []
    def dsr(self, text):
        m = re.search(r"v\[(\d+):(\d+)\]", text)
        self(text); self.ds.append(set(range(int(m.group(1)), int(m.group(2)) + 1)))
    def need(self, regs):
        regs = set(regs)
        idx = max((i for i, r in enumerate(self.ds) if r & regs), default=-1)
        if idx < 0: return
        n = len(self.ds) - 1 - idx
        self(f"s_waitcnt lgkmcnt({min(n, 15)})")
        self.ds = self.ds[idx + 1:] if n <= 15 else self.ds[-15:]
    def ds_all(self): self.ds = []

def vr(b, n=1): return f"v{b}" if n == 1 else f"v[{b}:{b+n-1}]"
def sr(b, n=1): return f"s{b}" if n == 1 else f"s[{b}:{b+n-1}]"
a = Asm()

sROT = 3
sU, sMP, sROLE, sEXB = 4, 5, 6, 7
SX, SW, SWS, SWOA, SWOB, SOUT, SG = 8, 12, 16, 20, 24, 28, 32
sWAVE, sMI, sNI, sRB, sHP, sTYPE = 36, 37, 38, 39, 40, 41
sTAG = 42
sT0, sT1, sT2, sT3 = 44, 45, 46, 47
sW1K, sU4K, sU6K = 48, 49, 50
sSOX, sSOW, sSOX2 = 51, 52, 53
sMASK48, sODD, sONE, sEXEC = 54, 56, 58, 60
sCB, sHALF, sCNT, sJ = 62, 63, 64, 65
sPC = 66
sL2E, sEPS = 68, 70
sST = 72
sPTR = 76
sOST, sF2W, sF2R, sOLD = 76, 77, 78, 79
sGT, sKVO, sF1W, sF1R, sK0, sBR, sGST = 80, 81, 82, 83, 84, 85, 86

vLANE, vI16, vG = 1, 2, 3
vT0, vT1, vT2, vT3, vT4, vT5 = 4, 5, 6, 7, 8, 9
vDUM = 23
vL16, vPOLL, vWOD = 236, 237, 238
vWO = [240, 241, 242, 243]
vGT, vCW, vCR, vGR, vGW, vOUT = 244, 245, 246, 247, 248, 249

stamp_idx = [0]
def stamp(name, src=None):
    if DBGST:
        i = stamp_idx[0]; stamp_idx[0] += 1
        if i > 15: return
        L = a.newlabel("L_st")
        a.c(f"stamp {i}: {name}")
        a(f"s_and_b32 s74, s2, 127")
        a(f"s_and_b32 s75, {sr(sWAVE)}, 3")
        a(f"s_or_b32 s74, s74, s75")
        if name.startswith("P2"): a(f"s_or_b32 s74, s74, s2"); a(f"s_or_b32 s74, s74, {sr(sWAVE)}")
        a(f"s_cmp_lg_u32 s74, 0")
        a(f"s_cbranch_scc1 {L}")
        a(f"s_memrealtime {sr(sST,2)}")
        a("s_waitcnt lgkmcnt(0)")
        a(f"s_sub_u32 {sr(sST)}, {sr(sST)}, s98")
        a(f"v_mov_b32 v22, {sr(sST)}")
        a(f"v_mov_b32 v21, {i*4}")
        a(f"s_mov_b64 {sr(sST,2)}, exec")
        a("s_mov_b64 exec, 1")
        a.vmem_unc(f"global_store_dword v21, v22, s[96:97]")
        a(f"s_mov_b64 exec, {sr(sST,2)}")
        a.label(L)
        return
    if not STAMPS: return
    i = stamp_idx[0]; stamp_idx[0] += 1
    a.c(f"stamp {i}: {name}")
    if src is None:
        a(f"{'s_memtime' if flag('cyc') else 's_memrealtime'} {sr(sST,2)}")
        a("s_waitcnt lgkmcnt(0)")
    else:
        a(f"s_mov_b32 {sr(sST)}, s{src}")
    a(f"v_mov_b32 v22, {sr(sST)}")
    a(f"s_lshl_b32 s74, s2, 3")
    a(f"s_or_b32 s74, s74, {sr(sWAVE)}")
    a(f"s_lshl_b32 s74, s74, 8")
    a(f"s_or_b32 s74, s74, {WS_STAMP + i*4}")
    a(f"s_mov_b64 {sr(sST,2)}, exec")
    a("s_mov_b64 exec, 1")
    a.vmem_unc(f"buffer_store_dword v22, off, {sr(SWS,4)}, s74")
    a(f"s_mov_b64 exec, {sr(sST,2)}")

def mfma(d, A, B, C=None):
    c = vr(C, 4) if C is not None else "0"
    a(f"v_mfma_f32_16x16x32_bf16 {vr(d,4)}, {vr(A,4)}, {vr(B,4)}, {c}")
def cvtpk(d, x, y): a(f"v_cvt_pk_bf16_f32 {vr(d)}, {vr(x)}, {vr(y)}")
def srd(d, p, n):
    a(f"s_mov_b32 {sr(d)}, {sr(p)}"); a(f"s_mov_b32 {sr(d+1)}, {sr(p+1)}")
    a(f"s_mov_b32 {sr(d+2)}, {n}"); a(f"s_mov_b32 {sr(d+3)}, 0x00020000")

def true_chunk(dst, c):
    if not ROT:
        a(f"s_mov_b32 {sr(dst)}, {c}"); return
    a(f"s_add_u32 {sr(dst)}, {sr(sROT)}, {c}")
    a(f"s_cmp_ge_u32 {sr(dst)}, 7")
    a(f"s_cselect_b32 s75, 7, 0")
    a(f"s_sub_u32 {sr(dst)}, {sr(dst)}, s75")

def prologue():
    a.label(f"{NAME}_kernel")
    if DBGST or STAMPS: a("s_memrealtime s[98:99]")
    a("s_cmp_ge_u32 s2, 256")
    a("s_cbranch_scc1 L_end")
    a(f"s_load_dwordx16 {sr(sPTR,16)}, s[0:1], 0")
    a(f"s_load_dwordx4 {sr(sPTR+16,4)}, s[0:1], 64")
    a(f"s_getpc_b64 {sr(sPC,2)}")
    a.label("L_pc")
    a(f"v_lshrrev_b32 {vr(vT0)}, 6, v0")
    a(f"v_and_b32 {vr(vLANE)}, 63, v0")
    a(f"v_readfirstlane_b32 {sr(sWAVE)}, {vr(vT0)}")
    a(f"v_and_b32 {vr(vI16)}, 15, v0")
    a(f"v_bfe_u32 {vr(vG)}, v0, 4, 2")
    a(f"s_and_b32 {sr(sT0)}, s2, 7")
    a(f"s_lshr_b32 {sr(sJ)}, s2, 3")
    a(f"s_lshr_b32 {sr(sT2)}, {sr(sT0)}, 1")
    a(f"s_lshl_b32 {sr(sT2)}, {sr(sT2)}, 2")
    a(f"s_and_b32 {sr(sT1)}, {sr(sJ)}, 3")
    a(f"s_add_u32 {sr(sRB)}, {sr(sT2)}, {sr(sT1)}")
    a(f"s_and_b32 {sr(sHALF)}, {sr(sT0)}, 1")
    a(f"s_lshl_b32 {sr(sT2)}, {sr(sHALF)}, 2")
    a(f"s_lshr_b32 {sr(sCB)}, {sr(sJ)}, 2")
    a(f"s_and_b32 {sr(sT3)}, {sr(sCB)}, 3")
    a(f"s_add_u32 {sr(sHP)}, {sr(sT2)}, {sr(sT3)}")
    a(f"s_lshr_b32 {sr(sTYPE)}, {sr(sJ)}, 4")
    if ROT:
        a(f"s_lshl_b32 {sr(sT1)}, {sr(sT1)}, 1")
        a(f"s_add_u32 {sr(sROT)}, {sr(sT1)}, {sr(sCB)}")
        a(f"s_cmp_ge_u32 {sr(sROT)}, 7")
        a(f"s_cselect_b32 {sr(sT0)}, 7, 0")
        a(f"s_sub_u32 {sr(sROT)}, {sr(sROT)}, {sr(sT0)}")
    else:
        a(f"s_mov_b32 {sr(sROT)}, 0")
    a(f"s_and_b32 {sr(sU)}, {sr(sWAVE)}, 3")
    a(f"s_lshr_b32 {sr(sROLE)}, {sr(sWAVE)}, 2")
    a(f"s_lshr_b32 {sr(sMP)}, {sr(sU)}, 1")
    a(f"s_and_b32 {sr(sNI)}, {sr(sWAVE)}, 1")
    a(f"s_lshl_b32 {sr(sMI)}, {sr(sMP)}, 1")
    a(f"s_add_u32 {sr(sMI)}, {sr(sMI)}, {sr(sROLE)}")
    a(f"s_lshl_b32 {sr(sW1K)}, {sr(sWAVE)}, 10")
    a(f"s_cmp_eq_u32 {sr(sROLE)}, 0")
    a("s_cbranch_scc1 L_compute")

def late_srds():
    P = sPTR
    srd(SWS, P+18, WS_SIZE)
    a(f"s_load_dwordx2 {sr(sTAG,2)}, {sr(P+18,2)}, {WS_EPOCH}")
    srd(SWOA, P+4, 401408); srd(SWOB, P+10, 401408); srd(SOUT, P+14, 1835008); srd(SG, P+12, 896)
    if DBGST:
        a(f"s_mov_b32 s96, {sr(P+16)}"); a(f"s_mov_b32 s97, {sr(P+17)}")

def compute_tag():
    a(f"s_add_u32 {sr(sTAG)}, {sr(sTAG)}, 0x7f4a7c15")
    a(f"s_addc_u32 {sr(sTAG+1)}, {sr(sTAG+1)}, 0x9e3779b9")

def late_setup(p2):
    T0, T1, T2 = vT0, vT1, vT2
    a(f"s_mov_b32 {sr(sMASK48)}, -1")
    a(f"s_mov_b32 {sr(sMASK48+1)}, 0xffff")
    a(f"v_lshlrev_b32 {vr(vL16)}, 4, {vr(vLANE)}")
    a(f"v_lshlrev_b32 {vr(vPOLL)}, 5, {vr(vI16)}")
    a(f"v_lshlrev_b32 {vr(vGT)}, 2, {vr(vI16)}")
    a(f"s_lshl_b32 {sr(sT0)}, {sr(sRB)}, 1")
    a(f"s_add_u32 {sr(sT0)}, {sr(sT0)}, 1")
    a(f"s_sub_u32 {sr(sT0)}, {sr(sT0)}, {sr(sTYPE)}")
    a(f"s_lshl_b32 {sr(sT0)}, {sr(sT0)}, 2")
    a(f"s_add_u32 {sr(sT0)}, {sr(sT0)}, {sr(sMI)}")
    a(f"s_lshl_b32 {sr(sT1)}, {sr(sHP)}, 1")
    a(f"s_add_u32 {sr(sT1)}, {sr(sT1)}, {sr(sNI)}")
    a(f"s_lshl_b32 {sr(sT2)}, {sr(sT0)}, 5")
    a(f"s_add_u32 {sr(sT2)}, {sr(sT2)}, {sr(sT1)}")
    a(f"s_lshl_b32 {sr(sT2)}, {sr(sT2)}, 10")
    a(f"s_add_u32 {sr(sOST)}, {sr(sT2)}, {WS_O}")
    a(f"s_lshl_b32 {sr(sT2)}, {sr(sT0)}, 4")
    a(f"s_add_u32 {sr(sT2)}, {sr(sT2)}, {sr(sT1)}")
    a(f"s_lshl_b32 {sr(sT2)}, {sr(sT2)}, 5")
    a(f"s_add_u32 {sr(sF2W)}, {sr(sT2)}, {WS_F2}")
    if not p2: return
    a(f"s_lshl_b32 {sr(sT0)}, {sr(sRB)}, 4")
    a(f"s_add_u32 {sr(sT0)}, {sr(sT0)}, {sr(sWAVE)}")
    a(f"s_lshl_b32 {sr(sT1)}, {sr(sT0)}, 14")
    a(f"s_add_u32 {sr(sOLD)}, {sr(sT1)}, {WS_O}")
    a(f"s_lshl_b32 {sr(sT0)}, {sr(sRB)}, 3")
    a(f"s_lshr_b32 {sr(sT1)}, {sr(sWAVE)}, 1")
    a(f"s_add_u32 {sr(sT1)}, {sr(sT1)}, {sr(sT0)}")
    a(f"s_lshl_b32 {sr(sT1)}, {sr(sT1)}, 9")
    a(f"s_add_u32 {sr(sF2R)}, {sr(sT1)}, {WS_F2}")
    a(f"s_add_u32 {sr(sT0)}, {sr(sT0)}, {sr(sWAVE)}")
    a(f"s_lshl_b32 {sr(sT0)}, {sr(sT0)}, 6")
    a(f"s_add_u32 {sr(sGT)}, {sr(sT0)}, {WS_GATE}")
    a(f"v_lshrrev_b32 {vr(T0)}, 3, {vr(vLANE)}")
    a(f"v_and_b32 {vr(T1)}, 7, {vr(vLANE)}")
    a(f"v_lshlrev_b32 {vr(T2)}, 1, {vr(vG)}")
    a(f"v_xor_b32 {vr(T2)}, {vr(T1)}, {vr(T2)}")
    a(f"v_mul_u32_u24 {vr(vOUT)}, 896, {vr(T0)}")
    a(f"s_mul_i32 {sr(sT0)}, {sr(sWAVE)}, {8*896}")
    a(f"s_lshl_b32 {sr(sT1)}, {sr(sHP)}, 7")
    a(f"s_add_u32 {sr(sT0)}, {sr(sT0)}, {sr(sT1)}")
    a(f"v_add_u32 {vr(vWOD)}, {sr(sT0)}, {vr(vOUT)}")
    a(f"v_lshl_add_u32 {vr(vWOD)}, {vr(T2)}, 4, {vr(vWOD)}")
    a(f"v_lshl_add_u32 {vr(vOUT)}, {vr(T1)}, 4, {vr(vOUT)}")
    a(f"s_lshl_b32 {sr(sT0)}, {sr(sRB)}, 3")
    a(f"s_add_u32 {sr(sT0)}, {sr(sT0)}, {sr(sWAVE)}")
    a(f"s_mul_i32 {sr(sT0)}, {sr(sT0)}, {16*896}")
    a(f"s_add_u32 {sr(sT0)}, {sr(sT0)}, {sr(sT1)}")
    a(f"v_add_u32 {vr(vOUT)}, {sr(sT0)}, {vr(vOUT)}")
    a(f"s_mul_i32 {sr(sT0)}, {sr(sWAVE)}, {16*144}")
    a(f"s_add_u32 {sr(sT0)}, {sr(sT0)}, {P2_CB}")
    a(f"v_mul_u32_u24 {vr(vCR)}, 144, {vr(T0)}")
    a(f"v_lshl_add_u32 {vr(vCR)}, {vr(T1)}, 4, {vr(vCR)}")
    a(f"v_add_u32 {vr(vCR)}, {sr(sT0)}, {vr(vCR)}")
    a(f"v_mul_u32_u24 {vr(vCW)}, 144, {vr(vI16)}")
    a(f"v_lshl_add_u32 {vr(vCW)}, {vr(vG)}, 3, {vr(vCW)}")
    a(f"v_add_u32 {vr(vCW)}, {sr(sT0)}, {vr(vCW)}")
    a(f"v_lshrrev_b32 {vr(T0)}, 2, {vr(vI16)}")
    a(f"v_lshl_add_u32 {vr(T1)}, {vr(vG)}, 2, {vr(T0)}")
    a(f"v_lshlrev_b32 {vr(T1)}, 7, {vr(T1)}")
    a(f"v_and_b32 {vr(T2)}, 3, {vr(vI16)}")
    a(f"v_lshl_add_u32 {vr(T1)}, {vr(T2)}, 3, {vr(T1)}")
    a(f"v_lshrrev_b32 {vr(T0)}, 1, {vr(T0)}")
    a(f"v_and_b32 {vr(T2)}, 1, {vr(vG)}")
    a(f"v_lshl_or_b32 {vr(T0)}, {vr(T2)}, 1, {vr(T0)}")
    a(f"v_lshl_add_u32 {vr(vWO[0])}, {vr(T0)}, 5, {vr(T1)}")
    for t in range(1, 4):
        a(f"v_xor_b32 {vr(vWO[t])}, {t*32}, {vr(vWO[0])}")

A_ONES, A_BIAS, A_SH, A_vEX, A_vPK, A_vPV, A_vHW = 216, 220, 226, 227, 228, 229, 230
def setup_A_consts():
    T0, T1, T2, T3, T4 = vT0, vT1, vT2, vT3, vT4
    BIAS = A_BIAS
    a(f"s_mov_b32 {sr(sODD)}, 0xaaaaaaaa"); a(f"s_mov_b32 {sr(sODD+1)}, 0xaaaaaaaa")
    a(f"s_mov_b32 {sr(sK0)}, {f2u(28**-0.5 * LOG2E)}")
    for i in range(4): a(f"v_mov_b32 {vr(A_ONES+i)}, 0x3f803f80")
    a(f"v_and_b32 {vr(T0)}, 1, {vr(vI16)}")
    a(f"v_lshlrev_b32 {vr(A_SH)}, 4, {vr(T0)}")
    a(f"v_lshl_add_u32 {vr(T1)}, {vr(vG)}, 2, {vr(T0)}")
    a(f"v_mov_b32 {vr(T2)}, 0xf149f2ca")
    a(f"v_cmp_le_u32 vcc, {vr(T1)}, {vr(vI16)}")
    a(f"v_add_u32 {vr(T3)}, 2, {vr(T1)}")
    a("s_nop 0")
    a(f"v_cndmask_b32 {vr(BIAS+2)}, {vr(T2)}, 0, vcc")
    a(f"v_cmp_le_u32 vcc, {vr(T3)}, {vr(vI16)}")
    a(f"v_add_u32 {vr(T4)}, 2, {vr(vI16)}")
    a("s_nop 0")
    a(f"v_cndmask_b32 {vr(BIAS+3)}, {vr(T2)}, 0, vcc")
    a(f"v_cmp_ge_u32 vcc, {vr(T1)}, {vr(T4)}")
    a("s_nop 1")
    a(f"v_cndmask_b32 {vr(BIAS+0)}, {vr(T2)}, 0, vcc")
    a(f"v_cmp_ge_u32 vcc, {vr(T3)}, {vr(T4)}")
    a("s_nop 1")
    a(f"v_cndmask_b32 {vr(BIAS+1)}, {vr(T2)}, 0, vcc")
    a(f"s_or_b32 {sr(sT0)}, {sr(sRB)}, {sr(sMI)}")
    a(f"s_cmp_eq_u32 {sr(sT0)}, 0")
    a(f"s_cselect_b32 {sr(sT0)}, 0xf149f2ca, 0")
    a(f"v_min_f32 {vr(BIAS+4)}, {sr(sT0)}, {vr(BIAS+0)}")
    a(f"v_min_f32 {vr(BIAS+5)}, {sr(sT0)}, {vr(BIAS+1)}")
    a(f"s_lshl_b32 {sr(sT0)}, {sr(sNI)}, 11")
    a(f"s_add_u32 {sr(sT1)}, {sr(sT0)}, {A_EX}")
    a(f"s_add_u32 {sr(sT0)}, {sr(sT0)}, {A_HB}")
    a(f"v_add_u32 {vr(A_vEX)}, {sr(sT1)}, {vr(vL16)}")
    a(f"s_lshl_b32 {sr(sT2)}, {sr(sMP)}, 12")
    a(f"v_add_u32 {vr(A_vEX)}, {sr(sT2)}, {vr(A_vEX)}")
    a(f"s_cmp_eq_u32 {sr(sMP)}, 0")
    a(f"s_cselect_b32 {sr(sT2)}, {sr(sT0)}, {sr(sT1)}")
    a(f"v_add_u32 {vr(A_vPK)}, {sr(sT2)}, {vr(vL16)}")
    a(f"s_lshl_b32 {sr(sT2)}, {sr(sMP)}, 10")
    a(f"s_add_u32 {sr(sT0)}, {sr(sT0)}, {sr(sT2)}")
    a(f"v_add_u32 {vr(A_vHW)}, {sr(sT0)}, {vr(vL16)}")

B_vSY, B_vSW, B_vSR, B_vPQ, B_vKW, B_vKR, B_vZR, B_SEL = 216, 217, 218, 219, 220, 221, 222, 224
B_EPS4 = 232
B_vSK = 223
B_vONE = 250
def setup_B_consts():
    a(f"s_mov_b32 {sr(sONE)}, 0x10001000"); a(f"s_mov_b32 {sr(sONE+1)}, 0x10001000")
    a(f"s_mov_b32 {sr(sL2E)}, {f2u(LOG2E)}"); a(f"s_mov_b32 {sr(sL2E+1)}, {f2u(LOG2E)}")
    a(f"s_mov_b32 {sr(sEPS)}, {f2u(1e-6)}"); a(f"s_mov_b32 {sr(sEPS+1)}, {f2u(1e-6)}")
    a(f"s_lshl_b32 {sr(sT0)}, {sr(sU)}, 11")
    a(f"s_add_u32 {sr(sT1)}, {sr(sT0)}, {B_KVS}")
    a(f"v_add_u32 {vr(B_vSW)}, {sr(sT1)}, {vr(vL16)}")
    a(f"s_xor_b32 {sr(sT1)}, {sr(sT0)}, 4096")
    a(f"s_add_u32 {sr(sT1)}, {sr(sT1)}, {B_KVS}")
    a(f"v_add_u32 {vr(B_vSR)}, {sr(sT1)}, {vr(vL16)}")
    a(f"v_mov_b32 {vr(B_vSY)}, {B_SY}")
    a(f"s_lshl_b32 {sr(sT1)}, {sr(sU)}, 2")
    a(f"v_add_u32 {vr(B_vPQ)}, {sr(sT1)}, {vr(B_vSY)}")
    a(f"s_lshl_b32 {sr(sT1)}, {sr(sNI)}, 2")
    a(f"s_add_u32 {sr(sT1)}, {sr(sT1)}, 16")
    a(f"v_add_u32 {vr(B_vSK)}, {sr(sT1)}, {vr(B_vSY)}")
    a(f"v_mov_b32 {vr(B_vONE)}, 1")
    a(f"s_lshl_b32 {sr(sT0)}, {sr(sHP)}, 2")
    a(f"s_add_u32 {sr(sT0)}, {sr(sT0)}, {sr(sU)}")
    a(f"s_lshl_b32 {sr(sT1)}, {sr(sT0)}, 14")
    a(f"s_add_u32 {sr(sKVO)}, {sr(sT1)}, {WS_KV}")
    a(f"s_lshl_b32 {sr(sT1)}, {sr(sT0)}, 9")
    a(f"s_add_u32 {sr(sF1R)}, {sr(sT1)}, {WS_F1}")
    a(f"s_lshl_b32 {sr(sT1)}, {sr(sRB)}, 5")
    a(f"s_add_u32 {sr(sF1W)}, {sr(sF1R)}, {sr(sT1)}")
    a(f"s_lshl_b32 {sr(sT0)}, {sr(sNI)}, 11")
    a(f"s_add_u32 {sr(sT0)}, {sr(sT0)}, {B_KVF}")
    a(f"v_add_u32 {vr(B_vKR)}, {sr(sT0)}, {vr(vL16)}")
    a(f"s_lshl_b32 {sr(sT1)}, {sr(sMP)}, 3")
    a(f"v_add_u32 {vr(B_vKW)}, {sr(sT1)}, {vr(B_vKR)}")
    a(f"v_lshlrev_b32 {vr(B_vZR)}, 8, {vr(vG)}")
    a(f"v_add_u32 {vr(B_vZR)}, {sr(sT0)}, {vr(B_vZR)}")
    a(f"s_lshl_b32 {sr(sT0)}, {sr(sRB)}, 2")
    a(f"s_add_u32 {sr(sT0)}, {sr(sT0)}, {sr(sU)}")
    a(f"s_lshl_b32 {sr(sT0)}, {sr(sT0)}, 7")
    a(f"s_add_u32 {sr(sGST)}, {sr(sT0)}, {WS_GATE}")
    T0, T1, T2 = vT0, vT1, vT2
    a(f"v_lshrrev_b32 {vr(T0)}, 2, {vr(vI16)}")
    a(f"v_and_b32 {vr(T1)}, 1, {vr(vI16)}")
    a(f"v_lshlrev_b32 {vr(T1)}, 4, {vr(T1)}")
    a(f"v_mov_b32 {vr(T2)}, 0x3f80")
    a(f"v_lshlrev_b32 {vr(T1)}, {vr(T1)}, {vr(T2)}")
    a(f"v_cmp_eq_u32 vcc, {vr(T0)}, {vr(vG)}")
    a(f"v_and_b32 {vr(T2)}, 2, {vr(vI16)}")
    a("s_nop 0")
    a(f"v_cndmask_b32 {vr(T1)}, 0, {vr(T1)}, vcc")
    a(f"v_cmp_eq_u32 vcc, 0, {vr(T2)}")
    for i in (2, 3, 4, 5): a(f"v_mov_b32 {vr(B_SEL+i)}, 0")
    a(f"v_cndmask_b32 {vr(B_SEL+0)}, 0, {vr(T1)}, vcc")
    a(f"v_cndmask_b32 {vr(B_SEL+1)}, {vr(T1)}, 0, vcc")
    a(f"v_mov_b32 {vr(B_SEL+6)}, {vr(B_SEL+0)}")
    a(f"v_mov_b32 {vr(B_SEL+7)}, {vr(B_SEL+1)}")
    for i in range(4): a(f"v_mov_b32 {vr(B_EPS4+i)}, {sr(sEPS)}")

def set_flag(soff, vtmp):
    a(f"v_mov_b32 {vr(vtmp)}, {sr(sTAG)}")
    a(f"v_mov_b32 {vr(vtmp+1)}, {sr(sTAG+1)}")
    a("s_mov_b64 exec, 1")
    a.vmem(f"buffer_store_dwordx2 {vr(vtmp,2)}, off, {sr(SWS,4)}, {sr(soff)} sc1", "flag")
    a("s_mov_b64 exec, -1")

def poll_issue(soff, vtmp):
    a.vmem(f"buffer_load_dwordx2 {vr(vtmp,2)}, {vr(vPOLL)}, {sr(SWS,4)}, {sr(soff)} offen sc1", "poll")

def poll_finish(soff, vtmp):
    L = a.newlabel("L_poll"); Ld = a.newlabel("L_polld")
    a(f"s_mov_b32 {sr(sCNT)}, 0")
    a.label(L)
    a("s_waitcnt vmcnt(0)")
    a(f"v_cmp_ne_u64 vcc, {sr(sTAG,2)}, {vr(vtmp,2)}")
    a(f"s_add_u32 {sr(sCNT)}, {sr(sCNT)}, 1")
    a(f"s_cbranch_vccz {Ld}")
    a(f"s_cmp_gt_u32 {sr(sCNT)}, 0x400000")
    a(f"s_cbranch_scc1 {Ld}")
    a(f"buffer_load_dwordx2 {vr(vtmp,2)}, {vr(vPOLL)}, {sr(SWS,4)}, {sr(soff)} offen sc1")
    a(f"s_branch {L}")
    a.label(Ld)
    a.vm = []

def lds_signal(addr, off=0):
    a("s_mov_b64 exec, 1")
    a(f"ds_add_u32 {vr(addr)}, {vr(B_vONE)} offset:{off}")
    a("s_mov_b64 exec, -1")

def lds_spin(reads, total, tmp):
    L = a.newlabel("L_spin"); Ld = a.newlabel("L_spind")
    a(f"s_mov_b32 {sr(sCNT)}, 0")
    a.label(L)
    for i, (ad, off) in enumerate(reads): a(f"ds_read_b32 {vr(tmp+i)}, {vr(ad)} offset:{off}")
    a(f"s_add_u32 {sr(sCNT)}, {sr(sCNT)}, 1")
    a("s_waitcnt lgkmcnt(0)")
    for i in range(1, len(reads)): a(f"v_add_u32 {vr(tmp)}, {vr(tmp)}, {vr(tmp+i)}")
    a(f"s_cmp_gt_u32 {sr(sCNT)}, 0x1000000")
    a(f"v_readfirstlane_b32 {sr(sT0)}, {vr(tmp)}")
    a(f"s_cbranch_scc1 {Ld}")
    a(f"s_cmp_lg_u32 {sr(sT0)}, {total}")
    a(f"s_cbranch_scc1 {L}")
    a.label(Ld)

def w_read_addr(dst, t, nseg, base):
    t0, t1 = vT0, vT1
    a(f"v_and_b32 {vr(t0)}, 3, {vr(vI16)}")
    a(f"v_lshlrev_b32 {vr(t0)}, 3, {vr(t0)}")
    a(f"s_mul_i32 {sr(sT0)}, {sr(sNI)}, 56")
    if t: a(f"s_add_u32 {sr(sT0)}, {sr(sT0)}, 32")
    a(f"v_add_u32 {vr(t0)}, {sr(sT0)}, {vr(t0)}")
    a(f"v_and_b32 {vr(t1)}, 8, {vr(vI16)}")
    a(f"v_lshlrev_b32 {vr(t1)}, 2, {vr(t1)}")
    a(f"v_xor_b32 {vr(t0)}, {vr(t0)}, {vr(t1)}")
    a(f"v_and_b32 {vr(t1)}, 1, {vr(vG)}")
    a(f"v_lshlrev_b32 {vr(t1)}, 6, {vr(t1)}")
    a(f"v_xor_b32 {vr(t0)}, {vr(t0)}, {vr(t1)}")
    a(f"v_lshrrev_b32 {vr(t1)}, 2, {vr(vI16)}")
    a(f"v_lshl_add_u32 {vr(t0)}, {vr(t1)}, 7, {vr(t0)}")
    a(f"v_mul_u32_u24 {vr(t1)}, {nseg*1024}, {vr(vG)}")
    a(f"v_add_u32 {vr(t0)}, {vr(t0)}, {vr(t1)}")
    a(f"v_add_u32 {vr(dst)}, {base}, {vr(t0)}")

def x_read_addr(d0, d1, d2, d3):
    a(f"v_lshrrev_b32 {vr(vT5)}, 1, {vr(vI16)}")
    a(f"v_xor_b32 {vr(vT5)}, {vr(vG)}, {vr(vT5)}")
    a(f"v_lshlrev_b32 {vr(vT5)}, 4, {vr(vT5)}")
    a(f"v_lshl_add_u32 {vr(vT5)}, {vr(vI16)}, 7, {vr(vT5)}")
    a(f"s_lshl_b32 {sr(sT1)}, {sr(sMP)}, 13")
    a(f"v_add_u32 {vr(d0)}, {sr(sT1)}, {vr(vT5)}")
    a(f"v_xor_b32 {vr(d1)}, 64, {vr(d0)}")
    if d2 is not None:
        a(f"v_add_u32 {vr(d2)}, 65536, {vr(d0)}")
        a(f"v_add_u32 {vr(d3)}, 65536, {vr(d1)}")

def pack4(d, t0, t1):
    cvtpk(d, t0, t0+1); cvtpk(d+1, t0+2, t0+3); cvtpk(d+2, t1, t1+1); cvtpk(d+3, t1+2, t1+3)

def R4(b): return list(range(b, b+4))

def sched_step(ms, rd, tail):
    rd = list(rd); nm = len(ms); nr = len(rd); done = 0
    span = max(1, nm - tail)
    for i, (fn, regs) in enumerate(ms):
        a.need(regs)
        fn()
        want = min(nr, -(-(i + 1) * nr // span))
        while done < want:
            a.dsr(rd[done]); done += 1
    while done < nr:
        a.dsr(rd[done]); done += 1

def o_B(PQ, T, O, p):
    KF = [T, T+4]; ZF = T+8
    a(f"ds_read_b128 {vr(ZF,4)}, {vr(B_vZR)} offset:{1024 + 12*16}")
    a(f"ds_read_b128 {vr(KF[0],4)}, {vr(B_vKR)}")
    a(f"ds_read_b128 {vr(KF[1],4)}, {vr(B_vKR)} offset:1024")
    a("s_waitcnt lgkmcnt(2)")
    for tl in range(2): mfma(O+tl*12+8, ZF, PQ+tl*4)
    a("s_waitcnt lgkmcnt(1)")
    for tl in range(2): mfma(O+tl*12, KF[0], PQ+tl*4)
    a("s_waitcnt lgkmcnt(0)")
    for tl in range(2): mfma(O+tl*12+4, KF[1], PQ+tl*4)
    a("s_nop 1")
    for tl in range(2): a(f"v_add_f32 {vr(O+tl*12+8)}, {sr(sEPS)}, {vr(O+tl*12+8)}")
    for tl in range(2): a(f"v_rcp_f32 {vr(O+tl*12+8)}, {vr(O+tl*12+8)}")
    a(f"s_add_u32 {sr(sT0)}, {sr(sOST)}, 16384")
    a("s_nop 0")
    for tl in range(2):
        b = O+tl*12
        for i in range(8): a(f"v_mul_f32 {vr(b+i)}, {vr(b+i)}, {vr(b+8)}")
        Rr = O+24+tl*4
        for i in range(4): cvtpk(Rr+i, b+2*i, b+2*i+1)
        a(f"v_cndmask_b32 {vr(Rr+2)}, 0, {vr(Rr+2)}, {sr(sMASK48,2)}")
        a(f"v_cndmask_b32 {vr(Rr+3)}, 0, {vr(Rr+3)}, {sr(sMASK48,2)}")
        a(f"buffer_store_dwordx4 {vr(Rr,4)}, {vr(vL16)}, {sr(SWS,4)}, {sr(sT0 if tl else sOST)} offen sc1")
    stamp(p + " o stored")
    a("s_waitcnt vmcnt(0)")
    set_flag(sF2W, T)
    stamp(p + " flag2 set")
    a("s_endpgm")

def phi_ops(base, n, tmp):
    seq = []
    for i in range(0, n, 2): seq.append(f"v_pk_mul_f32 {vr(tmp+i,2)}, {vr(base+i,2)}, {sr(sL2E,2)}")
    for i in range(n): seq.append(f"v_exp_f32 {vr(tmp+i)}, {vr(tmp+i)} clamp")
    for i in range(n): seq.append(f"v_max_f32 {vr(base+i)}, {sr(sEPS)}, {vr(base+i)}")
    for i in range(0, n, 2): seq.append(f"v_pk_add_f32 {vr(base+i,2)}, {vr(base+i,2)}, {vr(tmp+i,2)}")
    return seq

def loader():
    vXG0, vXG1, vWG0, vWG1, vH0, vH1 = 10, 11, 12, 13, 14, 15
    a.c("================ loader waves")
    a(f"s_lshl_b32 {sr(sU4K)}, {sr(sU)}, 12")
    a(f"s_mul_i32 {sr(sU6K)}, {sr(sU)}, 6144")
    a(f"v_lshrrev_b32 {vr(vT0)}, 3, {vr(vLANE)}")
    a(f"v_and_b32 {vr(vT1)}, 7, {vr(vLANE)}")
    a(f"v_xor_b32 {vr(vT2)}, {vr(vT1)}, {vr(vG)}")
    a(f"s_lshl_b32 {sr(sT0)}, {sr(sRB)}, 7")
    a(f"s_lshl_b32 {sr(sT1)}, {sr(sU)}, 5")
    a(f"s_add_u32 {sr(sT0)}, {sr(sT0)}, {sr(sT1)}")
    a(f"s_mul_i32 {sr(sT0)}, {sr(sT0)}, 896")
    a(f"v_mul_u32_u24 {vr(vT3)}, 896, {vr(vT0)}")
    a(f"v_lshl_add_u32 {vr(vT3)}, {vr(vT2)}, 4, {vr(vT3)}")
    a(f"v_add_u32 {vr(vXG0)}, {sr(sT0)}, {vr(vT3)}")
    a(f"v_xor_b32 {vr(vT4)}, 64, {vr(vT3)}")
    a(f"v_add_u32 {vr(vT4)}, {8*896-1024}, {vr(vT4)}")
    a(f"v_add_u32 {vr(vXG1)}, {sr(sT0)}, {vr(vT4)}")
    a(f"v_and_b32 {vr(vT2)}, 1, {vr(vG)}")
    a(f"v_lshlrev_b32 {vr(vT2)}, 1, {vr(vT2)}")
    a(f"v_xor_b32 {vr(vT2)}, {vr(vT1)}, {vr(vT2)}")
    a(f"v_xor_b32 {vr(vT5)}, 4, {vr(vT2)}")
    a(f"v_min_u32 {vr(vT2)}, 6, {vr(vT2)}")
    a(f"v_min_u32 {vr(vT5)}, 6, {vr(vT5)}")
    a(f"s_mul_i32 {sr(sT0)}, {sr(sU)}, {16*2688}")
    a(f"s_mul_i32 {sr(sT1)}, {sr(sHP)}, 112")
    a(f"s_add_u32 {sr(sT0)}, {sr(sT0)}, {sr(sT1)}")
    a(f"v_mul_u32_u24 {vr(vWG0)}, 2688, {vr(vT0)}")
    a(f"v_add_u32 {vr(vWG0)}, {sr(sT0)}, {vr(vWG0)}")
    a(f"v_lshl_add_u32 {vr(vWG1)}, {vr(vT5)}, 4, {vr(vWG0)}")
    a(f"v_add_u32 {vr(vWG1)}, {8*2688}, {vr(vWG1)}")
    a(f"v_lshl_add_u32 {vr(vWG0)}, {vr(vT2)}, 4, {vr(vWG0)}")
    a("s_waitcnt lgkmcnt(0)")
    P = sPTR
    srd(SX, P+0, 1835008)
    a(f"s_cmp_eq_u32 {sr(sTYPE)}, 1")
    a(f"s_cselect_b32 {sr(SW)}, {sr(P+2)}, {sr(P+8)}")
    a(f"s_cselect_b32 {sr(SW+1)}, {sr(P+3)}, {sr(P+9)}")
    a(f"s_mov_b32 {sr(SW+2)}, 1204224")
    a(f"s_mov_b32 {sr(SW+3)}, 0x00020000")
    a("s_cbranch_scc0 L_ldB")
    def issue_x(c, base, tag):
        a(f"s_add_u32 m0, {sr(sU4K)}, {base}")
        a(f"s_mov_b32 {sr(sSOX)}, {c*128}")
        a(f"s_mov_b32 {sr(sSOX2)}, {c*128 + 16*896-2048}")
        a.vmem(f"buffer_load_dwordx4 {vr(vXG0)}, {sr(SX,4)}, {sr(sSOX)} offen lds", tag)
        a.vmem(f"buffer_load_dwordx4 {vr(vXG1)}, {sr(SX,4)}, {sr(sSOX)} offen offset:1024 lds", tag)
        a.vmem(f"buffer_load_dwordx4 {vr(vXG0)}, {sr(SX,4)}, {sr(sSOX2)} offen offset:2048 lds", tag)
        a.vmem(f"buffer_load_dwordx4 {vr(vXG1)}, {sr(SX,4)}, {sr(sSOX2)} offen offset:3072 lds", tag)
    def issue_w(c, base, segs, ubase, tag):
        n = len(segs)
        for v in range(2):
            for i, sg in enumerate(segs):
                a(f"s_add_u32 m0, {sr(ubase)}, {base + v*n*1024 + i*1024 - sg*896}")
                a(f"s_mov_b32 {sr(sSOW)}, {c*172032}")
                off = f" offset:{sg*896}" if sg else ""
                a.vmem(f"buffer_load_dwordx4 {vr(vWG0 if v == 0 else vWG1)}, {sr(SW,4)}, {sr(sSOW)} offen{off} lds", tag)
    def wo_prefetch(srdreg):
        a(f"s_and_b32 {sr(sT0)}, {sr(sJ)}, 15")
        a(f"s_lshl_b32 {sr(sT0)}, {sr(sT0)}, 2")
        a(f"s_add_u32 {sr(sT0)}, {sr(sT0)}, {sr(sU)}")
        a(f"s_lshl_b32 {sr(sT0)}, {sr(sT0)}, 13")
        a(f"v_lshlrev_b32 {vr(vH0)}, 7, {vr(vLANE)}")
        a.vmem(f"buffer_load_dword {vr(vDUM)}, {vr(vH0)}, {sr(srdreg,4)}, {sr(sT0)} offen", "pfwo")
    def first_stamps(p):
        if STAMPS:
            a("s_memrealtime s[88:89]")
            a("s_waitcnt lgkmcnt(0)")
            stamp(p + " entry", 98); stamp(p + " c0 issued", 96); stamp(p + " c1 issued", 88)
    def chunkA(c):
        issue_x(c, L_X[c % 3], f"c{c}"); issue_w(c, L_W[c % 3], (0, 1, 2), sU6K, f"c{c}")
    chunkA(0)
    if STAMPS: a("s_memrealtime s[96:97]")
    a(f"s_lshl_b32 {sr(sT0)}, {sr(sRB)}, 7")
    a(f"s_sub_u32 {sr(sT0)}, {sr(sT0)}, 16")
    a(f"s_mul_i32 {sr(sT0)}, {sr(sT0)}, 896")
    a(f"v_add_u32 {vr(vH0)}, {sr(sT0)}, {vr(vT3)}")
    a(f"v_add_u32 {vr(vH1)}, {sr(sT0)}, {vr(vT4)}")
    a(f"s_lshl_b32 {sr(sT2)}, {sr(sU)}, 11")
    a(f"s_lshl_b32 {sr(sT1)}, {sr(sU)}, 7")
    a(f"s_add_u32 {sr(sT3)}, {sr(sT1)}, 512")
    a(f"s_add_u32 m0, {sr(sT2)}, {A_HALO}")
    a(f"s_cmp_eq_u32 {sr(sRB)}, 0")
    a(f"s_cselect_b32 {sr(sT1)}, 0, {sr(sT1)}")
    a(f"s_cselect_b32 {sr(sT3)}, 0, {sr(sT3)}")
    a.vmem_unc(f"buffer_load_dwordx4 {vr(vH0)}, {sr(SX,4)}, {sr(sT1)} offen lds")
    a.vmem_unc(f"buffer_load_dwordx4 {vr(vH1)}, {sr(SX,4)}, {sr(sT1)} offen offset:1024 lds")
    a(f"s_cmp_eq_u32 {sr(sU)}, 3")
    a("s_cbranch_scc1 L_ld_sided")
    a(f"s_add_u32 m0, {sr(sT2)}, {A_HALO + 8192}")
    a("s_nop 0")
    a.vmem_unc(f"buffer_load_dwordx4 {vr(vH0)}, {sr(SX,4)}, {sr(sT3)} offen lds")
    a.vmem_unc(f"buffer_load_dwordx4 {vr(vH1)}, {sr(SX,4)}, {sr(sT3)} offen offset:1024 lds")
    a.label("L_ld_sided")
    chunkA(1)
    late_srds()
    first_stamps("L")
    for c in range(7):
        if c == 0:
            n = len([t for t in a.vm if t != "c0"])
            a(f"s_waitcnt vmcnt({n}) lgkmcnt(0)"); a.vm = [t for t in a.vm if t != "c0"]
        else:
            a.wait_vm(f"c{c}")
        a("s_barrier")
        if c == 0: compute_tag()
        if c + 2 < 7: chunkA(c + 2)
        if c == 4:
            wo_prefetch(SWOB); late_setup(True)
    a("s_barrier")
    if flag("wolate"): a("s_barrier")
    a(f"s_cmp_eq_u32 {sr(sHP)}, 7")
    a("s_cbranch_scc1 L_idle2")
    a(f"v_subrev_u32 v16, {32*896}, {vr(vWOD)}")
    for b in range(2):
        for n in range(7):
            for hw in range(2):
                a(f"s_add_u32 m0, {sr(sW1K)}, {P2_WO + b*57344 + n*8192 - hw*4096}")
                a(f"s_mov_b32 {sr(sT2)}, {n*57344}")
                a(f"buffer_load_dwordx4 {vr(vWOD if hw == 0 else 16)}, {sr(SWOA if b==0 else SWOB,4)}, {sr(sT2)} offen lds")
    stamp("L wo issued")
    a("s_branch L_phase2")
    a.label("L_ldB")
    a.vm = []
    sU2K = sU6K
    a(f"s_lshl_b32 {sr(sU2K)}, {sr(sU)}, 11")
    issue_x(0, BX[0], "c0"); issue_w(0, BW[0], (1, 2), sU4K, "c0")
    if STAMPS: a("s_memrealtime s[96:97]")
    issue_x(1, BX[1], "c1"); issue_w(1, BW[1], (1, 2), sU4K, "c1")
    issue_x(2, BX[2], "c2")
    late_srds()
    first_stamps("M")
    vXR = [16, 17, 18, 19]; vQR = [251, 252]; vGR_ = 15
    for c in range(7):
        a.wait_vm(f"c{c}", " lgkmcnt(0)" if c == 0 else "")
        a("s_barrier")
        if c == 0: compute_tag()
        if 1 <= c <= 5: issue_w(c + 1, BW[(c + 1) % 2], (1, 2), sU4K, f"c{c+1}")
        if c + 3 < 7: issue_x(c + 3, BX[c + 3], f"c{c+3}")
        if c == 3:
            L = a.newlabel("L_gw")
            a(f"s_cmp_lg_u32 {sr(sU)}, 0")
            a(f"s_cbranch_scc1 {L}")
            a(f"v_lshlrev_b32 {vr(vH0)}, 4, {vr(vLANE)}")
            a(f"s_mov_b32 m0, {B_GW}")
            a("s_nop 0")
            a.vmem_unc(f"buffer_load_dwordx4 {vr(vH0)}, {sr(SG,4)}, 0 offen lds")
            a.label(L)
        if c == 4:
            late_setup(False); setup_B_consts()
            x_read_addr(*vXR)
            for t in range(2): w_read_addr(vQR[t], t, 1, BW[0])
            a(f"v_lshlrev_b32 {vr(vGR_)}, 4, {vr(vG)}")
            a(f"v_add_u32 {vr(vGR_)}, {B_GW}, {vr(vGR_)}")
        if c == 5: wo_prefetch(SWOA)
        if c == 6:
            for q in (0, 1): issue_w(q, BQS[q], (0,), sU2K, "g0")
    a("s_barrier")
    stamp("M barH")
    SETS = [24, 52]; AQ = 112; AG = 144; EPS4 = B_EPS4
    def qreads(k, S):
        c, ks = divmod(k, 2)
        xr = vXR[(2 if c >= 4 else 0) + ks]; xo = BX[c] - (65536 if c >= 4 else 0)
        wb = BQS[c] - BW[0] + ks*4096
        out = [f"ds_read_b128 {vr(S,4)}, {vr(xr)} offset:{xo}"]
        out += [f"ds_read_b64_tr_b16 {vr(S+20+2*h,2)}, {vr(vQR[0])} offset:{wb + h*512}" for h in range(2)]
        out += [f"ds_read_b128 {vr(S+tl*4,4)}, {vr(xr)} offset:{xo + tl*2048}" for tl in (1, 2, 3)]
        out += [f"ds_read_b64_tr_b16 {vr(S+24+2*h,2)}, {vr(vQR[1])} offset:{wb + h*512}" for h in range(2)]
        out.append(f"ds_read_b128 {vr(S+16,4)}, {vr(vGR_)} offset:{k*64}")
        return out
    def qm(k, S):
        ms = []
        for t in range(2):
            for tl in range(4):
                d = AQ + (tl*2+t)*4
                ms.append((lambda d=d, t=t, tl=tl: mfma(d, S+20+t*4, S+tl*4, EPS4 if k == 0 else d), R4(S+20+t*4) + R4(S+tl*4)))
        def side():
            L1 = a.newlabel("L_s"); L2 = a.newlabel("L_s")
            C0 = None if k == 0 else AG; C1 = None if k == 0 else AG+4
            a(f"s_cbranch_vccnz {L2}")
            a(f"s_cmp_eq_u32 {sr(sNI)}, 1")
            a(f"s_cbranch_scc1 {L1}")
            mfma(AG, S+16, S+0, C0); mfma(AG+4, S+16, S+4, C1)
            a(f"s_branch {L2}")
            a.label(L1)
            mfma(AG, S+16, S+8, C0); mfma(AG+4, S+16, S+12, C1)
            a.label(L2)
        ms.append((side, R4(S+16)))
        return ms
    a(f"s_cmp_lg_u32 {sr(sHP)}, 0")
    a("s_cselect_b64 vcc, -1, 0")
    groups = [(0, 1), (2, 3, 4), (5, 6)]
    for q in (2, 3): issue_w(q, BQS[q], (0,), sU2K, "g1")
    lds_spin([(B_vSY, 24)], 4, vT0)
    issue_w(4, BQS[4], (0,), sU2K, "g1")
    for g, chs in enumerate(groups):
        a.wait_vm(f"g{g}")
        lds_signal(B_vSY, 32 + 4*g)
        lds_spin([(B_vSY, 32 + 4*g)], 4, vT0)
        a.ds_all()
        ks_list = [2*c + ks for c in chs for ks in range(2)]
        for r in qreads(ks_list[0], SETS[0]): a.dsr(r)
        for i, k in enumerate(ks_list):
            nxt = qreads(ks_list[i+1], SETS[(i+1) & 1]) if i + 1 < len(ks_list) else []
            if not nxt and g == 0:
                a("s_waitcnt lgkmcnt(0)"); a.ds_all()
                lds_signal(B_vSY, 48)
            sched_step(qm(k, SETS[i & 1]), nxt, 2)
        if g == 0:
            lds_spin([(B_vSY, 48)], 4, vT0)
            for q in groups[2]: issue_w(q, BQS[q], (0,), sU2K, "g2")
    a.ds_all()
    stamp("M pass2 done")
    TM = 24
    a("s_nop 4")
    for t_ in phi_ops(AQ, 32, TM): a(t_)
    a(f"s_cbranch_vccnz L_M_nogate")
    for tl in range(2): a(f"v_mul_f32 {vr(AG+tl*4)}, {sr(sL2E)}, {vr(AG+tl*4)}")
    for tl in range(2): a(f"v_exp_f32 {vr(AG+tl*4)}, -{vr(AG+tl*4)}")
    a("s_nop 0")
    for tl in range(2): a(f"v_add_f32 {vr(AG+tl*4)}, 1.0, {vr(AG+tl*4)}")
    for tl in range(2): a(f"v_rcp_f32 {vr(AG+tl*4)}, {vr(AG+tl*4)}")
    a("s_mov_b64 exec, 0xffff")
    for tl in range(2):
        a.vmem_unc(f"buffer_store_dword {vr(AG+tl*4)}, {vr(vGT)}, {sr(SWS,4)}, {sr(sGST)} offen offset:{tl*64} sc1")
    a("s_mov_b64 exec, -1")
    a.label("L_M_nogate")
    PQ = 56
    for tl in range(4):
        d = PQ + tl*4
        pack4(d, AQ+tl*8, AQ+tl*8+4)
        a(f"v_cndmask_b32 {vr(d+2)}, 0, {vr(d+2)}, {sr(sMASK48,2)}")
        a(f"v_cndmask_b32 {vr(d+3)}, 0, {vr(d+3)}, {sr(sMASK48,2)}")
    a(f"v_subrev_u32 {vr(vT1)}, {B_KVS}, {vr(B_vSW)}")
    for tl in range(2): a(f"ds_write_b128 {vr(vT1)}, {vr(PQ+tl*4,4)} offset:{tl*1024}")
    a("s_waitcnt vmcnt(0) lgkmcnt(0)")
    lds_signal(B_vPQ)
    stamp("M pq done")
    lds_spin([(B_vSK, 0)], 2, vT0)
    a.vm = []
    o_B(PQ + 8, 24, 112, "M")

EA_Q = [24, 28]; EA_K = [32, 36]; EA_KP = 40; EA_V = [44, 54]
EA_Q23 = [64, 68]; EA_K23 = [72, 76]; EA_H = 80

def l2_prefetch():
    if flag("nopf"): return
    P = sPTR; SP = SX
    a(f"s_cmp_lt_u32 {sr(sJ)}, 20")
    a(f"s_cselect_b32 {sr(SP)}, {sr(P+2)}, {sr(P+8)}")
    a(f"s_cselect_b32 {sr(SP+1)}, {sr(P+3)}, {sr(P+9)}")
    a(f"s_cselect_b32 {sr(sT2)}, 8, 20")
    a(f"s_mov_b32 {sr(SP+2)}, 1204224")
    a(f"s_mov_b32 {sr(sT3)}, 172032")
    a(f"s_cmp_lt_u32 {sr(sJ)}, 8")
    a(f"s_cselect_b32 {sr(SP)}, {sr(P+0)}, {sr(SP)}")
    a(f"s_cselect_b32 {sr(SP+1)}, {sr(P+1)}, {sr(SP+1)}")
    a(f"s_cselect_b32 {sr(SP+2)}, 1835008, {sr(SP+2)}")
    a(f"s_mov_b32 {sr(SP+3)}, 0x00020000")
    a(f"s_cselect_b32 {sr(sT3)}, 128, {sr(sT3)}")
    a(f"s_cselect_b32 {sr(sT2)}, 0, {sr(sT2)}")
    a(f"s_cselect_b64 vcc, -1, 0")
    a(f"s_sub_u32 {sr(sT2)}, {sr(sJ)}, {sr(sT2)}")
    a(f"s_lshl_b32 {sr(sT2)}, {sr(sT2)}, 6")
    a(f"v_add_u32 {vr(vT2)}, {sr(sT2)}, {vr(vLANE)}")
    a(f"s_lshr_b32 {sr(sT1)}, {sr(sRB)}, 2")
    a(f"s_lshl_b32 {sr(sT1)}, {sr(sT1)}, 9")
    a(f"v_add_u32 {vr(vT3)}, {sr(sT1)}, {vr(vT2)}")
    a(f"v_mul_u32_u24 {vr(vT3)}, 896, {vr(vT3)}")
    a(f"v_mul_u32_u24 {vr(vT4)}, 43691, {vr(vT2)}")
    a(f"v_lshrrev_b32 {vr(vT4)}, 19, {vr(vT4)}")
    a(f"v_mul_u32_u24 {vr(vT0)}, 12, {vr(vT4)}")
    a(f"v_sub_u32 {vr(vT2)}, {vr(vT2)}, {vr(vT0)}")
    a(f"v_mul_u32_u24 {vr(vT4)}, 2688, {vr(vT4)}")
    a(f"v_lshrrev_b32 {vr(vT0)}, 2, {vr(vT2)}")
    a(f"v_mul_u32_u24 {vr(vT0)}, 896, {vr(vT0)}")
    a(f"v_add_u32 {vr(vT4)}, {vr(vT4)}, {vr(vT0)}")
    a(f"v_and_b32 {vr(vT2)}, 3, {vr(vT2)}")
    a(f"v_lshl_add_u32 {vr(vT4)}, {vr(vT2)}, 7, {vr(vT4)}")
    a(f"s_mul_i32 {sr(sT1)}, {sr(sHALF)}, 384")
    a(f"v_add_u32 {vr(vT4)}, {sr(sT1)}, {vr(vT4)}")
    a(f"v_cndmask_b32 {vr(vT4)}, {vr(vT4)}, {vr(vT3)}, vcc")
    PF0 = opt("pf0", 1)
    a(f"s_add_u32 {sr(sT1)}, {sr(sU)}, {PF0}")
    a(f"s_mul_i32 {sr(sT1)}, {sr(sT1)}, {sr(sT3)}")
    a(f"buffer_load_dword {vr(vDUM)}, {vr(vT4)}, {sr(SP,4)}, {sr(sT1)} offen")
    L = a.newlabel("L_pf")
    a(f"s_cmp_ge_u32 {sr(sU)}, {3 - PF0}")
    a(f"s_cbranch_scc1 {L}")
    a(f"s_lshl_b32 {sr(sT3)}, {sr(sT3)}, 2")
    a(f"s_add_u32 {sr(sT1)}, {sr(sT1)}, {sr(sT3)}")
    a(f"buffer_load_dword {vr(vDUM)}, {vr(vT4)}, {sr(SP,4)}, {sr(sT1)} offen")
    a.label(L)

def compute():
    a.label("L_compute")
    a(f"s_and_b32 {sr(sT2)}, {sr(sJ)}, 7")
    a(f"s_or_b32 {sr(sT2)}, {sr(sT2)}, {sr(sWAVE)}")
    a(f"s_cmp_lg_u32 {sr(sT2)}, 0")
    a("s_cbranch_scc1 L_nopf")
    a(f"v_lshlrev_b32 {vr(vT1)}, 7, {vr(vLANE)}")
    for i in range(4):
        if i:
            a(f"v_add_u32 {vr(vT1)}, 8192, {vr(vT1)}")
            a(f"v_min_u32 {vr(vT1)}, L_end-L_pc, {vr(vT1)}")
        a.vmem_unc(f"global_load_dword {vr(vDUM)}, {vr(vT1)}, {sr(sPC,2)}")
    a.label("L_nopf")
    a(f"s_cmp_eq_u32 {sr(sTYPE)}, 0")
    a("s_cbranch_scc1 L_cB")
    vXR0, vXR1, vHR0, vHR1 = 10, 11, 12, 13
    vWR = {(0,0):14, (1,0):15, (0,1):16, (1,1):17}
    SETS = [24, 68]
    ACC = 112; ACX = 208
    def acc(seg, t, tl): return ACC + ((seg*2+t)*4+tl)*4
    x_read_addr(vXR0, vXR1, None, None)
    a(f"v_add_u32 {vr(vHR0)}, {A_HALO}, {vr(vT5)}")
    a(f"v_xor_b32 {vr(vHR1)}, 64, {vr(vHR0)}")
    for t in range(2):
        w_read_addr(vWR[(t,0)], t, 3, L_W[0])
        a(f"v_add_u32 {vr(vWR[(t,1)])}, {L_W[2]-L_W[0]}, {vr(vWR[(t,0)])}")
    a("s_waitcnt lgkmcnt(0)")
    l2_prefetch()
    late_srds(); late_setup(True); setup_A_consts()
    def reads(c, ks, S):
        sl = c % 3; out = []
        xr = vXR0 if ks == 0 else vXR1
        reg = 1 if sl == 2 else 0
        wb = (L_W[sl] - L_W[2*reg]) + ks*4*3072
        def wfrag(seg, t):
            for h in range(2):
                out.append(f"ds_read_b64_tr_b16 {vr(S+20+(seg*2+t)*4+2*h,2)}, {vr(vWR[(t,reg)])} offset:{wb + seg*1024 + h*512}")
        def xfrag(tl): out.append(f"ds_read_b128 {vr(S+tl*4,4)}, {vr(xr)} offset:{L_X[sl] + tl*2048}")
        xfrag(0); wfrag(0, 0); xfrag(1); xfrag(2); xfrag(3); wfrag(0, 1)
        for seg in (1, 2):
            for t in range(2): wfrag(seg, t)
        out.append(f"ds_read_b128 {vr(S+16,4)}, {vr(vHR0 if ks == 0 else vHR1)} offset:{c*2048}")
        return out
    def mlist(S, first):
        ms = []
        for seg in range(3):
            for t in range(2):
                for tl in range(4):
                    d = acc(seg, t, tl); W = S+20+(seg*2+t)*4; X = S+tl*4
                    A_, B_ = (W, X) if seg < 2 else (X, W)
                    ms.append((lambda d=d, A_=A_, B_=B_: mfma(d, A_, B_, None if first else d), R4(W) + R4(X)))
        def side():
            L1 = a.newlabel("L_s"); L2 = a.newlabel("L_s")
            C0 = None if first else ACX; C1 = None if first else ACX+4
            a(f"s_cbranch_scc1 {L1}")
            mfma(ACX, S+28, S+16, C0); mfma(ACX+4, S+32, S+16, C1)
            a(f"s_branch {L2}")
            a.label(L1)
            mfma(ACX, S+16, S+36, C0); mfma(ACX+4, S+16, S+40, C1)
            a.label(L2)
        ms.append((side, R4(S+16)))
        return ms
    a("s_waitcnt lgkmcnt(0)")
    compute_tag()
    stamp("A setup done")
    a(f"s_cmp_eq_u32 {sr(sMP)}, 1")
    for c in range(7):
        a.c(f"---- A chunk {c}")
        a("s_waitcnt lgkmcnt(0)")
        a.ds_all()
        a("s_barrier")
        r0 = reads(c, 0, SETS[0])
        if c == 0:
            for r in r0: a.dsr(r)
        else:
            sched_step(mlist(SETS[1], False), r0, 2)
        sched_step(mlist(SETS[0], c == 0), reads(c, 1, SETS[1]), 6)
    sched_step(mlist(SETS[1], False), [], 0)
    a.ds_all()
    stamp("A gemm done")
    KB = 24; QB = 44; VB = [60, 70]; HB_ = 80
    pack4(KB+16, acc(1,0,3), acc(1,1,3))
    a(f"ds_write_b128 {vr(A_vEX)}, {vr(KB+16,4)}")
    for et in range(2):
        cvtpk(VB[et]+8, acc(2,et,3), acc(2,et,3)+1); cvtpk(VB[et]+9, acc(2,et,3)+2, acc(2,et,3)+3)
        a(f"ds_write_b64 {vr(A_vEX)}, {vr(VB[et]+8,2)} offset:{1024 + et*8}")
    for tl in range(3): pack4(KB+4+tl*4, acc(1,0,tl), acc(1,1,tl))
    pack4(HB_, ACX, ACX+4)
    a(f"ds_write_b128 {vr(A_vHW)}, {vr(HB_,4)}")
    for tl in range(4):
        pack4(QB+tl*4, acc(0,0,tl), acc(0,1,tl))
        a(f"v_cndmask_b32 {vr(QB+tl*4+2)}, 0, {vr(QB+tl*4+2)}, {sr(sMASK48,2)}")
        a(f"v_cndmask_b32 {vr(QB+tl*4+3)}, 0, {vr(QB+tl*4+3)}, {sr(sMASK48,2)}")
    a("s_waitcnt lgkmcnt(0)")
    a("s_barrier")
    a(f"ds_read_b128 {vr(KB,4)}, {vr(A_vPK)}")
    a(f"ds_read_b64 {vr(VB[0],2)}, {vr(A_vPK)} offset:1024")
    a(f"ds_read_b64 {vr(VB[1],2)}, {vr(A_vPK)} offset:1032")
    for tl in range(3):
        for et in range(2):
            d = VB[et] + 2 + tl*2
            cvtpk(d, acc(2,et,tl), acc(2,et,tl)+1); cvtpk(d+1, acc(2,et,tl)+2, acc(2,et,tl)+3)
    BIAS = A_BIAS
    TT = [84, 112, 140, 168]
    def R(tl, k): return TT[tl] + k
    order = (3, 2, 1, 0)
    for tl in (3, 2, 1):
        mfma(R(tl,0), KB+tl*4, QB+tl*4); mfma(R(tl,4), KB+4+tl*4, QB+tl*4)
    mfma(R(0,4), KB+4, QB)
    a("s_waitcnt lgkmcnt(0)")
    mfma(R(0,0), KB, QB)
    for tl in order:
        for i, (s_, o) in enumerate(((0,0),(0,2),(4,0),(4,2))):
            a(f"v_cndmask_b32 {vr(R(tl,8+i))}, {vr(R(tl,s_+o))}, {vr(R(tl,s_+o+1))}, {sr(sODD,2)}")
        bp = BIAS if tl else BIAS + 4
        for i, b in enumerate((bp, bp+1, BIAS+2, BIAS+3)):
            a(f"v_fma_f32 {vr(R(tl,8+i))}, {vr(R(tl,8+i))}, {sr(sK0)}, {vr(b)}")
        a(f"v_max3_f32 {vr(R(tl,12))}, {vr(R(tl,8))}, {vr(R(tl,9))}, {vr(R(tl,10))}")
        a(f"v_max_f32 {vr(R(tl,12))}, {vr(R(tl,12))}, {vr(R(tl,11))}")
        a(f"v_mov_b32 {vr(R(tl,13))}, {vr(R(tl,12))}")
    for tl in order: a(f"v_permlane32_swap_b32 {vr(R(tl,12))}, {vr(R(tl,13))}")
    for tl in order: a(f"v_max_f32 {vr(R(tl,12))}, {vr(R(tl,12))}, {vr(R(tl,13))}")
    for tl in order: a(f"v_mov_b32 {vr(R(tl,13))}, {vr(R(tl,12))}")
    for tl in order: a(f"v_permlane16_swap_b32 {vr(R(tl,12))}, {vr(R(tl,13))}")
    for tl in order: a(f"v_max_f32 {vr(R(tl,12))}, {vr(R(tl,12))}, {vr(R(tl,13))}")
    for tl in order:
        for i in range(4): a(f"v_sub_f32 {vr(R(tl,8+i))}, {vr(R(tl,8+i))}, {vr(R(tl,12))}")
        for i in range(4): a(f"v_exp_f32 {vr(R(tl,8+i))}, {vr(R(tl,8+i))}")
    for tl in order:
        for i in range(4): a(f"v_cvt_pk_bf16_f32 {vr(R(tl,16+i))}, {vr(R(tl,8+i))}, 0")
        for i in range(4): a(f"v_lshlrev_b32 {vr(R(tl,16+i))}, {vr(A_SH)}, {vr(R(tl,16+i))}")
        if tl == 3: continue
        p = tl + 1
        mfma(R(p,20), A_ONES, R(p,16)); mfma(R(p,0), VB[0]+2*p, R(p,16)); mfma(R(p,4), VB[1]+2*p, R(p,16))
    a("s_nop 1")
    mfma(R(0,20), A_ONES, R(0,16)); mfma(R(0,0), VB[0], R(0,16)); mfma(R(0,4), VB[1], R(0,16))
    for tl in order:
        a(f"v_rcp_f32 {vr(R(tl,12))}, {vr(R(tl,20))}")
        if tl: a(f"s_add_u32 {sr(sT0)}, {sr(sOST)}, {tl*16384}")
        else: a("s_nop 0")
        for i in range(8): a(f"v_mul_f32 {vr(R(tl,i))}, {vr(R(tl,i))}, {vr(R(tl,12))}")
        for i in range(4): cvtpk(R(tl,24+i), R(tl,2*i), R(tl,2*i+1))
        a(f"v_cndmask_b32 {vr(R(tl,26))}, 0, {vr(R(tl,26))}, {sr(sMASK48,2)}")
        a(f"v_cndmask_b32 {vr(R(tl,27))}, 0, {vr(R(tl,27))}, {sr(sMASK48,2)}")
        a(f"buffer_store_dwordx4 {vr(R(tl,24),4)}, {vr(vL16)}, {sr(SWS,4)}, {sr(sT0 if tl else sOST)} offen sc1")
    if flag("wolate"): a("s_barrier")
    stamp("A attn done")
    a(f"v_mov_b32 v24, {sr(sTAG)}")
    a(f"v_mov_b32 v25, {sr(sTAG+1)}")
    a(f"v_lshlrev_b32 v26, 9, {vr(vLANE)}")
    a("s_waitcnt vmcnt(0)")
    a("s_mov_b64 exec, 3")
    a(f"buffer_store_dwordx2 v[24:25], v26, {sr(SWS,4)}, {sr(sF2W)} offen sc1")
    a("s_mov_b64 exec, -1")
    stamp("A flag set")
    a(f"s_cmp_eq_u32 {sr(sHP)}, 7")
    a("s_cbranch_scc1 L_idle2")
    a("s_branch L_phase2")

    a.label("L_cB")
    a.vm = []
    vXR = [10, 11, 12, 13]; vWB = [14, 15]
    SB = [24, 56]; AB = 112
    def accB(seg, t, tl): return AB + ((seg*2+t)*4+tl)*4
    x_read_addr(*vXR)
    for t in range(2): w_read_addr(vWB[t], t, 2, BW[0])
    a("s_waitcnt lgkmcnt(0)")
    l2_prefetch()
    late_srds(); late_setup(False); setup_B_consts()
    a(f"v_lshlrev_b32 {vr(vT0)}, 2, {vr(vI16)}")
    a(f"v_add_u32 {vr(vT0)}, {B_SY}, {vr(vT0)}")
    a(f"v_mov_b32 {vr(vT1)}, 0")
    a(f"ds_write_b32 {vr(vT0)}, {vr(vT1)}")
    a("s_waitcnt lgkmcnt(0)")
    compute_tag()
    stamp("B setup done")
    def breads(c, ks, S):
        xr = vXR[(2 if c >= 4 else 0) + ks]; xo = BX[c] - (65536 if c >= 4 else 0)
        wb = BW[c % 2] - BW[0] + ks*4*2048
        out = []
        def wfrag(seg, t):
            for h in range(2):
                out.append(f"ds_read_b64_tr_b16 {vr(S+16+(seg*2+t)*4+2*h,2)}, {vr(vWB[t])} offset:{wb + seg*1024 + h*512}")
        def xfrag(tl): out.append(f"ds_read_b128 {vr(S+tl*4,4)}, {vr(xr)} offset:{xo + tl*2048}")
        xfrag(0); wfrag(0, 0); xfrag(1); xfrag(2); xfrag(3); wfrag(0, 1); wfrag(1, 0); wfrag(1, 1)
        return out
    def bm(S, first):
        ms = []
        for seg in range(2):
            for t in range(2):
                for tl in range(4):
                    d = accB(seg, t, tl); W = S+16+(seg*2+t)*4; X = S+tl*4
                    c0 = B_EPS4 if seg == 0 else None
                    ms.append((lambda d=d, X=X, W=W, c0=c0: mfma(d, X, W, c0 if first else d), R4(W) + R4(X)))
        return ms
    T = 176
    for c in range(7):
        a.c(f"---- B chunk {c}")
        a("s_waitcnt lgkmcnt(0)")
        a.ds_all()
        a("s_barrier")
        r0 = breads(c, 0, SB[0])
        if c == 0:
            for r in r0: a.dsr(r)
        else:
            sched_step(bm(SB[1], False), r0, 2)
        if c < 6:
            sched_step(bm(SB[0], c == 0), breads(c, 1, SB[1]), 4)
    m0, m1 = bm(SB[0], False), bm(SB[1], False)
    sched_step(m0[:12], breads(6, 1, SB[1]), 4)
    for fn, regs in m1[:8]:
        a.need(regs); fn()
    rest = m0[12:] + m1[8:]
    ph = phi_ops(AB, 32, T)
    per = -(-len(ph) // (len(rest) - 3))
    for i, (fn, regs) in enumerate(rest):
        a.need(regs); fn()
        if i == 3: a("s_nop 3")
        if i >= 3:
            for _ in range(per):
                if ph: a(ph.pop(0))
    for t_ in ph: a(t_)
    a.ds_all()
    stamp("B gemm done")
    PK = 24; PV = 40; KV = 56
    for ks in range(2):
        for dt in range(2): pack4(PK+(ks*2+dt)*4, accB(0,dt,2*ks), accB(0,dt,2*ks+1))
    for ks in range(2):
        for et in range(2): pack4(PV+(ks*2+et)*4, accB(1,et,2*ks), accB(1,et,2*ks+1))
    a(f"v_mov_b32 {vr(T)}, 0x3f803f80")
    for ks in range(2):
        for i in range(4):
            r = PV+(ks*2+1)*4+i
            a(f"v_cndmask_b32 {vr(r)}, {vr(r)}, {vr(T)}, {sr(sONE,2)}")
    a(f"s_cmp_eq_u32 {sr(sMP)}, 0")
    a("s_nop 0")
    a("s_cbranch_scc1 L_B_s0")
    for dts, base in ((0, KV), (1, KV+8)):
        for ks in range(2):
            for et in range(2): mfma(base+et*4, PK+(ks*2+dts)*4, PV+(ks*2+et)*4, None if ks == 0 else base+et*4)
    a("s_branch L_B_s1")
    a.label("L_B_s0")
    for dts, base in ((1, KV), (0, KV+8)):
        for ks in range(2):
            for et in range(2): mfma(base+et*4, PK+(ks*2+dts)*4, PV+(ks*2+et)*4, None if ks == 0 else base+et*4)
    a.label("L_B_s1")
    a(f"s_lshl_b32 {sr(sT1)}, {sr(sRB)}, 10")
    a(f"s_add_u32 {sr(sT1)}, {sr(sT1)}, {sr(sKVO)}")
    a("s_nop 1")
    a(f"ds_write_b128 {vr(B_vSW)}, {vr(KV,4)}")
    a(f"ds_write_b128 {vr(B_vSW)}, {vr(KV+4,4)} offset:1024")
    a("s_waitcnt lgkmcnt(0)")
    a("s_barrier")
    a(f"ds_read_b128 {vr(KV+16,4)}, {vr(B_vSR)}")
    a(f"ds_read_b128 {vr(KV+20,4)}, {vr(B_vSR)} offset:1024")
    a("s_waitcnt lgkmcnt(0)")
    for i in range(0, 8, 2):
        a(f"v_pk_add_f32 {vr(KV+8+i,2)}, {vr(KV+8+i,2)}, {vr(KV+16+i,2)}")
    pack4(KV+24, KV+8, KV+12)
    a(f"buffer_store_dwordx4 {vr(KV+24,4)}, {vr(vL16)}, {sr(SWS,4)}, {sr(sT1)} offen sc1")
    lds_signal(B_vSY, 24)
    stamp("B partial stored")
    a("s_waitcnt vmcnt(0)")
    set_flag(sF1W, T)
    stamp("B flag1 set")
    poll_issue(sF1R, T+2)
    poll_finish(sF1R, T+2)
    stamp("B flag1 seen")
    PL = 112; T = 24
    for r in range(16):
        if r % 4 == 0 and r: a(f"s_add_u32 {sr(sT1)}, {sr(sKVO)}, {r*1024}")
        a.vmem(f"buffer_load_dwordx4 {vr(PL+r*4,4)}, {vr(vL16)}, {sr(SWS,4)}, {sr(sKVO if r < 4 else sT1)} offen offset:{(r%4)*1024} sc1", f"pl{r}")
    for r in range(16):
        a.wait_vm(f"pl{r}")
        mfma(T, B_SEL, PL+r*4, None if r == 0 else T)
        mfma(T+4, B_SEL+4, PL+r*4, None if r == 0 else T+4)
    a("s_nop 6")
    cvtpk(T+8, T, T+1); cvtpk(T+9, T+2, T+3)
    cvtpk(T+10, T+4, T+5); cvtpk(T+11, T+6, T+7)
    a(f"ds_write_b64 {vr(B_vKW)}, {vr(T+8,2)}")
    a(f"ds_write_b64 {vr(B_vKW)}, {vr(T+10,2)} offset:1024")
    a("s_waitcnt lgkmcnt(0)")
    lds_signal(B_vSK)
    a(f"v_subrev_u32 {vr(vT2)}, {B_KVS}, {vr(B_vSW)}")
    stamp("B kv done")
    lds_spin([(B_vSK, 0), (B_vPQ, 0)], 3, vT0)
    a(f"ds_read_b128 {vr(64,4)}, {vr(vT2)}")
    a(f"ds_read_b128 {vr(68,4)}, {vr(vT2)} offset:1024")
    a.vm = []
    o_B(64, 24, 112, "B")

def phase2():
    a.label("L_phase2")
    a.vm = []
    ACC = [4, 20]; OF = 36; WF = 100; T = 228
    a(f"v_mov_b32 {vr(T)}, 0")
    a(f"v_mov_b32 {vr(T+1)}, 0")
    a(f"v_lshlrev_b32 {vr(T+2)}, 3, {vr(vLANE)}")
    a(f"v_add_u32 {vr(T+2)}, {P2_ZERO}, {vr(T+2)}")
    a(f"ds_write_b64 {vr(T+2)}, {vr(T,2)}")
    def wreads(h, slot):
        out = []
        for t in range(4):
            base = vWO[t ^ (2 if h & 1 else 0)]
            for hf in range(2):
                out.append(f"ds_read_b64_tr_b16 {vr(WF+slot*16+t*4+hf*2,2)}, {vr(base)} offset:{h*3584 + hf*2048}")
        return out
    for br in range(2):
        if br == 0:
            a("s_waitcnt vmcnt(0) lgkmcnt(0)")
            a("s_barrier")
            stamp("P2 wo landed")
        else:
            for t in range(4): a(f"v_add_u32 {vr(vWO[t])}, 57344, {vr(vWO[t])}")
            a(f"s_add_u32 {sr(sF2R)}, {sr(sF2R)}, 2048")
            a(f"s_add_u32 {sr(sOLD)}, {sr(sOLD)}, {8*16384}")
        poll_issue(sF2R, T+4)
        for h in range(8):
            for r in wreads(h, h): a(r)
        poll_finish(sF2R, T+4)
        stamp(f"P2 flags seen {'AB'[br]}")
        for h in range(16):
            if h % 4 == 0 and h: a(f"s_add_u32 {sr(sT1)}, {sr(sOLD)}, {h*1024}")
            a.vmem(f"buffer_load_dwordx4 {vr(OF+h*4,4)}, {vr(vL16)}, {sr(SWS,4)}, {sr(sOLD if h < 4 else sT1)} offen offset:{(h%4)*1024} sc1", f"o{h}")
        if br == 1:
            a.vmem(f"buffer_load_dword {vr(T+6)}, {vr(vGT)}, {sr(SWS,4)}, {sr(sGT)} offen sc1", "g")
        a("s_waitcnt lgkmcnt(0)")
        for h in range(16):
            a.wait_vm(f"o{h}")
            rd = wreads(h + 8, h) if h < 8 else []
            if h == 8: a("s_waitcnt lgkmcnt(15)")
            if h >= 14: a(f"s_waitcnt lgkmcnt({(15-h)*8})")
            for t in range(4):
                mfma(ACC[br]+t*4, WF+(h%8)*16+t*4, OF+h*4, None if h == 0 else ACC[br]+t*4)
                for _ in range(2):
                    if rd: a(rd.pop(0))
        if br == 0: stamp("P2 A half done")
    a.wait_vm("g")
    a("s_nop 3")
    for t in range(4):
        A_, B_ = ACC[0]+t*4, ACC[1]+t*4
        for i in range(4): a(f"v_sub_f32 {vr(A_+i)}, {vr(A_+i)}, {vr(B_+i)}")
        for i in range(4): a(f"v_fma_f32 {vr(A_+i)}, {vr(A_+i)}, {vr(T+6)}, {vr(B_+i)}")
        cvtpk(OF+2*t, A_, A_+1); cvtpk(OF+2*t+1, A_+2, A_+3)
        a(f"ds_write_b64 {vr(vCW)}, {vr(OF+2*t,2)} offset:{t*32}")
    a("s_waitcnt lgkmcnt(0)")
    a(f"ds_read_b128 {vr(OF+8,4)}, {vr(vCR)}")
    a(f"ds_read_b128 {vr(OF+12,4)}, {vr(vCR)} offset:{8*144}")
    a(f"s_mov_b32 {sr(sT0)}, {8*896}")
    a("s_waitcnt lgkmcnt(1)")
    a(f"buffer_store_dwordx4 {vr(OF+8,4)}, {vr(vOUT)}, {sr(SOUT,4)}, 0 offen")
    a("s_waitcnt lgkmcnt(0)")
    a(f"buffer_store_dwordx4 {vr(OF+12,4)}, {vr(vOUT)}, {sr(SOUT,4)}, {sr(sT0)} offen")
    stamp("P2 done")
    a("s_endpgm")
    a.label("L_idle2")
    a(f"s_cmp_lg_u32 {sr(sRB)}, 15")
    a("s_cbranch_scc1 L_end")
    a(f"v_lshlrev_b32 v10, 5, v0")
    a(f"s_mov_b32 {sr(sCNT)}, 0")
    a.label("L_jan")
    for k in range(4):
        a(f"s_mov_b32 {sr(sT0)}, {WS_F2 + k*16384}")
        a(f"buffer_load_dwordx2 {vr(12+2*k,2)}, v10, {sr(SWS,4)}, {sr(sT0)} offen sc1")
    a(f"s_add_u32 {sr(sCNT)}, {sr(sCNT)}, 1")
    a("s_waitcnt vmcnt(0)")
    a(f"v_cmp_ne_u64 {sr(sT0,2)}, {sr(sTAG,2)}, v[12:13]")
    a(f"v_cmp_ne_u64 {sr(sT2,2)}, {sr(sTAG,2)}, v[14:15]")
    a(f"s_or_b64 {sr(sT0,2)}, {sr(sT0,2)}, {sr(sT2,2)}")
    a(f"v_cmp_ne_u64 {sr(sT2,2)}, {sr(sTAG,2)}, v[16:17]")
    a(f"s_or_b64 {sr(sT0,2)}, {sr(sT0,2)}, {sr(sT2,2)}")
    a(f"v_cmp_ne_u64 {sr(sT2,2)}, {sr(sTAG,2)}, v[18:19]")
    a(f"s_or_b64 {sr(sT0,2)}, {sr(sT0,2)}, {sr(sT2,2)}")
    a("s_cbranch_scc0 L_jand")
    a(f"s_cmp_gt_u32 {sr(sCNT)}, 0x400000")
    a("s_cbranch_scc1 L_jand")
    a("s_sleep 4")
    a("s_branch L_jan")
    a.label("L_jand")
    a("s_barrier")
    a(f"s_cmp_lg_u32 {sr(sWAVE)}, 0")
    a("s_cbranch_scc1 L_end")
    a(f"s_mov_b32 {sr(sT0)}, {WS_EPOCH}")
    set_flag(sT0, 10)
    a.label("L_end")
    a("s_endpgm")

prologue()
loader()
a.vm = []
compute()
phase2()

hdr = f"""; fused gated-mix kernel: generated by gen/gen6.py
; @launch grid=(256,1,1) block=(512,1,1) lds={LDS_BYTES}
.amdgcn_target "amdgcn-amd-amdhsa--gfx950"
.text
.globl {NAME}_kernel
.p2align 8
.type {NAME}_kernel,@function
"""
ftr = f"""
.section .rodata,"a"
.p2align 6
.amdhsa_kernel {NAME}_kernel
  .amdhsa_next_free_vgpr 256
  .amdhsa_next_free_sgpr 102
  .amdhsa_accum_offset 256
  .amdhsa_group_segment_fixed_size 0
  .amdhsa_kernarg_size 80
  .amdhsa_user_sgpr_count 2
  .amdhsa_user_sgpr_kernarg_segment_ptr 1
  .amdhsa_system_sgpr_workgroup_id_x 1
.end_amdhsa_kernel
"""
out = [x for x in sys.argv[1:] if not x.startswith("--")]
path = out[0] if out else f"cdna_kernels/{NAME}.s"
open(path, "w").write(hdr + "\n".join(a.lines) + ftr)
print("wrote", path, len(a.lines), "lines")
```

```python
import sys, struct, re

NAME = "gated_mix__sliding_local_dilated__linear_attn_block__prompt"
def flag(n): return ("--" + n) in sys.argv
def opt(n, d):
    for x in sys.argv:
        if x.startswith(f"--{n}="): return int(x.split("=")[1])
    return d
STAMPS, DBGST, FINE = flag("stamps"), flag("dbgstamps"), flag("fine")
ROT = flag("rot")

WS_EPOCH = 0
WS_F1 = 0x1000
WS_F2 = 0x10000
WS_KV = 0x40000
WS_GATE = 0x180000
WS_O = 0x200000
WS_STAMP = 0x600000
WS_SIZE = 0x800000

L_X = [0, 16384, 32768]
L_W = [49152, 73728, 98304]
R0 = 122880
A_HALO = R0
A_HB = R0 + 14336
A_EX = A_HB + 4096
BX = [c*16384 for c in range(7)]
BW = [114688, 131072]
BQS = [131072, 139264, 114688, 122880, 149504, 131072, 139264]
B_GW = 147456
B_KVS = B_GW + 2048
B_KVF = B_KVS + 8192
B_SY = B_KVF + 4096
assert B_SY + 64 <= 163840
P2_WO = 0
P2_ZERO = 114688
P2_G = 115200
P2_CB = 115456
P2_CBSZ = 64 * 272
LDS_BYTES = 163840

LOG2E = 1.4426950408889634
def f2u(x): return struct.unpack("<I", struct.pack("<f", x))[0]

class Asm:
    def __init__(self):
        self.lines = []; self.vm = []; self.lbl = 0; self.ds = []
    def __call__(self, s): self.lines.append("    " + s)
    def c(self, s): self.lines.append("    ; " + s)
    def label(self, name): self.lines.append(name + ":")
    def newlabel(self, p="L"):
        self.lbl += 1; return f"{p}_{self.lbl}"
    def vmem(self, s, tag): self(s); self.vm.append(tag)
    def vmem_unc(self, s): self(s)
    def wait_vm(self, tag, extra=""):
        idx = max(i for i, t in enumerate(self.vm) if t == tag)
        n = len(self.vm) - 1 - idx
        assert n <= 63
        self(f"s_waitcnt vmcnt({n}){extra}")
        self.vm = self.vm[idx + 1:]
    def wait_vm_all(self, extra=""):
        self(f"s_waitcnt vmcnt(0){extra}"); self.vm = []
    def dsr(self, text):
        m = re.search(r"v\[(\d+):(\d+)\]", text)
        self(text); self.ds.append(set(range(int(m.group(1)), int(m.group(2)) + 1)))
    def need(self, regs):
        regs = set(regs)
        idx = max((i for i, r in enumerate(self.ds) if r & regs), default=-1)
        if idx < 0: return
        n = len(self.ds) - 1 - idx
        self(f"s_waitcnt lgkmcnt({min(n, 15)})")
        self.ds = self.ds[idx + 1:] if n <= 15 else self.ds[-15:]
    def ds_all(self): self.ds = []

def vr(b, n=1): return f"v{b}" if n == 1 else f"v[{b}:{b+n-1}]"
def sr(b, n=1): return f"s{b}" if n == 1 else f"s[{b}:{b+n-1}]"
a = Asm()

sROT = 3
sU, sMP, sROLE, sEXB = 4, 5, 6, 7
SX, SW, SWS, SWOA, SWOB, SOUT, SG = 8, 12, 16, 20, 24, 28, 32
sWAVE, sMI, sNI, sRB, sHP, sTYPE = 36, 37, 38, 39, 40, 41
sTAG = 42
sT0, sT1, sT2, sT3 = 44, 45, 46, 47
sW1K, sU4K, sU6K = 48, 49, 50
sSOX, sSOW, sSOX2 = 51, 52, 53
sMASK48, sODD, sONE, sEXEC = 54, 56, 58, 60
sCB, sHALF, sCNT, sJ = 62, 63, 64, 65
sPC = 66
sL2E, sEPS = 68, 70
sST = 72
sPTR = 76
sOST, sF2W, sF2R, sOLD = 76, 77, 78, 79
sGT, sKVO, sF1W, sF1R, sK0, sBR, sGST = 80, 81, 82, 83, 84, 85, 86

vLANE, vI16, vG = 1, 2, 3
vT0, vT1, vT2, vT3, vT4, vT5 = 4, 5, 6, 7, 8, 9
vDUM = 23
vL16, vPOLL, vWOD = 236, 237, 238
vWO = [240, 241, 242, 243]
vGT, vCW, vCR, vGR, vGW, vOUT = 244, 245, 246, 247, 248, 249

stamp_idx = [0]
def stamp(name, src=None):
    if DBGST:
        i = stamp_idx[0]; stamp_idx[0] += 1
        if i > 15: return
        L = a.newlabel("L_st")
        a.c(f"stamp {i}: {name}")
        a(f"s_and_b32 s74, s2, 127")
        a(f"s_and_b32 s75, {sr(sWAVE)}, 3")
        a(f"s_or_b32 s74, s74, s75")
        if name.startswith("P2"): a(f"s_or_b32 s74, s74, s2"); a(f"s_or_b32 s74, s74, {sr(sWAVE)}")
        a(f"s_cmp_lg_u32 s74, 0")
        a(f"s_cbranch_scc1 {L}")
        a(f"s_memrealtime {sr(sST,2)}")
        a("s_waitcnt lgkmcnt(0)")
        a(f"s_sub_u32 {sr(sST)}, {sr(sST)}, s98")
        a(f"v_mov_b32 v22, {sr(sST)}")
        a(f"v_mov_b32 v21, {i*4}")
        a(f"s_mov_b64 {sr(sST,2)}, exec")
        a("s_mov_b64 exec, 1")
        a.vmem_unc(f"global_store_dword v21, v22, s[96:97]")
        a(f"s_mov_b64 exec, {sr(sST,2)}")
        a.label(L)
        return
    if not STAMPS: return
    i = stamp_idx[0]; stamp_idx[0] += 1
    a.c(f"stamp {i}: {name}")
    if src is None:
        a(f"{'s_memtime' if flag('cyc') else 's_memrealtime'} {sr(sST,2)}")
        a("s_waitcnt lgkmcnt(0)")
    else:
        a(f"s_mov_b32 {sr(sST)}, s{src}")
    a(f"v_mov_b32 v22, {sr(sST)}")
    a(f"s_lshl_b32 s74, s2, 3")
    a(f"s_or_b32 s74, s74, {sr(sWAVE)}")
    a(f"s_lshl_b32 s74, s74, 8")
    a(f"s_or_b32 s74, s74, {WS_STAMP + i*4}")
    a(f"s_mov_b64 {sr(sST,2)}, exec")
    a("s_mov_b64 exec, 1")
    a.vmem_unc(f"buffer_store_dword v22, off, {sr(SWS,4)}, s74")
    a(f"s_mov_b64 exec, {sr(sST,2)}")

def mfma(d, A, B, C=None):
    c = vr(C, 4) if C is not None else "0"
    a(f"v_mfma_f32_16x16x32_bf16 {vr(d,4)}, {vr(A,4)}, {vr(B,4)}, {c}")
def cvtpk(d, x, y): a(f"v_cvt_pk_bf16_f32 {vr(d)}, {vr(x)}, {vr(y)}")
def srd(d, p, n):
    a(f"s_mov_b32 {sr(d)}, {sr(p)}"); a(f"s_mov_b32 {sr(d+1)}, {sr(p+1)}")
    a(f"s_mov_b32 {sr(d+2)}, {n}"); a(f"s_mov_b32 {sr(d+3)}, 0x00020000")

def true_chunk(dst, c):
    if not ROT:
        a(f"s_mov_b32 {sr(dst)}, {c}"); return
    a(f"s_add_u32 {sr(dst)}, {sr(sROT)}, {c}")
    a(f"s_cmp_ge_u32 {sr(dst)}, 7")
    a(f"s_cselect_b32 s75, 7, 0")
    a(f"s_sub_u32 {sr(dst)}, {sr(dst)}, s75")

def prologue():
    a.label(f"{NAME}_kernel")
    if DBGST or STAMPS: a("s_memrealtime s[98:99]")
    a("s_cmp_ge_u32 s2, 256")
    a("s_cbranch_scc1 L_end")
    a(f"s_load_dwordx16 {sr(sPTR,16)}, s[0:1], 0")
    a(f"s_load_dwordx4 {sr(sPTR+16,4)}, s[0:1], 64")
    a(f"s_getpc_b64 {sr(sPC,2)}")
    a.label("L_pc")
    a(f"v_lshrrev_b32 {vr(vT0)}, 6, v0")
    a(f"v_and_b32 {vr(vLANE)}, 63, v0")
    a(f"v_readfirstlane_b32 {sr(sWAVE)}, {vr(vT0)}")
    a(f"v_and_b32 {vr(vI16)}, 15, v0")
    a(f"v_bfe_u32 {vr(vG)}, v0, 4, 2")
    a(f"s_and_b32 {sr(sT0)}, s2, 7")
    a(f"s_lshr_b32 {sr(sJ)}, s2, 3")
    a(f"s_lshr_b32 {sr(sT2)}, {sr(sT0)}, 1")
    a(f"s_lshl_b32 {sr(sT2)}, {sr(sT2)}, 2")
    a(f"s_and_b32 {sr(sT1)}, {sr(sJ)}, 3")
    a(f"s_add_u32 {sr(sRB)}, {sr(sT2)}, {sr(sT1)}")
    a(f"s_and_b32 {sr(sHALF)}, {sr(sT0)}, 1")
    a(f"s_lshl_b32 {sr(sT2)}, {sr(sHALF)}, 2")
    a(f"s_lshr_b32 {sr(sCB)}, {sr(sJ)}, 2")
    a(f"s_and_b32 {sr(sT3)}, {sr(sCB)}, 3")
    a(f"s_add_u32 {sr(sHP)}, {sr(sT2)}, {sr(sT3)}")
    a(f"s_lshr_b32 {sr(sTYPE)}, {sr(sJ)}, 4")
    if ROT:
        a(f"s_lshl_b32 {sr(sT1)}, {sr(sT1)}, 1")
        a(f"s_add_u32 {sr(sROT)}, {sr(sT1)}, {sr(sCB)}")
        a(f"s_cmp_ge_u32 {sr(sROT)}, 7")
        a(f"s_cselect_b32 {sr(sT0)}, 7, 0")
        a(f"s_sub_u32 {sr(sROT)}, {sr(sROT)}, {sr(sT0)}")
    else:
        a(f"s_mov_b32 {sr(sROT)}, 0")
    a(f"s_and_b32 {sr(sU)}, {sr(sWAVE)}, 3")
    a(f"s_lshr_b32 {sr(sROLE)}, {sr(sWAVE)}, 2")
    a(f"s_lshr_b32 {sr(sMP)}, {sr(sU)}, 1")
    a(f"s_and_b32 {sr(sNI)}, {sr(sWAVE)}, 1")
    a(f"s_lshl_b32 {sr(sMI)}, {sr(sMP)}, 1")
    a(f"s_add_u32 {sr(sMI)}, {sr(sMI)}, {sr(sROLE)}")
    a(f"s_lshl_b32 {sr(sW1K)}, {sr(sWAVE)}, 10")
    a(f"s_cmp_eq_u32 {sr(sROLE)}, 0")
    a("s_cbranch_scc1 L_compute")

def late_srds():
    P = sPTR
    srd(SWS, P+18, WS_SIZE)
    a(f"s_load_dwordx2 {sr(sTAG,2)}, {sr(P+18,2)}, {WS_EPOCH}")
    srd(SWOA, P+4, 401408); srd(SWOB, P+10, 401408); srd(SOUT, P+14, 1835008); srd(SG, P+12, 896)
    if DBGST:
        a(f"s_mov_b32 s96, {sr(P+16)}"); a(f"s_mov_b32 s97, {sr(P+17)}")

def compute_tag():
    a(f"s_add_u32 {sr(sTAG)}, {sr(sTAG)}, 0x7f4a7c15")
    a(f"s_addc_u32 {sr(sTAG+1)}, {sr(sTAG+1)}, 0x9e3779b9")

def late_setup(p2):
    T0, T1, T2 = vT0, vT1, vT2
    a(f"s_mov_b32 {sr(sMASK48)}, -1")
    a(f"s_mov_b32 {sr(sMASK48+1)}, 0xffff")
    a(f"v_lshlrev_b32 {vr(vL16)}, 4, {vr(vLANE)}")
    a(f"v_lshlrev_b32 {vr(vPOLL)}, 5, {vr(vI16)}")
    a(f"v_lshlrev_b32 {vr(vGT)}, 2, {vr(vI16)}")
    a(f"s_lshl_b32 {sr(sT0)}, {sr(sRB)}, 1")
    a(f"s_add_u32 {sr(sT0)}, {sr(sT0)}, 1")
    a(f"s_sub_u32 {sr(sT0)}, {sr(sT0)}, {sr(sTYPE)}")
    a(f"s_lshl_b32 {sr(sT0)}, {sr(sT0)}, 2")
    a(f"s_add_u32 {sr(sT0)}, {sr(sT0)}, {sr(sMI)}")
    a(f"s_lshl_b32 {sr(sT1)}, {sr(sHP)}, 1")
    a(f"s_add_u32 {sr(sT1)}, {sr(sT1)}, {sr(sNI)}")
    a(f"s_lshl_b32 {sr(sT2)}, {sr(sT0)}, 5")
    a(f"s_add_u32 {sr(sT2)}, {sr(sT2)}, {sr(sT1)}")
    a(f"s_lshl_b32 {sr(sT2)}, {sr(sT2)}, 10")
    a(f"s_add_u32 {sr(sOST)}, {sr(sT2)}, {WS_O}")
    a(f"s_lshl_b32 {sr(sT2)}, {sr(sT0)}, 4")
    a(f"s_add_u32 {sr(sT2)}, {sr(sT2)}, {sr(sT1)}")
    a(f"s_lshl_b32 {sr(sT2)}, {sr(sT2)}, 5")
    a(f"s_add_u32 {sr(sF2W)}, {sr(sT2)}, {WS_F2}")
    if not p2: return
    a(f"s_lshl_b32 {sr(sT0)}, {sr(sRB)}, 4")
    a(f"s_add_u32 {sr(sT0)}, {sr(sT0)}, {sr(sWAVE)}")
    a(f"s_lshl_b32 {sr(sT1)}, {sr(sT0)}, 14")
    a(f"s_add_u32 {sr(sOLD)}, {sr(sT1)}, {WS_O}")
    a(f"s_lshl_b32 {sr(sT0)}, {sr(sRB)}, 3")
    a(f"s_lshr_b32 {sr(sT1)}, {sr(sWAVE)}, 1")
    a(f"s_add_u32 {sr(sT1)}, {sr(sT1)}, {sr(sT0)}")
    a(f"s_lshl_b32 {sr(sT1)}, {sr(sT1)}, 9")
    a(f"s_add_u32 {sr(sF2R)}, {sr(sT1)}, {WS_F2}")
    a(f"s_add_u32 {sr(sT0)}, {sr(sT0)}, {sr(sWAVE)}")
    a(f"s_lshl_b32 {sr(sT0)}, {sr(sT0)}, 6")
    a(f"s_add_u32 {sr(sGT)}, {sr(sT0)}, {WS_GATE}")
    a(f"v_lshrrev_b32 {vr(T0)}, 3, {vr(vLANE)}")
    a(f"v_and_b32 {vr(T1)}, 7, {vr(vLANE)}")
    a(f"v_lshlrev_b32 {vr(T2)}, 1, {vr(vG)}")
    a(f"v_xor_b32 {vr(T2)}, {vr(T1)}, {vr(T2)}")
    a(f"v_mul_u32_u24 {vr(vOUT)}, 896, {vr(T0)}")
    a(f"s_mul_i32 {sr(sT0)}, {sr(sWAVE)}, {8*896}")
    a(f"s_lshl_b32 {sr(sT1)}, {sr(sHP)}, 7")
    a(f"s_add_u32 {sr(sT0)}, {sr(sT0)}, {sr(sT1)}")
    a(f"v_add_u32 {vr(vWOD)}, {sr(sT0)}, {vr(vOUT)}")
    a(f"v_lshl_add_u32 {vr(vWOD)}, {vr(T2)}, 4, {vr(vWOD)}")
    a(f"v_lshl_add_u32 {vr(vOUT)}, {vr(T1)}, 4, {vr(vOUT)}")
    a(f"s_lshl_b32 {sr(sT0)}, {sr(sRB)}, 3")
    a(f"s_add_u32 {sr(sT0)}, {sr(sT0)}, {sr(sWAVE)}")
    a(f"s_mul_i32 {sr(sT0)}, {sr(sT0)}, {16*896}")
    a(f"s_add_u32 {sr(sT0)}, {sr(sT0)}, {sr(sT1)}")
    a(f"v_add_u32 {vr(vOUT)}, {sr(sT0)}, {vr(vOUT)}")
    a(f"s_mul_i32 {sr(sT0)}, {sr(sWAVE)}, {16*144}")
    a(f"s_add_u32 {sr(sT0)}, {sr(sT0)}, {P2_CB}")
    a(f"v_mul_u32_u24 {vr(vCR)}, 144, {vr(T0)}")
    a(f"v_lshl_add_u32 {vr(vCR)}, {vr(T1)}, 4, {vr(vCR)}")
    a(f"v_add_u32 {vr(vCR)}, {sr(sT0)}, {vr(vCR)}")
    a(f"v_mul_u32_u24 {vr(vCW)}, 144, {vr(vI16)}")
    a(f"v_lshl_add_u32 {vr(vCW)}, {vr(vG)}, 3, {vr(vCW)}")
    a(f"v_add_u32 {vr(vCW)}, {sr(sT0)}, {vr(vCW)}")
    a(f"v_lshrrev_b32 {vr(T0)}, 2, {vr(vI16)}")
    a(f"v_lshl_add_u32 {vr(T1)}, {vr(vG)}, 2, {vr(T0)}")
    a(f"v_lshlrev_b32 {vr(T1)}, 7, {vr(T1)}")
    a(f"v_and_b32 {vr(T2)}, 3, {vr(vI16)}")
    a(f"v_lshl_add_u32 {vr(T1)}, {vr(T2)}, 3, {vr(T1)}")
    a(f"v_lshrrev_b32 {vr(T0)}, 1, {vr(T0)}")
    a(f"v_and_b32 {vr(T2)}, 1, {vr(vG)}")
    a(f"v_lshl_or_b32 {vr(T0)}, {vr(T2)}, 1, {vr(T0)}")
    a(f"v_lshl_add_u32 {vr(vWO[0])}, {vr(T0)}, 5, {vr(T1)}")
    for t in range(1, 4):
        a(f"v_xor_b32 {vr(vWO[t])}, {t*32}, {vr(vWO[0])}")

A_ONES, A_BIAS, A_SH, A_vEX, A_vPK, A_vPV, A_vHW = 216, 220, 226, 227, 228, 229, 230
def setup_A_consts():
    T0, T1, T2, T3, T4 = vT0, vT1, vT2, vT3, vT4
    BIAS = A_BIAS
    a(f"s_mov_b32 {sr(sODD)}, 0xaaaaaaaa"); a(f"s_mov_b32 {sr(sODD+1)}, 0xaaaaaaaa")
    a(f"s_mov_b32 {sr(sK0)}, {f2u(28**-0.5 * LOG2E)}")
    for i in range(4): a(f"v_mov_b32 {vr(A_ONES+i)}, 0x3f803f80")
    a(f"v_and_b32 {vr(T0)}, 1, {vr(vI16)}")
    a(f"v_lshlrev_b32 {vr(A_SH)}, 4, {vr(T0)}")
    a(f"v_lshl_add_u32 {vr(T1)}, {vr(vG)}, 2, {vr(T0)}")
    a(f"v_mov_b32 {vr(T2)}, 0xf149f2ca")
    a(f"v_cmp_le_u32 vcc, {vr(T1)}, {vr(vI16)}")
    a(f"v_add_u32 {vr(T3)}, 2, {vr(T1)}")
    a("s_nop 0")
    a(f"v_cndmask_b32 {vr(BIAS+2)}, {vr(T2)}, 0, vcc")
    a(f"v_cmp_le_u32 vcc, {vr(T3)}, {vr(vI16)}")
    a(f"v_add_u32 {vr(T4)}, 2, {vr(vI16)}")
    a("s_nop 0")
    a(f"v_cndmask_b32 {vr(BIAS+3)}, {vr(T2)}, 0, vcc")
    a(f"v_cmp_ge_u32 vcc, {vr(T1)}, {vr(T4)}")
    a("s_nop 1")
    a(f"v_cndmask_b32 {vr(BIAS+0)}, {vr(T2)}, 0, vcc")
    a(f"v_cmp_ge_u32 vcc, {vr(T3)}, {vr(T4)}")
    a("s_nop 1")
    a(f"v_cndmask_b32 {vr(BIAS+1)}, {vr(T2)}, 0, vcc")
    a(f"s_or_b32 {sr(sT0)}, {sr(sRB)}, {sr(sMI)}")
    a(f"s_cmp_eq_u32 {sr(sT0)}, 0")
    a(f"s_cselect_b32 {sr(sT0)}, 0xf149f2ca, 0")
    a(f"v_min_f32 {vr(BIAS+4)}, {sr(sT0)}, {vr(BIAS+0)}")
    a(f"v_min_f32 {vr(BIAS+5)}, {sr(sT0)}, {vr(BIAS+1)}")
    a(f"s_lshl_b32 {sr(sT0)}, {sr(sNI)}, 11")
    a(f"s_add_u32 {sr(sT1)}, {sr(sT0)}, {A_EX}")
    a(f"s_add_u32 {sr(sT0)}, {sr(sT0)}, {A_HB}")
    a(f"v_add_u32 {vr(A_vEX)}, {sr(sT1)}, {vr(vL16)}")
    a(f"s_lshl_b32 {sr(sT2)}, {sr(sMP)}, 12")
    a(f"v_add_u32 {vr(A_vEX)}, {sr(sT2)}, {vr(A_vEX)}")
    a(f"s_cmp_eq_u32 {sr(sMP)}, 0")
    a(f"s_cselect_b32 {sr(sT2)}, {sr(sT0)}, {sr(sT1)}")
    a(f"v_add_u32 {vr(A_vPK)}, {sr(sT2)}, {vr(vL16)}")
    a(f"s_lshl_b32 {sr(sT2)}, {sr(sMP)}, 10")
    a(f"s_add_u32 {sr(sT0)}, {sr(sT0)}, {sr(sT2)}")
    a(f"v_add_u32 {vr(A_vHW)}, {sr(sT0)}, {vr(vL16)}")

B_vSY, B_vSW, B_vSR, B_vPQ, B_vKW, B_vKR, B_vZR, B_SEL = 216, 217, 218, 219, 220, 221, 222, 224
B_EPS4 = 232
B_vSK = 223
B_vONE = 250
def setup_B_consts():
    a(f"s_mov_b32 {sr(sONE)}, 0x10001000"); a(f"s_mov_b32 {sr(sONE+1)}, 0x10001000")
    a(f"s_mov_b32 {sr(sL2E)}, {f2u(LOG2E)}"); a(f"s_mov_b32 {sr(sL2E+1)}, {f2u(LOG2E)}")
    a(f"s_mov_b32 {sr(sEPS)}, {f2u(1e-6)}"); a(f"s_mov_b32 {sr(sEPS+1)}, {f2u(1e-6)}")
    a(f"s_lshl_b32 {sr(sT0)}, {sr(sU)}, 11")
    a(f"s_add_u32 {sr(sT1)}, {sr(sT0)}, {B_KVS}")
    a(f"v_add_u32 {vr(B_vSW)}, {sr(sT1)}, {vr(vL16)}")
    a(f"s_xor_b32 {sr(sT1)}, {sr(sT0)}, 4096")
    a(f"s_add_u32 {sr(sT1)}, {sr(sT1)}, {B_KVS}")
    a(f"v_add_u32 {vr(B_vSR)}, {sr(sT1)}, {vr(vL16)}")
    a(f"v_mov_b32 {vr(B_vSY)}, {B_SY}")
    a(f"s_lshl_b32 {sr(sT1)}, {sr(sU)}, 2")
    a(f"v_add_u32 {vr(B_vPQ)}, {sr(sT1)}, {vr(B_vSY)}")
    a(f"s_lshl_b32 {sr(sT1)}, {sr(sNI)}, 2")
    a(f"s_add_u32 {sr(sT1)}, {sr(sT1)}, 16")
    a(f"v_add_u32 {vr(B_vSK)}, {sr(sT1)}, {vr(B_vSY)}")
    a(f"v_mov_b32 {vr(B_vONE)}, 1")
    a(f"s_lshl_b32 {sr(sT0)}, {sr(sHP)}, 2")
    a(f"s_add_u32 {sr(sT0)}, {sr(sT0)}, {sr(sU)}")
    a(f"s_lshl_b32 {sr(sT1)}, {sr(sT0)}, 14")
    a(f"s_add_u32 {sr(sKVO)}, {sr(sT1)}, {WS_KV}")
    a(f"s_lshl_b32 {sr(sT1)}, {sr(sT0)}, 9")
    a(f"s_add_u32 {sr(sF1R)}, {sr(sT1)}, {WS_F1}")
    a(f"s_lshl_b32 {sr(sT1)}, {sr(sRB)}, 5")
    a(f"s_add_u32 {sr(sF1W)}, {sr(sF1R)}, {sr(sT1)}")
    a(f"s_lshl_b32 {sr(sT0)}, {sr(sNI)}, 11")
    a(f"s_add_u32 {sr(sT0)}, {sr(sT0)}, {B_KVF}")
    a(f"v_add_u32 {vr(B_vKR)}, {sr(sT0)}, {vr(vL16)}")
    a(f"s_lshl_b32 {sr(sT1)}, {sr(sMP)}, 3")
    a(f"v_add_u32 {vr(B_vKW)}, {sr(sT1)}, {vr(B_vKR)}")
    a(f"v_lshlrev_b32 {vr(B_vZR)}, 8, {vr(vG)}")
    a(f"v_add_u32 {vr(B_vZR)}, {sr(sT0)}, {vr(B_vZR)}")
    a(f"s_lshl_b32 {sr(sT0)}, {sr(sRB)}, 2")
    a(f"s_add_u32 {sr(sT0)}, {sr(sT0)}, {sr(sU)}")
    a(f"s_lshl_b32 {sr(sT0)}, {sr(sT0)}, 7")
    a(f"s_add_u32 {sr(sGST)}, {sr(sT0)}, {WS_GATE}")
    T0, T1, T2 = vT0, vT1, vT2
    a(f"v_lshrrev_b32 {vr(T0)}, 2, {vr(vI16)}")
    a(f"v_and_b32 {vr(T1)}, 1, {vr(vI16)}")
    a(f"v_lshlrev_b32 {vr(T1)}, 4, {vr(T1)}")
    a(f"v_mov_b32 {vr(T2)}, 0x3f80")
    a(f"v_lshlrev_b32 {vr(T1)}, {vr(T1)}, {vr(T2)}")
    a(f"v_cmp_eq_u32 vcc, {vr(T0)}, {vr(vG)}")
    a(f"v_and_b32 {vr(T2)}, 2, {vr(vI16)}")
    a("s_nop 0")
    a(f"v_cndmask_b32 {vr(T1)}, 0, {vr(T1)}, vcc")
    a(f"v_cmp_eq_u32 vcc, 0, {vr(T2)}")
    for i in (2, 3, 4, 5): a(f"v_mov_b32 {vr(B_SEL+i)}, 0")
    a(f"v_cndmask_b32 {vr(B_SEL+0)}, 0, {vr(T1)}, vcc")
    a(f"v_cndmask_b32 {vr(B_SEL+1)}, {vr(T1)}, 0, vcc")
    a(f"v_mov_b32 {vr(B_SEL+6)}, {vr(B_SEL+0)}")
    a(f"v_mov_b32 {vr(B_SEL+7)}, {vr(B_SEL+1)}")
    for i in range(4): a(f"v_mov_b32 {vr(B_EPS4+i)}, {sr(sEPS)}")

def set_flag(soff, vtmp):
    a(f"v_mov_b32 {vr(vtmp)}, {sr(sTAG)}")
    a(f"v_mov_b32 {vr(vtmp+1)}, {sr(sTAG+1)}")
    a("s_mov_b64 exec, 1")
    a.vmem(f"buffer_store_dwordx2 {vr(vtmp,2)}, off, {sr(SWS,4)}, {sr(soff)} sc1", "flag")
    a("s_mov_b64 exec, -1")

def poll_issue(soff, vtmp):
    a.vmem(f"buffer_load_dwordx2 {vr(vtmp,2)}, {vr(vPOLL)}, {sr(SWS,4)}, {sr(soff)} offen sc1", "poll")

def poll_finish(soff, vtmp, v2=None):
    L = a.newlabel("L_poll"); Ld = a.newlabel("L_polld")
    a(f"s_mov_b32 {sr(sCNT)}, 0")
    if flag("poll2"):
        ld = lambda r: a(f"buffer_load_dwordx2 {vr(r,2)}, {vr(vPOLL)}, {sr(SWS,4)}, {sr(soff)} offen sc1")
        a("s_sleep 2")
        a.label(L)
        ld(v2)
        a("s_waitcnt vmcnt(1)")
        a(f"v_cmp_ne_u64 vcc, {sr(sTAG,2)}, {vr(vtmp,2)}")
        a(f"s_add_u32 {sr(sCNT)}, {sr(sCNT)}, 1")
        a(f"s_cbranch_vccz {Ld}")
        ld(vtmp)
        a("s_waitcnt vmcnt(1)")
        a(f"v_cmp_ne_u64 vcc, {sr(sTAG,2)}, {vr(v2,2)}")
        a(f"s_cmp_gt_u32 {sr(sCNT)}, 0x40000")
        a(f"s_cbranch_vccz {Ld}")
        a(f"s_cbranch_scc0 {L}")
        a.label(Ld)
        a.vm = ["poll"]
        return
    a.label(L)
    a("s_waitcnt vmcnt(0)")
    a(f"v_cmp_ne_u64 vcc, {sr(sTAG,2)}, {vr(vtmp,2)}")
    a(f"s_add_u32 {sr(sCNT)}, {sr(sCNT)}, 1")
    a(f"s_cbranch_vccz {Ld}")
    a(f"s_cmp_gt_u32 {sr(sCNT)}, 0x40000")
    a(f"s_cbranch_scc1 {Ld}")
    a(f"buffer_load_dwordx2 {vr(vtmp,2)}, {vr(vPOLL)}, {sr(SWS,4)}, {sr(soff)} offen sc1")
    a(f"s_branch {L}")
    a.label(Ld)
    a.vm = []

def lds_signal(addr, off=0):
    a("s_mov_b64 exec, 1")
    a(f"ds_add_u32 {vr(addr)}, {vr(B_vONE)} offset:{off}")
    a("s_mov_b64 exec, -1")

def lds_spin(reads, total, tmp):
    L = a.newlabel("L_spin"); Ld = a.newlabel("L_spind")
    a(f"s_mov_b32 {sr(sCNT)}, 0")
    a.label(L)
    for i, (ad, off) in enumerate(reads): a(f"ds_read_b32 {vr(tmp+i)}, {vr(ad)} offset:{off}")
    a(f"s_add_u32 {sr(sCNT)}, {sr(sCNT)}, 1")
    a("s_waitcnt lgkmcnt(0)")
    for i in range(1, len(reads)): a(f"v_add_u32 {vr(tmp)}, {vr(tmp)}, {vr(tmp+i)}")
    a(f"s_cmp_gt_u32 {sr(sCNT)}, 0x200000")
    a(f"v_readfirstlane_b32 {sr(sT0)}, {vr(tmp)}")
    a(f"s_cbranch_scc1 {Ld}")
    a(f"s_cmp_lg_u32 {sr(sT0)}, {total}")
    a(f"s_cbranch_scc1 {L}")
    a.label(Ld)

def w_read_addr(dst, t, nseg, base):
    t0, t1 = vT0, vT1
    a(f"v_and_b32 {vr(t0)}, 3, {vr(vI16)}")
    a(f"v_lshlrev_b32 {vr(t0)}, 3, {vr(t0)}")
    a(f"s_mul_i32 {sr(sT0)}, {sr(sNI)}, 56")
    if t: a(f"s_add_u32 {sr(sT0)}, {sr(sT0)}, 32")
    a(f"v_add_u32 {vr(t0)}, {sr(sT0)}, {vr(t0)}")
    a(f"v_and_b32 {vr(t1)}, 8, {vr(vI16)}")
    a(f"v_lshlrev_b32 {vr(t1)}, 2, {vr(t1)}")
    a(f"v_xor_b32 {vr(t0)}, {vr(t0)}, {vr(t1)}")
    a(f"v_and_b32 {vr(t1)}, 1, {vr(vG)}")
    a(f"v_lshlrev_b32 {vr(t1)}, 6, {vr(t1)}")
    a(f"v_xor_b32 {vr(t0)}, {vr(t0)}, {vr(t1)}")
    a(f"v_lshrrev_b32 {vr(t1)}, 2, {vr(vI16)}")
    a(f"v_lshl_add_u32 {vr(t0)}, {vr(t1)}, 7, {vr(t0)}")
    a(f"v_mul_u32_u24 {vr(t1)}, {nseg*1024}, {vr(vG)}")
    a(f"v_add_u32 {vr(t0)}, {vr(t0)}, {vr(t1)}")
    a(f"v_add_u32 {vr(dst)}, {base}, {vr(t0)}")

def x_read_addr(d0, d1, d2, d3):
    a(f"v_lshrrev_b32 {vr(vT5)}, 1, {vr(vI16)}")
    a(f"v_xor_b32 {vr(vT5)}, {vr(vG)}, {vr(vT5)}")
    a(f"v_lshlrev_b32 {vr(vT5)}, 4, {vr(vT5)}")
    a(f"v_lshl_add_u32 {vr(vT5)}, {vr(vI16)}, 7, {vr(vT5)}")
    a(f"s_lshl_b32 {sr(sT1)}, {sr(sMP)}, 13")
    a(f"v_add_u32 {vr(d0)}, {sr(sT1)}, {vr(vT5)}")
    a(f"v_xor_b32 {vr(d1)}, 64, {vr(d0)}")
    if d2 is not None:
        a(f"v_add_u32 {vr(d2)}, 65536, {vr(d0)}")
        a(f"v_add_u32 {vr(d3)}, 65536, {vr(d1)}")

def pack4(d, t0, t1):
    cvtpk(d, t0, t0+1); cvtpk(d+1, t0+2, t0+3); cvtpk(d+2, t1, t1+1); cvtpk(d+3, t1+2, t1+3)

def R4(b): return list(range(b, b+4))

def sched_step(ms, rd, tail):
    rd = list(rd); nm = len(ms); nr = len(rd); done = 0
    span = max(1, nm - tail)
    for i, (fn, regs) in enumerate(ms):
        a.need(regs)
        fn()
        want = min(nr, -(-(i + 1) * nr // span))
        while done < want:
            a.dsr(rd[done]); done += 1
    while done < nr:
        a.dsr(rd[done]); done += 1

def o_B(PQ, T, O, p):
    KF = [T, T+4]; ZF = T+8
    a(f"ds_read_b128 {vr(ZF,4)}, {vr(B_vZR)} offset:{1024 + 12*16}")
    a(f"ds_read_b128 {vr(KF[0],4)}, {vr(B_vKR)}")
    a(f"ds_read_b128 {vr(KF[1],4)}, {vr(B_vKR)} offset:1024")
    a("s_waitcnt lgkmcnt(2)")
    for tl in range(2): mfma(O+tl*12+8, ZF, PQ+tl*4)
    a("s_waitcnt lgkmcnt(1)")
    for tl in range(2): mfma(O+tl*12, KF[0], PQ+tl*4)
    a("s_waitcnt lgkmcnt(0)")
    for tl in range(2): mfma(O+tl*12+4, KF[1], PQ+tl*4)
    a("s_nop 1")
    for tl in range(2): a(f"v_add_f32 {vr(O+tl*12+8)}, {sr(sEPS)}, {vr(O+tl*12+8)}")
    for tl in range(2): a(f"v_rcp_f32 {vr(O+tl*12+8)}, {vr(O+tl*12+8)}")
    a(f"s_add_u32 {sr(sT0)}, {sr(sOST)}, 16384")
    a("s_nop 0")
    for tl in range(2):
        b = O+tl*12
        for i in range(8): a(f"v_mul_f32 {vr(b+i)}, {vr(b+i)}, {vr(b+8)}")
        Rr = O+24+tl*4
        for i in range(4): cvtpk(Rr+i, b+2*i, b+2*i+1)
        a(f"v_cndmask_b32 {vr(Rr+2)}, 0, {vr(Rr+2)}, {sr(sMASK48,2)}")
        a(f"v_cndmask_b32 {vr(Rr+3)}, 0, {vr(Rr+3)}, {sr(sMASK48,2)}")
        a(f"buffer_store_dwordx4 {vr(Rr,4)}, {vr(vL16)}, {sr(SWS,4)}, {sr(sT0 if tl else sOST)} offen sc1")
    stamp(p + " o stored")
    a("s_waitcnt vmcnt(0)")
    set_flag(sF2W, T)
    stamp(p + " flag2 set")
    a("s_endpgm")

def phi_ops(base, n, tmp):
    seq = []
    for i in range(0, n, 2): seq.append(f"v_pk_mul_f32 {vr(tmp+i,2)}, {vr(base+i,2)}, {sr(sL2E,2)}")
    for i in range(n): seq.append(f"v_exp_f32 {vr(tmp+i)}, {vr(tmp+i)} clamp")
    for i in range(n): seq.append(f"v_max_f32 {vr(base+i)}, {sr(sEPS)}, {vr(base+i)}")
    for i in range(0, n, 2): seq.append(f"v_pk_add_f32 {vr(base+i,2)}, {vr(base+i,2)}, {vr(tmp+i,2)}")
    return seq

def loader():
    vXG0, vXG1, vWG0, vWG1, vH0, vH1 = 10, 11, 12, 13, 14, 15
    a.c("================ loader waves")
    a(f"s_lshl_b32 {sr(sU4K)}, {sr(sU)}, 12")
    a(f"s_mul_i32 {sr(sU6K)}, {sr(sU)}, 6144")
    a(f"v_lshrrev_b32 {vr(vT0)}, 3, {vr(vLANE)}")
    a(f"v_and_b32 {vr(vT1)}, 7, {vr(vLANE)}")
    a(f"v_xor_b32 {vr(vT2)}, {vr(vT1)}, {vr(vG)}")
    a(f"s_lshl_b32 {sr(sT0)}, {sr(sRB)}, 7")
    a(f"s_lshl_b32 {sr(sT1)}, {sr(sU)}, 5")
    a(f"s_add_u32 {sr(sT0)}, {sr(sT0)}, {sr(sT1)}")
    a(f"s_mul_i32 {sr(sT0)}, {sr(sT0)}, 896")
    a(f"v_mul_u32_u24 {vr(vT3)}, 896, {vr(vT0)}")
    a(f"v_lshl_add_u32 {vr(vT3)}, {vr(vT2)}, 4, {vr(vT3)}")
    a(f"v_add_u32 {vr(vXG0)}, {sr(sT0)}, {vr(vT3)}")
    a(f"v_xor_b32 {vr(vT4)}, 64, {vr(vT3)}")
    a(f"v_add_u32 {vr(vT4)}, {8*896-1024}, {vr(vT4)}")
    a(f"v_add_u32 {vr(vXG1)}, {sr(sT0)}, {vr(vT4)}")
    a(f"v_and_b32 {vr(vT2)}, 1, {vr(vG)}")
    a(f"v_lshlrev_b32 {vr(vT2)}, 1, {vr(vT2)}")
    a(f"v_xor_b32 {vr(vT2)}, {vr(vT1)}, {vr(vT2)}")
    a(f"v_xor_b32 {vr(vT5)}, 4, {vr(vT2)}")
    a(f"v_min_u32 {vr(vT2)}, 6, {vr(vT2)}")
    a(f"v_min_u32 {vr(vT5)}, 6, {vr(vT5)}")
    a(f"s_mul_i32 {sr(sT0)}, {sr(sU)}, {16*2688}")
    a(f"s_mul_i32 {sr(sT1)}, {sr(sHP)}, 112")
    a(f"s_add_u32 {sr(sT0)}, {sr(sT0)}, {sr(sT1)}")
    a(f"v_mul_u32_u24 {vr(vWG0)}, 2688, {vr(vT0)}")
    a(f"v_add_u32 {vr(vWG0)}, {sr(sT0)}, {vr(vWG0)}")
    a(f"v_lshl_add_u32 {vr(vWG1)}, {vr(vT5)}, 4, {vr(vWG0)}")
    a(f"v_add_u32 {vr(vWG1)}, {8*2688}, {vr(vWG1)}")
    a(f"v_lshl_add_u32 {vr(vWG0)}, {vr(vT2)}, 4, {vr(vWG0)}")
    a("s_waitcnt lgkmcnt(0)")
    P = sPTR
    srd(SX, P+0, 1835008)
    a(f"s_cmp_eq_u32 {sr(sTYPE)}, 1")
    a(f"s_cselect_b32 {sr(SW)}, {sr(P+2)}, {sr(P+8)}")
    a(f"s_cselect_b32 {sr(SW+1)}, {sr(P+3)}, {sr(P+9)}")
    a(f"s_mov_b32 {sr(SW+2)}, 1204224")
    a(f"s_mov_b32 {sr(SW+3)}, 0x00020000")
    a("s_cbranch_scc0 L_ldB")
    def issue_x(c, base, tag):
        a(f"s_add_u32 m0, {sr(sU4K)}, {base}")
        a(f"s_mov_b32 {sr(sSOX)}, {c*128}")
        a(f"s_mov_b32 {sr(sSOX2)}, {c*128 + 16*896-2048}")
        a.vmem(f"buffer_load_dwordx4 {vr(vXG0)}, {sr(SX,4)}, {sr(sSOX)} offen lds", tag)
        a.vmem(f"buffer_load_dwordx4 {vr(vXG1)}, {sr(SX,4)}, {sr(sSOX)} offen offset:1024 lds", tag)
        a.vmem(f"buffer_load_dwordx4 {vr(vXG0)}, {sr(SX,4)}, {sr(sSOX2)} offen offset:2048 lds", tag)
        a.vmem(f"buffer_load_dwordx4 {vr(vXG1)}, {sr(SX,4)}, {sr(sSOX2)} offen offset:3072 lds", tag)
    def issue_w(c, base, segs, ubase, tag):
        n = len(segs)
        for v in range(2):
            for i, sg in enumerate(segs):
                a(f"s_add_u32 m0, {sr(ubase)}, {base + v*n*1024 + i*1024 - sg*896}")
                a(f"s_mov_b32 {sr(sSOW)}, {c*172032}")
                off = f" offset:{sg*896}" if sg else ""
                a.vmem(f"buffer_load_dwordx4 {vr(vWG0 if v == 0 else vWG1)}, {sr(SW,4)}, {sr(sSOW)} offen{off} lds", tag)
    def wo_prefetch(srdreg):
        if flag("nowopf"): return
        a(f"s_and_b32 {sr(sT0)}, {sr(sJ)}, 15")
        a(f"s_lshl_b32 {sr(sT0)}, {sr(sT0)}, 2")
        a(f"s_add_u32 {sr(sT0)}, {sr(sT0)}, {sr(sU)}")
        a(f"s_lshl_b32 {sr(sT0)}, {sr(sT0)}, 13")
        a(f"v_lshlrev_b32 {vr(vH0)}, 7, {vr(vLANE)}")
        a.vmem(f"buffer_load_dword {vr(vDUM)}, {vr(vH0)}, {sr(srdreg,4)}, {sr(sT0)} offen", "pfwo")
    def first_stamps(p):
        if STAMPS:
            a("s_memrealtime s[88:89]")
            a("s_waitcnt lgkmcnt(0)")
            stamp(p + " entry", 98); stamp(p + " c0 issued", 96); stamp(p + " c1 issued", 88)
    def chunkA(c):
        issue_x(c, L_X[c % 3], f"c{c}"); issue_w(c, L_W[c % 3], (0, 1, 2), sU6K, f"c{c}")
    chunkA(0)
    if STAMPS: a("s_memrealtime s[96:97]")
    a(f"s_lshl_b32 {sr(sT0)}, {sr(sRB)}, 7")
    a(f"s_sub_u32 {sr(sT0)}, {sr(sT0)}, 16")
    a(f"s_mul_i32 {sr(sT0)}, {sr(sT0)}, 896")
    a(f"v_add_u32 {vr(vH0)}, {sr(sT0)}, {vr(vT3)}")
    a(f"v_add_u32 {vr(vH1)}, {sr(sT0)}, {vr(vT4)}")
    a(f"s_lshl_b32 {sr(sT2)}, {sr(sU)}, 11")
    a(f"s_lshl_b32 {sr(sT1)}, {sr(sU)}, 7")
    a(f"s_add_u32 {sr(sT3)}, {sr(sT1)}, 512")
    a(f"s_add_u32 m0, {sr(sT2)}, {A_HALO}")
    a(f"s_cmp_eq_u32 {sr(sRB)}, 0")
    a(f"s_cselect_b32 {sr(sT1)}, 0, {sr(sT1)}")
    a(f"s_cselect_b32 {sr(sT3)}, 0, {sr(sT3)}")
    a.vmem_unc(f"buffer_load_dwordx4 {vr(vH0)}, {sr(SX,4)}, {sr(sT1)} offen lds")
    a.vmem_unc(f"buffer_load_dwordx4 {vr(vH1)}, {sr(SX,4)}, {sr(sT1)} offen offset:1024 lds")
    a(f"s_cmp_eq_u32 {sr(sU)}, 3")
    a("s_cbranch_scc1 L_ld_sided")
    a(f"s_add_u32 m0, {sr(sT2)}, {A_HALO + 8192}")
    a("s_nop 0")
    a.vmem_unc(f"buffer_load_dwordx4 {vr(vH0)}, {sr(SX,4)}, {sr(sT3)} offen lds")
    a.vmem_unc(f"buffer_load_dwordx4 {vr(vH1)}, {sr(SX,4)}, {sr(sT3)} offen offset:1024 lds")
    a.label("L_ld_sided")
    chunkA(1)
    late_srds()
    first_stamps("L")
    for c in range(7):
        if c == 0:
            n = len([t for t in a.vm if t != "c0"])
            a(f"s_waitcnt vmcnt({n}) lgkmcnt(0)"); a.vm = [t for t in a.vm if t != "c0"]
        else:
            a.wait_vm(f"c{c}")
        a("s_barrier")
        if c == 0: compute_tag()
        if c + 2 < 7: chunkA(c + 2)
        if c == 4:
            wo_prefetch(SWOB); late_setup(True)
    a("s_barrier")
    a(f"v_subrev_u32 v16, {32*896}, {vr(vWOD)}")
    def wo_block(b):
        for n in range(7):
            for hw in range(2):
                a(f"s_add_u32 m0, {sr(sW1K)}, {P2_WO + b*57344 + n*8192 - hw*4096}")
                a(f"s_mov_b32 {sr(sT2)}, {n*57344}")
                a(f"buffer_load_dwordx4 {vr(vWOD if hw == 0 else 16)}, {sr(SWOA if b==0 else SWOB,4)}, {sr(sT2)} offen lds")
    if flag("wosplit"):
        a(f"s_cmp_eq_u32 {sr(sHP)}, 7")
        a("s_cbranch_scc1 L_ld_skipA")
        wo_block(0)
        a.label("L_ld_skipA")
        a("s_barrier")
        a(f"s_cmp_eq_u32 {sr(sHP)}, 7")
        a("s_cbranch_scc1 L_idle2")
        a("s_waitcnt vmcnt(0)")
        if not flag("wosplit2"): wo_block(1)
    else:
        if flag("wolate"): a("s_barrier")
        a(f"s_cmp_eq_u32 {sr(sHP)}, 7")
        a("s_cbranch_scc1 L_idle2")
        wo_block(0); wo_block(1)
    stamp("L wo issued")
    a("s_branch L_phase2")
    a.label("L_ldB")
    a.vm = []
    sU2K = sU6K
    a(f"s_lshl_b32 {sr(sU2K)}, {sr(sU)}, 11")
    issue_x(0, BX[0], "c0"); issue_w(0, BW[0], (1, 2), sU4K, "c0")
    if STAMPS: a("s_memrealtime s[96:97]")
    issue_x(1, BX[1], "c1"); issue_w(1, BW[1], (1, 2), sU4K, "c1")
    issue_x(2, BX[2], "c2")
    late_srds()
    first_stamps("M")
    vXR = [16, 17, 18, 19]; vQR = [251, 252]; vGR_ = 15
    for c in range(7):
        a.wait_vm(f"c{c}", " lgkmcnt(0)" if c == 0 else "")
        a("s_barrier")
        if c == 0: compute_tag()
        if 1 <= c <= 5: issue_w(c + 1, BW[(c + 1) % 2], (1, 2), sU4K, f"c{c+1}")
        if c + 3 < 7: issue_x(c + 3, BX[c + 3], f"c{c+3}")
        if c == 3:
            L = a.newlabel("L_gw")
            a(f"s_cmp_lg_u32 {sr(sU)}, 0")
            a(f"s_cbranch_scc1 {L}")
            a(f"v_lshlrev_b32 {vr(vH0)}, 4, {vr(vLANE)}")
            a(f"s_mov_b32 m0, {B_GW}")
            a("s_nop 0")
            a.vmem_unc(f"buffer_load_dwordx4 {vr(vH0)}, {sr(SG,4)}, 0 offen lds")
            a.label(L)
        if c == 4:
            late_setup(False); setup_B_consts()
            x_read_addr(*vXR)
            for t in range(2): w_read_addr(vQR[t], t, 1, BW[0])
            a(f"v_lshlrev_b32 {vr(vGR_)}, 4, {vr(vG)}")
            a(f"v_add_u32 {vr(vGR_)}, {B_GW}, {vr(vGR_)}")
        if c == 5: wo_prefetch(SWOA)
        if c == 6:
            for q in (0, 1): issue_w(q, BQS[q], (0,), sU2K, "g0")
    a("s_barrier")
    stamp("M barH")
    SETS = [24, 52]; AQ = 112; AG = 144; EPS4 = B_EPS4
    def qreads(k, S):
        c, ks = divmod(k, 2)
        xr = vXR[(2 if c >= 4 else 0) + ks]; xo = BX[c] - (65536 if c >= 4 else 0)
        wb = BQS[c] - BW[0] + ks*4096
        out = [f"ds_read_b128 {vr(S,4)}, {vr(xr)} offset:{xo}"]
        out += [f"ds_read_b64_tr_b16 {vr(S+20+2*h,2)}, {vr(vQR[0])} offset:{wb + h*512}" for h in range(2)]
        out += [f"ds_read_b128 {vr(S+tl*4,4)}, {vr(xr)} offset:{xo + tl*2048}" for tl in (1, 2, 3)]
        out += [f"ds_read_b64_tr_b16 {vr(S+24+2*h,2)}, {vr(vQR[1])} offset:{wb + h*512}" for h in range(2)]
        out.append(f"ds_read_b128 {vr(S+16,4)}, {vr(vGR_)} offset:{k*64}")
        return out
    def qm(k, S):
        ms = []
        for t in range(2):
            for tl in range(4):
                d = AQ + (tl*2+t)*4
                ms.append((lambda d=d, t=t, tl=tl: mfma(d, S+20+t*4, S+tl*4, EPS4 if k == 0 else d), R4(S+20+t*4) + R4(S+tl*4)))
        def side():
            L1 = a.newlabel("L_s"); L2 = a.newlabel("L_s")
            C0 = None if k == 0 else AG; C1 = None if k == 0 else AG+4
            a(f"s_cbranch_vccnz {L2}")
            a(f"s_cmp_eq_u32 {sr(sNI)}, 1")
            a(f"s_cbranch_scc1 {L1}")
            mfma(AG, S+16, S+0, C0); mfma(AG+4, S+16, S+4, C1)
            a(f"s_branch {L2}")
            a.label(L1)
            mfma(AG, S+16, S+8, C0); mfma(AG+4, S+16, S+12, C1)
            a.label(L2)
        ms.append((side, R4(S+16)))
        return ms
    a(f"s_cmp_lg_u32 {sr(sHP)}, 0")
    a("s_cselect_b64 vcc, -1, 0")
    groups = [(0, 1), (2, 3, 4), (5, 6)]
    for q in (2, 3): issue_w(q, BQS[q], (0,), sU2K, "g1")
    lds_spin([(B_vSY, 24)], 4, vT0)
    issue_w(4, BQS[4], (0,), sU2K, "g1")
    for g, chs in enumerate(groups):
        a.wait_vm(f"g{g}")
        lds_signal(B_vSY, 32 + 4*g)
        lds_spin([(B_vSY, 32 + 4*g)], 4, vT0)
        a.ds_all()
        ks_list = [2*c + ks for c in chs for ks in range(2)]
        for r in qreads(ks_list[0], SETS[0]): a.dsr(r)
        for i, k in enumerate(ks_list):
            nxt = qreads(ks_list[i+1], SETS[(i+1) & 1]) if i + 1 < len(ks_list) else []
            if not nxt and g == 0:
                a("s_waitcnt lgkmcnt(0)"); a.ds_all()
                lds_signal(B_vSY, 48)
            sched_step(qm(k, SETS[i & 1]), nxt, 2)
        if g == 0:
            lds_spin([(B_vSY, 48)], 4, vT0)
            for q in groups[2]: issue_w(q, BQS[q], (0,), sU2K, "g2")
    a.ds_all()
    stamp("M pass2 done")
    TM = 24
    a("s_nop 4")
    for t_ in phi_ops(AQ, 32, TM): a(t_)
    a(f"s_cbranch_vccnz L_M_nogate")
    for tl in range(2): a(f"v_mul_f32 {vr(AG+tl*4)}, {sr(sL2E)}, {vr(AG+tl*4)}")
    for tl in range(2): a(f"v_exp_f32 {vr(AG+tl*4)}, -{vr(AG+tl*4)}")
    a("s_nop 0")
    for tl in range(2): a(f"v_add_f32 {vr(AG+tl*4)}, 1.0, {vr(AG+tl*4)}")
    for tl in range(2): a(f"v_rcp_f32 {vr(AG+tl*4)}, {vr(AG+tl*4)}")
    a("s_mov_b64 exec, 0xffff")
    for tl in range(2):
        a.vmem_unc(f"buffer_store_dword {vr(AG+tl*4)}, {vr(vGT)}, {sr(SWS,4)}, {sr(sGST)} offen offset:{tl*64} sc1")
    a("s_mov_b64 exec, -1")
    a.label("L_M_nogate")
    PQ = 56
    for tl in range(4):
        d = PQ + tl*4
        pack4(d, AQ+tl*8, AQ+tl*8+4)
        a(f"v_cndmask_b32 {vr(d+2)}, 0, {vr(d+2)}, {sr(sMASK48,2)}")
        a(f"v_cndmask_b32 {vr(d+3)}, 0, {vr(d+3)}, {sr(sMASK48,2)}")
    a(f"v_subrev_u32 {vr(vT1)}, {B_KVS}, {vr(B_vSW)}")
    for tl in range(2): a(f"ds_write_b128 {vr(vT1)}, {vr(PQ+tl*4,4)} offset:{tl*1024}")
    a("s_waitcnt vmcnt(0) lgkmcnt(0)")
    lds_signal(B_vPQ)
    stamp("M pq done")
    lds_spin([(B_vSK, 0)], 2, vT0)
    a.vm = []
    o_B(PQ + 8, 24, 112, "M")

EA_Q = [24, 28]; EA_K = [32, 36]; EA_KP = 40; EA_V = [44, 54]
EA_Q23 = [64, 68]; EA_K23 = [72, 76]; EA_H = 80

def pf_stag(c):
    if not flag("stag") or c > 6: return
    a(f"s_mul_i32 s13, s12, {c}")
    a(f"buffer_load_dword {vr(vDUM)}, v18, {sr(SX,4)}, s13 offen")

def l2_prefetch():
    if flag("nopf"): return
    P = sPTR; SP = SX
    a(f"s_cmp_lt_u32 {sr(sJ)}, 20")
    a(f"s_cselect_b32 {sr(SP)}, {sr(P+2)}, {sr(P+8)}")
    a(f"s_cselect_b32 {sr(SP+1)}, {sr(P+3)}, {sr(P+9)}")
    a(f"s_cselect_b32 {sr(sT2)}, 8, 20")
    a(f"s_mov_b32 {sr(SP+2)}, 1204224")
    a(f"s_mov_b32 {sr(sT3)}, 172032")
    a(f"s_cmp_lt_u32 {sr(sJ)}, 8")
    a(f"s_cselect_b32 {sr(SP)}, {sr(P+0)}, {sr(SP)}")
    a(f"s_cselect_b32 {sr(SP+1)}, {sr(P+1)}, {sr(SP+1)}")
    a(f"s_cselect_b32 {sr(SP+2)}, 1835008, {sr(SP+2)}")
    a(f"s_mov_b32 {sr(SP+3)}, 0x00020000")
    a(f"s_cselect_b32 {sr(sT3)}, 128, {sr(sT3)}")
    a(f"s_cselect_b32 {sr(sT2)}, 0, {sr(sT2)}")
    a(f"s_cselect_b64 vcc, -1, 0")
    a(f"s_sub_u32 {sr(sT2)}, {sr(sJ)}, {sr(sT2)}")
    a(f"s_lshl_b32 {sr(sT2)}, {sr(sT2)}, 6")
    if flag("stag"):
        a(f"s_lshl_b32 {sr(sT1)}, {sr(sU)}, 4")
        a(f"s_add_u32 {sr(sT2)}, {sr(sT2)}, {sr(sT1)}")
        a(f"v_lshrrev_b32 {vr(vT2)}, 2, {vr(vLANE)}")
        a(f"v_add_u32 {vr(vT2)}, {sr(sT2)}, {vr(vT2)}")
    else:
        a(f"v_add_u32 {vr(vT2)}, {sr(sT2)}, {vr(vLANE)}")
    a(f"s_lshr_b32 {sr(sT1)}, {sr(sRB)}, 2")
    a(f"s_lshl_b32 {sr(sT1)}, {sr(sT1)}, 9")
    a(f"v_add_u32 {vr(vT3)}, {sr(sT1)}, {vr(vT2)}")
    a(f"v_mul_u32_u24 {vr(vT3)}, 896, {vr(vT3)}")
    a(f"v_mul_u32_u24 {vr(vT4)}, 43691, {vr(vT2)}")
    a(f"v_lshrrev_b32 {vr(vT4)}, 19, {vr(vT4)}")
    a(f"v_mul_u32_u24 {vr(vT0)}, 12, {vr(vT4)}")
    a(f"v_sub_u32 {vr(vT2)}, {vr(vT2)}, {vr(vT0)}")
    a(f"v_mul_u32_u24 {vr(vT4)}, 2688, {vr(vT4)}")
    a(f"v_lshrrev_b32 {vr(vT0)}, 2, {vr(vT2)}")
    a(f"v_mul_u32_u24 {vr(vT0)}, 896, {vr(vT0)}")
    a(f"v_add_u32 {vr(vT4)}, {vr(vT4)}, {vr(vT0)}")
    a(f"v_and_b32 {vr(vT2)}, 3, {vr(vT2)}")
    a(f"v_lshl_add_u32 {vr(vT4)}, {vr(vT2)}, 7, {vr(vT4)}")
    a(f"s_mul_i32 {sr(sT1)}, {sr(sHALF)}, 384")
    a(f"v_add_u32 {vr(vT4)}, {sr(sT1)}, {vr(vT4)}")
    a(f"v_cndmask_b32 {vr(vT4)}, {vr(vT4)}, {vr(vT3)}, vcc")
    if flag("stag"):
        a(f"v_mov_b32 v18, {vr(vT4)}")
        a(f"s_mov_b32 s12, {sr(sT3)}")
        for c in range(opt("pf0", 2), opt("pf0", 2) + opt("pfinit", 2)): pf_stag(c)
        return
    PF0 = opt("pf0", 1)
    a(f"s_add_u32 {sr(sT1)}, {sr(sU)}, {PF0}")
    a(f"s_mul_i32 {sr(sT1)}, {sr(sT1)}, {sr(sT3)}")
    a(f"buffer_load_dword {vr(vDUM)}, {vr(vT4)}, {sr(SP,4)}, {sr(sT1)} offen")
    L = a.newlabel("L_pf")
    a(f"s_cmp_ge_u32 {sr(sU)}, {3 - PF0}")
    a(f"s_cbranch_scc1 {L}")
    a(f"s_lshl_b32 {sr(sT3)}, {sr(sT3)}, 2")
    a(f"s_add_u32 {sr(sT1)}, {sr(sT1)}, {sr(sT3)}")
    a(f"buffer_load_dword {vr(vDUM)}, {vr(vT4)}, {sr(SP,4)}, {sr(sT1)} offen")
    a.label(L)

def wo_prefetch_early():
    if not flag("woearly"): return
    L = a.newlabel("L_wpe"); L1 = a.newlabel("L_wpe"); L2 = a.newlabel("L_wpe")
    a(f"s_cmp_lt_u32 {sr(sU)}, 2")
    a(f"s_cbranch_scc1 {L}")
    a(f"s_and_b32 {sr(sT0)}, {sr(sJ)}, 15")
    a(f"s_mul_i32 {sr(sT0)}, {sr(sT0)}, 28")
    a(f"s_and_b32 {sr(sT1)}, {sr(sU)}, 1")
    a(f"s_lshl_b32 {sr(sT1)}, {sr(sT1)}, 4")
    a(f"s_add_u32 {sr(sT0)}, {sr(sT0)}, {sr(sT1)}")
    a(f"s_mul_i32 {sr(sT0)}, {sr(sT0)}, 896")
    a(f"s_lshl_b32 {sr(sT1)}, {sr(sHALF)}, 9")
    a(f"s_add_u32 {sr(sT0)}, {sr(sT0)}, {sr(sT1)}")
    a(f"v_lshrrev_b32 {vr(vT0)}, 2, {vr(vLANE)}")
    a(f"v_mul_u32_u24 {vr(vT0)}, 896, {vr(vT0)}")
    a(f"v_and_b32 {vr(vT1)}, 3, {vr(vLANE)}")
    a(f"v_lshl_add_u32 {vr(vT0)}, {vr(vT1)}, 7, {vr(vT0)}")
    a(f"s_cmp_eq_u32 {sr(sTYPE)}, 1")
    a(f"s_cbranch_scc1 {L1}")
    a(f"buffer_load_dword {vr(vDUM)}, {vr(vT0)}, {sr(SWOA,4)}, {sr(sT0)} offen")
    a(f"s_branch {L}")
    a.label(L1)
    a(f"buffer_load_dword {vr(vDUM)}, {vr(vT0)}, {sr(SWOB,4)}, {sr(sT0)} offen")
    a.label(L)

def compute():
    a.label("L_compute")
    a(f"s_and_b32 {sr(sT2)}, {sr(sJ)}, 7")
    a(f"s_or_b32 {sr(sT2)}, {sr(sT2)}, {sr(sWAVE)}")
    a(f"s_cmp_lg_u32 {sr(sT2)}, 0")
    a("s_cbranch_scc1 L_nopf")
    a(f"v_lshlrev_b32 {vr(vT1)}, 7, {vr(vLANE)}")
    for i in range(4):
        if i:
            a(f"v_add_u32 {vr(vT1)}, 8192, {vr(vT1)}")
            a(f"v_min_u32 {vr(vT1)}, L_end-L_pc, {vr(vT1)}")
        a.vmem_unc(f"global_load_dword {vr(vDUM)}, {vr(vT1)}, {sr(sPC,2)}")
    a.label("L_nopf")
    a(f"s_cmp_eq_u32 {sr(sTYPE)}, 0")
    a("s_cbranch_scc1 L_cB")
    vXR0, vXR1, vHR0, vHR1 = 10, 11, 12, 13
    vWR = {(0,0):14, (1,0):15, (0,1):16, (1,1):17}
    SETS = [24, 68]
    ACC = 112; ACX = 208
    def acc(seg, t, tl): return ACC + ((seg*2+t)*4+tl)*4
    x_read_addr(vXR0, vXR1, None, None)
    a(f"v_add_u32 {vr(vHR0)}, {A_HALO}, {vr(vT5)}")
    a(f"v_xor_b32 {vr(vHR1)}, 64, {vr(vHR0)}")
    for t in range(2):
        w_read_addr(vWR[(t,0)], t, 3, L_W[0])
        a(f"v_add_u32 {vr(vWR[(t,1)])}, {L_W[2]-L_W[0]}, {vr(vWR[(t,0)])}")
    a("s_waitcnt lgkmcnt(0)")
    l2_prefetch()
    late_srds(); wo_prefetch_early(); late_setup(True); setup_A_consts()
    def reads(c, ks, S):
        sl = c % 3; out = []
        xr = vXR0 if ks == 0 else vXR1
        reg = 1 if sl == 2 else 0
        wb = (L_W[sl] - L_W[2*reg]) + ks*4*3072
        def wfrag(seg, t):
            for h in range(2):
                out.append(f"ds_read_b64_tr_b16 {vr(S+20+(seg*2+t)*4+2*h,2)}, {vr(vWR[(t,reg)])} offset:{wb + seg*1024 + h*512}")
        def xfrag(tl): out.append(f"ds_read_b128 {vr(S+tl*4,4)}, {vr(xr)} offset:{L_X[sl] + tl*2048}")
        xfrag(0); wfrag(0, 0); xfrag(1); xfrag(2); xfrag(3); wfrag(0, 1)
        for seg in (1, 2):
            for t in range(2): wfrag(seg, t)
        out.append(f"ds_read_b128 {vr(S+16,4)}, {vr(vHR0 if ks == 0 else vHR1)} offset:{c*2048}")
        return out
    def mlist(S, first):
        ms = []
        for seg in range(3):
            for t in range(2):
                for tl in range(4):
                    d = acc(seg, t, tl); W = S+20+(seg*2+t)*4; X = S+tl*4
                    A_, B_ = (W, X) if seg < 2 else (X, W)
                    ms.append((lambda d=d, A_=A_, B_=B_: mfma(d, A_, B_, None if first else d), R4(W) + R4(X)))
        def side():
            L1 = a.newlabel("L_s"); L2 = a.newlabel("L_s")
            C0 = None if first else ACX; C1 = None if first else ACX+4
            a(f"s_cbranch_scc1 {L1}")
            mfma(ACX, S+28, S+16, C0); mfma(ACX+4, S+32, S+16, C1)
            a(f"s_branch {L2}")
            a.label(L1)
            mfma(ACX, S+16, S+36, C0); mfma(ACX+4, S+16, S+40, C1)
            a.label(L2)
        ms.append((side, R4(S+16)))
        return ms
    a("s_waitcnt lgkmcnt(0)")
    compute_tag()
    stamp("A setup done")
    a(f"s_cmp_eq_u32 {sr(sMP)}, 1")
    for c in range(7):
        a.c(f"---- A chunk {c}")
        a("s_waitcnt lgkmcnt(0)")
        a.ds_all()
        a("s_barrier")
        pf_stag(c + opt("pf0", 2) + opt("pfinit", 2))
        r0 = reads(c, 0, SETS[0])
        if c == 0:
            for r in r0: a.dsr(r)
        else:
            sched_step(mlist(SETS[1], False), r0, 2)
        sched_step(mlist(SETS[0], c == 0), reads(c, 1, SETS[1]), 6)
    sched_step(mlist(SETS[1], False), [], 0)
    a.ds_all()
    stamp("A gemm done")
    KB = 24; QB = 44; VB = [60, 70]; HB_ = 80
    pack4(KB+16, acc(1,0,3), acc(1,1,3))
    a(f"ds_write_b128 {vr(A_vEX)}, {vr(KB+16,4)}")
    for et in range(2):
        cvtpk(VB[et]+8, acc(2,et,3), acc(2,et,3)+1); cvtpk(VB[et]+9, acc(2,et,3)+2, acc(2,et,3)+3)
        a(f"ds_write_b64 {vr(A_vEX)}, {vr(VB[et]+8,2)} offset:{1024 + et*8}")
    for tl in range(3): pack4(KB+4+tl*4, acc(1,0,tl), acc(1,1,tl))
    pack4(HB_, ACX, ACX+4)
    a(f"ds_write_b128 {vr(A_vHW)}, {vr(HB_,4)}")
    for tl in range(4):
        pack4(QB+tl*4, acc(0,0,tl), acc(0,1,tl))
        a(f"v_cndmask_b32 {vr(QB+tl*4+2)}, 0, {vr(QB+tl*4+2)}, {sr(sMASK48,2)}")
        a(f"v_cndmask_b32 {vr(QB+tl*4+3)}, 0, {vr(QB+tl*4+3)}, {sr(sMASK48,2)}")
    a("s_waitcnt lgkmcnt(0)")
    a("s_barrier")
    a(f"ds_read_b128 {vr(KB,4)}, {vr(A_vPK)}")
    a(f"ds_read_b64 {vr(VB[0],2)}, {vr(A_vPK)} offset:1024")
    a(f"ds_read_b64 {vr(VB[1],2)}, {vr(A_vPK)} offset:1032")
    for tl in range(3):
        for et in range(2):
            d = VB[et] + 2 + tl*2
            cvtpk(d, acc(2,et,tl), acc(2,et,tl)+1); cvtpk(d+1, acc(2,et,tl)+2, acc(2,et,tl)+3)
    BIAS = A_BIAS
    TT = [84, 112, 140, 168]
    def R(tl, k): return TT[tl] + k
    order = (3, 2, 1, 0)
    for tl in (3, 2, 1):
        mfma(R(tl,0), KB+tl*4, QB+tl*4); mfma(R(tl,4), KB+4+tl*4, QB+tl*4)
    mfma(R(0,4), KB+4, QB)
    a("s_waitcnt lgkmcnt(0)")
    mfma(R(0,0), KB, QB)
    for tl in order:
        for i, (s_, o) in enumerate(((0,0),(0,2),(4,0),(4,2))):
            a(f"v_cndmask_b32 {vr(R(tl,8+i))}, {vr(R(tl,s_+o))}, {vr(R(tl,s_+o+1))}, {sr(sODD,2)}")
        bp = BIAS if tl else BIAS + 4
        for i, b in enumerate((bp, bp+1, BIAS+2, BIAS+3)):
            a(f"v_fma_f32 {vr(R(tl,8+i))}, {vr(R(tl,8+i))}, {sr(sK0)}, {vr(b)}")
        a(f"v_max3_f32 {vr(R(tl,12))}, {vr(R(tl,8))}, {vr(R(tl,9))}, {vr(R(tl,10))}")
        a(f"v_max_f32 {vr(R(tl,12))}, {vr(R(tl,12))}, {vr(R(tl,11))}")
        a(f"v_mov_b32 {vr(R(tl,13))}, {vr(R(tl,12))}")
    for tl in order: a(f"v_permlane32_swap_b32 {vr(R(tl,12))}, {vr(R(tl,13))}")
    for tl in order: a(f"v_max_f32 {vr(R(tl,12))}, {vr(R(tl,12))}, {vr(R(tl,13))}")
    for tl in order: a(f"v_mov_b32 {vr(R(tl,13))}, {vr(R(tl,12))}")
    for tl in order: a(f"v_permlane16_swap_b32 {vr(R(tl,12))}, {vr(R(tl,13))}")
    for tl in order: a(f"v_max_f32 {vr(R(tl,12))}, {vr(R(tl,12))}, {vr(R(tl,13))}")
    for tl in order:
        for i in range(4): a(f"v_sub_f32 {vr(R(tl,8+i))}, {vr(R(tl,8+i))}, {vr(R(tl,12))}")
        for i in range(4): a(f"v_exp_f32 {vr(R(tl,8+i))}, {vr(R(tl,8+i))}")
    for tl in order:
        for i in range(4): a(f"v_cvt_pk_bf16_f32 {vr(R(tl,16+i))}, {vr(R(tl,8+i))}, 0")
        for i in range(4): a(f"v_lshlrev_b32 {vr(R(tl,16+i))}, {vr(A_SH)}, {vr(R(tl,16+i))}")
        if tl == 3: continue
        p = tl + 1
        mfma(R(p,20), A_ONES, R(p,16)); mfma(R(p,0), VB[0]+2*p, R(p,16)); mfma(R(p,4), VB[1]+2*p, R(p,16))
    a("s_nop 1")
    mfma(R(0,20), A_ONES, R(0,16)); mfma(R(0,0), VB[0], R(0,16)); mfma(R(0,4), VB[1], R(0,16))
    for tl in order:
        a(f"v_rcp_f32 {vr(R(tl,12))}, {vr(R(tl,20))}")
        if tl: a(f"s_add_u32 {sr(sT0)}, {sr(sOST)}, {tl*16384}")
        else: a("s_nop 0")
        for i in range(8): a(f"v_mul_f32 {vr(R(tl,i))}, {vr(R(tl,i))}, {vr(R(tl,12))}")
        for i in range(4): cvtpk(R(tl,24+i), R(tl,2*i), R(tl,2*i+1))
        a(f"v_cndmask_b32 {vr(R(tl,26))}, 0, {vr(R(tl,26))}, {sr(sMASK48,2)}")
        a(f"v_cndmask_b32 {vr(R(tl,27))}, 0, {vr(R(tl,27))}, {sr(sMASK48,2)}")
        a(f"buffer_store_dwordx4 {vr(R(tl,24),4)}, {vr(vL16)}, {sr(SWS,4)}, {sr(sT0 if tl else sOST)} offen sc1")
    if flag("wolate") or flag("wosplit"): a("s_barrier")
    stamp("A attn done")
    a(f"v_mov_b32 v24, {sr(sTAG)}")
    a(f"v_mov_b32 v25, {sr(sTAG+1)}")
    a(f"v_lshlrev_b32 v26, 9, {vr(vLANE)}")
    a("s_waitcnt vmcnt(0)")
    a("s_mov_b64 exec, 3")
    a(f"buffer_store_dwordx2 v[24:25], v26, {sr(SWS,4)}, {sr(sF2W)} offen sc1")
    a("s_mov_b64 exec, -1")
    stamp("A flag set")
    a(f"s_cmp_eq_u32 {sr(sHP)}, 7")
    a("s_cbranch_scc1 L_idle2")
    a("s_branch L_phase2")

    a.label("L_cB")
    a.vm = []
    vXR = [10, 11, 12, 13]; vWB = [14, 15]
    SB = [24, 56]; AB = 112
    def accB(seg, t, tl): return AB + ((seg*2+t)*4+tl)*4
    x_read_addr(*vXR)
    for t in range(2): w_read_addr(vWB[t], t, 2, BW[0])
    a("s_waitcnt lgkmcnt(0)")
    l2_prefetch()
    late_srds(); wo_prefetch_early(); late_setup(False); setup_B_consts()
    a(f"v_lshlrev_b32 {vr(vT0)}, 2, {vr(vI16)}")
    a(f"v_add_u32 {vr(vT0)}, {B_SY}, {vr(vT0)}")
    a(f"v_mov_b32 {vr(vT1)}, 0")
    a(f"ds_write_b32 {vr(vT0)}, {vr(vT1)}")
    a("s_waitcnt lgkmcnt(0)")
    compute_tag()
    stamp("B setup done")
    def breads(c, ks, S):
        xr = vXR[(2 if c >= 4 else 0) + ks]; xo = BX[c] - (65536 if c >= 4 else 0)
        wb = BW[c % 2] - BW[0] + ks*4*2048
        out = []
        def wfrag(seg, t):
            for h in range(2):
                out.append(f"ds_read_b64_tr_b16 {vr(S+16+(seg*2+t)*4+2*h,2)}, {vr(vWB[t])} offset:{wb + seg*1024 + h*512}")
        def xfrag(tl): out.append(f"ds_read_b128 {vr(S+tl*4,4)}, {vr(xr)} offset:{xo + tl*2048}")
        xfrag(0); wfrag(0, 0); xfrag(1); xfrag(2); xfrag(3); wfrag(0, 1); wfrag(1, 0); wfrag(1, 1)
        return out
    def bm(S, first):
        ms = []
        for seg in range(2):
            for t in range(2):
                for tl in range(4):
                    d = accB(seg, t, tl); W = S+16+(seg*2+t)*4; X = S+tl*4
                    c0 = B_EPS4 if seg == 0 else None
                    ms.append((lambda d=d, X=X, W=W, c0=c0: mfma(d, X, W, c0 if first else d), R4(W) + R4(X)))
        return ms
    T = 176
    for c in range(7):
        a.c(f"---- B chunk {c}")
        a("s_waitcnt lgkmcnt(0)")
        a.ds_all()
        a("s_barrier")
        pf_stag(c + opt("pf0", 2) + opt("pfinit", 2))
        r0 = breads(c, 0, SB[0])
        if c == 0:
            for r in r0: a.dsr(r)
        else:
            sched_step(bm(SB[1], False), r0, 2)
        if c < 6:
            sched_step(bm(SB[0], c == 0), breads(c, 1, SB[1]), 4)
    m0, m1 = bm(SB[0], False), bm(SB[1], False)
    sched_step(m0[:12], breads(6, 1, SB[1]), 4)
    for fn, regs in m1[:8]:
        a.need(regs); fn()
    rest = m0[12:] + m1[8:]
    ph = phi_ops(AB, 32, T)
    per = -(-len(ph) // (len(rest) - 3))
    for i, (fn, regs) in enumerate(rest):
        a.need(regs); fn()
        if i == 3: a("s_nop 3")
        if i >= 3:
            for _ in range(per):
                if ph: a(ph.pop(0))
    for t_ in ph: a(t_)
    a.ds_all()
    stamp("B gemm done")
    PK = 24; PV = 40; KV = 56
    for ks in range(2):
        for dt in range(2): pack4(PK+(ks*2+dt)*4, accB(0,dt,2*ks), accB(0,dt,2*ks+1))
    for ks in range(2):
        for et in range(2): pack4(PV+(ks*2+et)*4, accB(1,et,2*ks), accB(1,et,2*ks+1))
    a(f"v_mov_b32 {vr(T)}, 0x3f803f80")
    for ks in range(2):
        for i in range(4):
            r = PV+(ks*2+1)*4+i
            a(f"v_cndmask_b32 {vr(r)}, {vr(r)}, {vr(T)}, {sr(sONE,2)}")
    a(f"s_cmp_eq_u32 {sr(sMP)}, 0")
    a("s_nop 0")
    a("s_cbranch_scc1 L_B_s0")
    for dts, base in ((0, KV), (1, KV+8)):
        for ks in range(2):
            for et in range(2): mfma(base+et*4, PK+(ks*2+dts)*4, PV+(ks*2+et)*4, None if ks == 0 else base+et*4)
    a("s_branch L_B_s1")
    a.label("L_B_s0")
    for dts, base in ((1, KV), (0, KV+8)):
        for ks in range(2):
            for et in range(2): mfma(base+et*4, PK+(ks*2+dts)*4, PV+(ks*2+et)*4, None if ks == 0 else base+et*4)
    a.label("L_B_s1")
    a(f"s_lshl_b32 {sr(sT1)}, {sr(sRB)}, 10")
    a(f"s_add_u32 {sr(sT1)}, {sr(sT1)}, {sr(sKVO)}")
    a("s_nop 1")
    a(f"ds_write_b128 {vr(B_vSW)}, {vr(KV,4)}")
    a(f"ds_write_b128 {vr(B_vSW)}, {vr(KV+4,4)} offset:1024")
    a("s_waitcnt lgkmcnt(0)")
    a("s_barrier")
    a(f"ds_read_b128 {vr(KV+16,4)}, {vr(B_vSR)}")
    a(f"ds_read_b128 {vr(KV+20,4)}, {vr(B_vSR)} offset:1024")
    a("s_waitcnt lgkmcnt(0)")
    for i in range(0, 8, 2):
        a(f"v_pk_add_f32 {vr(KV+8+i,2)}, {vr(KV+8+i,2)}, {vr(KV+16+i,2)}")
    pack4(KV+24, KV+8, KV+12)
    a(f"buffer_store_dwordx4 {vr(KV+24,4)}, {vr(vL16)}, {sr(SWS,4)}, {sr(sT1)} offen sc1")
    lds_signal(B_vSY, 24)
    stamp("B partial stored")
    a("s_waitcnt vmcnt(0)")
    set_flag(sF1W, T)
    stamp("B flag1 set")
    poll_issue(sF1R, T+2)
    poll_finish(sF1R, T+2, T+4)
    stamp("B flag1 seen")
    PL = 112; T = 24
    for r in range(16):
        if r % 4 == 0 and r: a(f"s_add_u32 {sr(sT1)}, {sr(sKVO)}, {r*1024}")
        a.vmem(f"buffer_load_dwordx4 {vr(PL+r*4,4)}, {vr(vL16)}, {sr(SWS,4)}, {sr(sKVO if r < 4 else sT1)} offen offset:{(r%4)*1024} sc1", f"pl{r}")
    for r in range(16):
        a.wait_vm(f"pl{r}")
        mfma(T, B_SEL, PL+r*4, None if r == 0 else T)
        mfma(T+4, B_SEL+4, PL+r*4, None if r == 0 else T+4)
    a("s_nop 6")
    cvtpk(T+8, T, T+1); cvtpk(T+9, T+2, T+3)
    cvtpk(T+10, T+4, T+5); cvtpk(T+11, T+6, T+7)
    a(f"ds_write_b64 {vr(B_vKW)}, {vr(T+8,2)}")
    a(f"ds_write_b64 {vr(B_vKW)}, {vr(T+10,2)} offset:1024")
    a("s_waitcnt lgkmcnt(0)")
    lds_signal(B_vSK)
    a(f"v_subrev_u32 {vr(vT2)}, {B_KVS}, {vr(B_vSW)}")
    stamp("B kv done")
    lds_spin([(B_vSK, 0), (B_vPQ, 0)], 3, vT0)
    a(f"ds_read_b128 {vr(64,4)}, {vr(vT2)}")
    a(f"ds_read_b128 {vr(68,4)}, {vr(vT2)} offset:1024")
    a.vm = []
    o_B(64, 24, 112, "B")

def phase2():
    a.label("L_phase2")
    a.vm = []
    ACC = [4, 20]; OF = 36; WF = 100; T = 228
    a(f"v_mov_b32 {vr(T)}, 0")
    a(f"v_mov_b32 {vr(T+1)}, 0")
    a(f"v_lshlrev_b32 {vr(T+2)}, 3, {vr(vLANE)}")
    a(f"v_add_u32 {vr(T+2)}, {P2_ZERO}, {vr(T+2)}")
    a(f"ds_write_b64 {vr(T+2)}, {vr(T,2)}")
    def wreads(h, slot):
        out = []
        for t in range(4):
            base = vWO[t ^ (2 if h & 1 else 0)]
            for hf in range(2):
                out.append(f"ds_read_b64_tr_b16 {vr(WF+slot*16+t*4+hf*2,2)}, {vr(base)} offset:{h*3584 + hf*2048}")
        return out
    for br in range(2):
        if br == 0:
            a("s_waitcnt lgkmcnt(0)" if flag("wosplit") else "s_waitcnt vmcnt(0) lgkmcnt(0)")
            a("s_barrier")
            stamp("P2 wo landed")
        else:
            if flag("wosplit2"): a.wait_vm_all()
            if flag("wosplit"): a("s_barrier")
            for t in range(4): a(f"v_add_u32 {vr(vWO[t])}, 57344, {vr(vWO[t])}")
            a(f"s_add_u32 {sr(sF2R)}, {sr(sF2R)}, 2048")
            a(f"s_add_u32 {sr(sOLD)}, {sr(sOLD)}, {8*16384}")
        poll_issue(sF2R, T+4)
        for h in range(8):
            for r in wreads(h, h): a(r)
        poll_finish(sF2R, T+4, T+2)
        stamp(f"P2 flags seen {'AB'[br]}")
        for h in range(16):
            if h % 4 == 0 and h: a(f"s_add_u32 {sr(sT1)}, {sr(sOLD)}, {h*1024}")
            a.vmem(f"buffer_load_dwordx4 {vr(OF+h*4,4)}, {vr(vL16)}, {sr(SWS,4)}, {sr(sOLD if h < 4 else sT1)} offen offset:{(h%4)*1024} sc1", f"o{h}")
        if br == 1:
            a.vmem(f"buffer_load_dword {vr(T+6)}, {vr(vGT)}, {sr(SWS,4)}, {sr(sGT)} offen sc1", "g")
        elif flag("wosplit2"):
            for n in range(7):
                a(f"s_add_u32 m0, {sr(sW1K)}, {P2_WO + 57344 + n*8192}")
                a(f"s_mov_b32 {sr(sT2)}, {n*57344}")
                a.vmem(f"buffer_load_dwordx4 {vr(vWOD)}, {sr(SWOB,4)}, {sr(sT2)} offen lds", "wob")
        a("s_waitcnt lgkmcnt(0)")
        for h in range(16):
            a.wait_vm(f"o{h}")
            rd = wreads(h + 8, h) if h < 8 else []
            if h == 8: a("s_waitcnt lgkmcnt(15)")
            if h >= 14: a(f"s_waitcnt lgkmcnt({(15-h)*8})")
            for t in range(4):
                mfma(ACC[br]+t*4, WF+(h%8)*16+t*4, OF+h*4, None if h == 0 else ACC[br]+t*4)
                for _ in range(2):
                    if rd: a(rd.pop(0))
        if br == 0: stamp("P2 A half done")
    a.wait_vm("g")
    a("s_nop 3")
    for t in range(4):
        A_, B_ = ACC[0]+t*4, ACC[1]+t*4
        for i in range(4): a(f"v_sub_f32 {vr(A_+i)}, {vr(A_+i)}, {vr(B_+i)}")
        for i in range(4): a(f"v_fma_f32 {vr(A_+i)}, {vr(A_+i)}, {vr(T+6)}, {vr(B_+i)}")
        cvtpk(OF+2*t, A_, A_+1); cvtpk(OF+2*t+1, A_+2, A_+3)
        a(f"ds_write_b64 {vr(vCW)}, {vr(OF+2*t,2)} offset:{t*32}")
    a("s_waitcnt lgkmcnt(0)")
    a(f"ds_read_b128 {vr(OF+8,4)}, {vr(vCR)}")
    a(f"ds_read_b128 {vr(OF+12,4)}, {vr(vCR)} offset:{8*144}")
    a(f"s_mov_b32 {sr(sT0)}, {8*896}")
    a("s_waitcnt lgkmcnt(1)")
    OM = " sc1" if flag("outsc1") else (" nt" if flag("outnt") else "")
    a(f"buffer_store_dwordx4 {vr(OF+8,4)}, {vr(vOUT)}, {sr(SOUT,4)}, 0 offen{OM}")
    a("s_waitcnt lgkmcnt(0)")
    a(f"buffer_store_dwordx4 {vr(OF+12,4)}, {vr(vOUT)}, {sr(SOUT,4)}, {sr(sT0)} offen{OM}")
    stamp("P2 done")
    a("s_endpgm")
    a.label("L_idle2")
    a(f"s_cmp_lg_u32 {sr(sRB)}, 15")
    a("s_cbranch_scc1 L_end")
    a(f"v_lshlrev_b32 v10, 5, v0")
    a(f"s_mov_b32 {sr(sCNT)}, 0")
    a.label("L_jan")
    for k in range(4):
        a(f"s_mov_b32 {sr(sT0)}, {WS_F2 + k*16384}")
        a(f"buffer_load_dwordx2 {vr(12+2*k,2)}, v10, {sr(SWS,4)}, {sr(sT0)} offen sc1")
    a(f"s_add_u32 {sr(sCNT)}, {sr(sCNT)}, 1")
    a("s_waitcnt vmcnt(0)")
    a(f"v_cmp_ne_u64 {sr(sT0,2)}, {sr(sTAG,2)}, v[12:13]")
    a(f"v_cmp_ne_u64 {sr(sT2,2)}, {sr(sTAG,2)}, v[14:15]")
    a(f"s_or_b64 {sr(sT0,2)}, {sr(sT0,2)}, {sr(sT2,2)}")
    a(f"v_cmp_ne_u64 {sr(sT2,2)}, {sr(sTAG,2)}, v[16:17]")
    a(f"s_or_b64 {sr(sT0,2)}, {sr(sT0,2)}, {sr(sT2,2)}")
    a(f"v_cmp_ne_u64 {sr(sT2,2)}, {sr(sTAG,2)}, v[18:19]")
    a(f"s_or_b64 {sr(sT0,2)}, {sr(sT0,2)}, {sr(sT2,2)}")
    a("s_cbranch_scc0 L_jand")
    a(f"s_cmp_gt_u32 {sr(sCNT)}, 0x40000")
    a("s_cbranch_scc1 L_jand")
    a("s_sleep 4")
    a("s_branch L_jan")
    a.label("L_jand")
    a("s_barrier")
    a(f"s_cmp_lg_u32 {sr(sWAVE)}, 0")
    a("s_cbranch_scc1 L_end")
    a(f"s_mov_b32 {sr(sT0)}, {WS_EPOCH}")
    set_flag(sT0, 10)
    a.label("L_end")
    a("s_endpgm")

prologue()
loader()
a.vm = []
compute()
phase2()

hdr = f"""; fused gated-mix kernel: generated by gen/gen6.py
; @launch grid=(256,1,1) block=(512,1,1) lds={LDS_BYTES}
.amdgcn_target "amdgcn-amd-amdhsa--gfx950"
.text
.globl {NAME}_kernel
.p2align 8
.type {NAME}_kernel,@function
"""
ftr = f"""
.section .rodata,"a"
.p2align 6
.amdhsa_kernel {NAME}_kernel
  .amdhsa_next_free_vgpr 256
  .amdhsa_next_free_sgpr 102
  .amdhsa_accum_offset 256
  .amdhsa_group_segment_fixed_size 0
  .amdhsa_kernarg_size 80
  .amdhsa_user_sgpr_count 2
  .amdhsa_user_sgpr_kernarg_segment_ptr 1
  .amdhsa_system_sgpr_workgroup_id_x 1
.end_amdhsa_kernel
"""
out = [x for x in sys.argv[1:] if not x.startswith("--")]
path = out[0] if out else f"cdna_kernels/{NAME}.s"
open(path, "w").write(hdr + "\n".join(a.lines) + ftr)
print("wrote", path, len(a.lines), "lines")
```

```python
import sys, struct, re

NAME = "gated_mix__sliding_local_dilated__linear_attn_block__prompt"
def flag(n): return ("--" + n) in sys.argv
def opt(n, d):
    for x in sys.argv:
        if x.startswith(f"--{n}="): return int(x.split("=")[1])
    return d
STAMPS, DBGST, FINE = flag("stamps"), flag("dbgstamps"), flag("fine")
ROT = flag("rot")

WS_EPOCH = 0
WS_F1 = 0x1000
WS_F2 = 0x10000
WS_KV = 0x40000
WS_GATE = 0x180000
WS_O = 0x200000
WS_STAMP = 0x600000
WS_SIZE = 0x800000

L_X = [0, 16384, 32768]
L_W = [49152, 73728, 98304]
R0 = 122880
A_HALO = R0
A_HB = R0 + 14336
A_EX = A_HB + 4096
BX = [c*16384 for c in range(7)]
BW = [114688, 131072]
BQS = [131072, 139264, 114688, 122880, 149504, 131072, 139264]
B_GW = 147456
B_KVS = B_GW + 2048
B_KVF = B_KVS + 8192
B_SY = B_KVF + 4096
assert B_SY + 64 <= 163840
P2_WO = 0
P2_ZERO = 114688
P2_G = 115200
P2_CB = 115456
P2_CBSZ = 64 * 272
LDS_BYTES = 163840

LOG2E = 1.4426950408889634
def f2u(x): return struct.unpack("<I", struct.pack("<f", x))[0]

class Asm:
    def __init__(self):
        self.lines = []; self.vm = []; self.lbl = 0; self.ds = []
    def __call__(self, s): self.lines.append("    " + s)
    def c(self, s): self.lines.append("    ; " + s)
    def label(self, name): self.lines.append(name + ":")
    def newlabel(self, p="L"):
        self.lbl += 1; return f"{p}_{self.lbl}"
    def vmem(self, s, tag): self(s); self.vm.append(tag)
    def vmem_unc(self, s): self(s)
    def wait_vm(self, tag, extra=""):
        idx = max(i for i, t in enumerate(self.vm) if t == tag)
        n = len(self.vm) - 1 - idx
        assert n <= 63
        self(f"s_waitcnt vmcnt({n}){extra}")
        self.vm = self.vm[idx + 1:]
    def wait_vm_all(self, extra=""):
        self(f"s_waitcnt vmcnt(0){extra}"); self.vm = []
    def dsr(self, text):
        m = re.search(r"v\[(\d+):(\d+)\]", text)
        self(text); self.ds.append(set(range(int(m.group(1)), int(m.group(2)) + 1)))
    def need(self, regs):
        regs = set(regs)
        idx = max((i for i, r in enumerate(self.ds) if r & regs), default=-1)
        if idx < 0: return
        n = len(self.ds) - 1 - idx
        self(f"s_waitcnt lgkmcnt({min(n, 15)})")
        self.ds = self.ds[idx + 1:] if n <= 15 else self.ds[-15:]
    def ds_all(self): self.ds = []

def vr(b, n=1): return f"v{b}" if n == 1 else f"v[{b}:{b+n-1}]"
def sr(b, n=1): return f"s{b}" if n == 1 else f"s[{b}:{b+n-1}]"
a = Asm()

sROT = 3
sU, sMP, sROLE, sEXB = 4, 5, 6, 7
SX, SW, SWS, SWOA, SWOB, SOUT, SG = 8, 12, 16, 20, 24, 28, 32
sWAVE, sMI, sNI, sRB, sHP, sTYPE = 36, 37, 38, 39, 40, 41
sTAG = 42
sT0, sT1, sT2, sT3 = 44, 45, 46, 47
sW1K, sU4K, sU6K = 48, 49, 50
sSOX, sSOW, sSOX2 = 51, 52, 53
sMASK48, sODD, sONE, sEXEC = 54, 56, 58, 60
sCB, sHALF, sCNT, sJ = 62, 63, 64, 65
sPC = 66
sL2E, sEPS = 68, 70
sST = 72
sPTR = 76
sOST, sF2W, sF2R, sOLD = 76, 77, 78, 79
sGT, sKVO, sF1W, sF1R, sK0, sBR, sGST = 80, 81, 82, 83, 84, 85, 86

vLANE, vI16, vG = 1, 2, 3
vT0, vT1, vT2, vT3, vT4, vT5 = 4, 5, 6, 7, 8, 9
vDUM = 23
vL16, vPOLL, vWOD = 236, 237, 238
vWO = [240, 241, 242, 243]
vGT, vCW, vCR, vGR, vGW, vOUT = 244, 245, 246, 247, 248, 249

stamp_idx = [0]
def stamp(name, src=None):
    if DBGST:
        i = stamp_idx[0]; stamp_idx[0] += 1
        if i > 15: return
        L = a.newlabel("L_st")
        a.c(f"stamp {i}: {name}")
        a(f"s_and_b32 s74, s2, 127")
        a(f"s_and_b32 s75, {sr(sWAVE)}, 3")
        a(f"s_or_b32 s74, s74, s75")
        if name.startswith("P2"): a(f"s_or_b32 s74, s74, s2"); a(f"s_or_b32 s74, s74, {sr(sWAVE)}")
        a(f"s_cmp_lg_u32 s74, 0")
        a(f"s_cbranch_scc1 {L}")
        a(f"s_memrealtime {sr(sST,2)}")
        a("s_waitcnt lgkmcnt(0)")
        a(f"s_sub_u32 {sr(sST)}, {sr(sST)}, s98")
        a(f"v_mov_b32 v22, {sr(sST)}")
        a(f"v_mov_b32 v21, {i*4}")
        a(f"s_mov_b64 {sr(sST,2)}, exec")
        a("s_mov_b64 exec, 1")
        a.vmem_unc(f"global_store_dword v21, v22, s[96:97]")
        a(f"s_mov_b64 exec, {sr(sST,2)}")
        a.label(L)
        return
    if not STAMPS: return
    i = stamp_idx[0]; stamp_idx[0] += 1
    a.c(f"stamp {i}: {name}")
    if src is None:
        a(f"{'s_memtime' if flag('cyc') else 's_memrealtime'} {sr(sST,2)}")
        a("s_waitcnt lgkmcnt(0)")
    else:
        a(f"s_mov_b32 {sr(sST)}, s{src}")
    a(f"v_mov_b32 v22, {sr(sST)}")
    a(f"s_lshl_b32 s74, s2, 3")
    a(f"s_or_b32 s74, s74, {sr(sWAVE)}")
    a(f"s_lshl_b32 s74, s74, 8")
    a(f"s_or_b32 s74, s74, {WS_STAMP + i*4}")
    a(f"s_mov_b64 {sr(sST,2)}, exec")
    a("s_mov_b64 exec, 1")
    a.vmem_unc(f"buffer_store_dword v22, off, {sr(SWS,4)}, s74")
    a(f"s_mov_b64 exec, {sr(sST,2)}")

def mfma(d, A, B, C=None):
    c = vr(C, 4) if C is not None else "0"
    a(f"v_mfma_f32_16x16x32_bf16 {vr(d,4)}, {vr(A,4)}, {vr(B,4)}, {c}")
def cvtpk(d, x, y): a(f"v_cvt_pk_bf16_f32 {vr(d)}, {vr(x)}, {vr(y)}")
def srd(d, p, n):
    a(f"s_mov_b32 {sr(d)}, {sr(p)}"); a(f"s_mov_b32 {sr(d+1)}, {sr(p+1)}")
    a(f"s_mov_b32 {sr(d+2)}, {n}"); a(f"s_mov_b32 {sr(d+3)}, 0x00020000")

def true_chunk(dst, c):
    if not ROT:
        a(f"s_mov_b32 {sr(dst)}, {c}"); return
    a(f"s_add_u32 {sr(dst)}, {sr(sROT)}, {c}")
    a(f"s_cmp_ge_u32 {sr(dst)}, 7")
    a(f"s_cselect_b32 s75, 7, 0")
    a(f"s_sub_u32 {sr(dst)}, {sr(dst)}, s75")

def prologue():
    a.label(f"{NAME}_kernel")
    if DBGST or STAMPS: a("s_memrealtime s[98:99]")
    a("s_cmp_ge_u32 s2, 256")
    a("s_cbranch_scc1 L_end")
    a(f"s_load_dwordx16 {sr(sPTR,16)}, s[0:1], 0")
    a(f"s_load_dwordx4 {sr(sPTR+16,4)}, s[0:1], 64")
    a(f"s_getpc_b64 {sr(sPC,2)}")
    a.label("L_pc")
    a(f"v_lshrrev_b32 {vr(vT0)}, 6, v0")
    a(f"v_and_b32 {vr(vLANE)}, 63, v0")
    a(f"v_readfirstlane_b32 {sr(sWAVE)}, {vr(vT0)}")
    a(f"v_and_b32 {vr(vI16)}, 15, v0")
    a(f"v_bfe_u32 {vr(vG)}, v0, 4, 2")
    a(f"s_and_b32 {sr(sT0)}, s2, 7")
    a(f"s_lshr_b32 {sr(sJ)}, s2, 3")
    a(f"s_lshr_b32 {sr(sT2)}, {sr(sT0)}, 1")
    a(f"s_lshl_b32 {sr(sT2)}, {sr(sT2)}, 2")
    a(f"s_and_b32 {sr(sT1)}, {sr(sJ)}, 3")
    a(f"s_add_u32 {sr(sRB)}, {sr(sT2)}, {sr(sT1)}")
    a(f"s_and_b32 {sr(sHALF)}, {sr(sT0)}, 1")
    a(f"s_lshl_b32 {sr(sT2)}, {sr(sHALF)}, 2")
    a(f"s_lshr_b32 {sr(sCB)}, {sr(sJ)}, 2")
    a(f"s_and_b32 {sr(sT3)}, {sr(sCB)}, 3")
    a(f"s_add_u32 {sr(sHP)}, {sr(sT2)}, {sr(sT3)}")
    a(f"s_lshr_b32 {sr(sTYPE)}, {sr(sJ)}, 4")
    if ROT:
        a(f"s_lshl_b32 {sr(sT1)}, {sr(sT1)}, 1")
        a(f"s_add_u32 {sr(sROT)}, {sr(sT1)}, {sr(sCB)}")
        a(f"s_cmp_ge_u32 {sr(sROT)}, 7")
        a(f"s_cselect_b32 {sr(sT0)}, 7, 0")
        a(f"s_sub_u32 {sr(sROT)}, {sr(sROT)}, {sr(sT0)}")
    else:
        a(f"s_mov_b32 {sr(sROT)}, 0")
    a(f"s_and_b32 {sr(sU)}, {sr(sWAVE)}, 3")
    a(f"s_lshr_b32 {sr(sROLE)}, {sr(sWAVE)}, 2")
    a(f"s_lshr_b32 {sr(sMP)}, {sr(sU)}, 1")
    a(f"s_and_b32 {sr(sNI)}, {sr(sWAVE)}, 1")
    a(f"s_lshl_b32 {sr(sMI)}, {sr(sMP)}, 1")
    a(f"s_add_u32 {sr(sMI)}, {sr(sMI)}, {sr(sROLE)}")
    a(f"s_lshl_b32 {sr(sW1K)}, {sr(sWAVE)}, 10")
    a(f"s_cmp_eq_u32 {sr(sROLE)}, 0")
    a("s_cbranch_scc1 L_compute")

def late_srds():
    P = sPTR
    srd(SWS, P+18, WS_SIZE)
    a(f"s_load_dwordx2 {sr(sTAG,2)}, {sr(P+18,2)}, {WS_EPOCH}")
    srd(SWOA, P+4, 401408); srd(SWOB, P+10, 401408); srd(SOUT, P+14, 1835008); srd(SG, P+12, 896)
    if DBGST:
        a(f"s_mov_b32 s96, {sr(P+16)}"); a(f"s_mov_b32 s97, {sr(P+17)}")

def compute_tag():
    a(f"s_add_u32 {sr(sTAG)}, {sr(sTAG)}, 0x7f4a7c15")
    a(f"s_addc_u32 {sr(sTAG+1)}, {sr(sTAG+1)}, 0x9e3779b9")

def late_setup(p2):
    T0, T1, T2 = vT0, vT1, vT2
    a(f"s_mov_b32 {sr(sMASK48)}, -1")
    a(f"s_mov_b32 {sr(sMASK48+1)}, 0xffff")
    a(f"v_lshlrev_b32 {vr(vL16)}, 4, {vr(vLANE)}")
    a(f"v_lshlrev_b32 {vr(vPOLL)}, 5, {vr(vI16)}")
    a(f"v_lshlrev_b32 {vr(vGT)}, 2, {vr(vI16)}")
    a(f"s_lshl_b32 {sr(sT0)}, {sr(sRB)}, 1")
    a(f"s_add_u32 {sr(sT0)}, {sr(sT0)}, 1")
    a(f"s_sub_u32 {sr(sT0)}, {sr(sT0)}, {sr(sTYPE)}")
    a(f"s_lshl_b32 {sr(sT0)}, {sr(sT0)}, 2")
    a(f"s_add_u32 {sr(sT0)}, {sr(sT0)}, {sr(sMI)}")
    a(f"s_lshl_b32 {sr(sT1)}, {sr(sHP)}, 1")
    a(f"s_add_u32 {sr(sT1)}, {sr(sT1)}, {sr(sNI)}")
    a(f"s_lshl_b32 {sr(sT2)}, {sr(sT0)}, 5")
    a(f"s_add_u32 {sr(sT2)}, {sr(sT2)}, {sr(sT1)}")
    a(f"s_lshl_b32 {sr(sT2)}, {sr(sT2)}, 10")
    a(f"s_add_u32 {sr(sOST)}, {sr(sT2)}, {WS_O}")
    a(f"s_lshl_b32 {sr(sT2)}, {sr(sT0)}, 4")
    a(f"s_add_u32 {sr(sT2)}, {sr(sT2)}, {sr(sT1)}")
    a(f"s_lshl_b32 {sr(sT2)}, {sr(sT2)}, 5")
    a(f"s_add_u32 {sr(sF2W)}, {sr(sT2)}, {WS_F2}")
    if not p2: return
    a(f"s_lshl_b32 {sr(sT0)}, {sr(sRB)}, 4")
    a(f"s_add_u32 {sr(sT0)}, {sr(sT0)}, {sr(sWAVE)}")
    a(f"s_lshl_b32 {sr(sT1)}, {sr(sT0)}, 14")
    a(f"s_add_u32 {sr(sOLD)}, {sr(sT1)}, {WS_O}")
    a(f"s_lshl_b32 {sr(sT0)}, {sr(sRB)}, 3")
    a(f"s_lshr_b32 {sr(sT1)}, {sr(sWAVE)}, 1")
    a(f"s_add_u32 {sr(sT1)}, {sr(sT1)}, {sr(sT0)}")
    a(f"s_lshl_b32 {sr(sT1)}, {sr(sT1)}, 9")
    a(f"s_add_u32 {sr(sF2R)}, {sr(sT1)}, {WS_F2}")
    a(f"s_add_u32 {sr(sT0)}, {sr(sT0)}, {sr(sWAVE)}")
    a(f"s_lshl_b32 {sr(sT0)}, {sr(sT0)}, 6")
    a(f"s_add_u32 {sr(sGT)}, {sr(sT0)}, {WS_GATE}")
    a(f"v_lshrrev_b32 {vr(T0)}, 3, {vr(vLANE)}")
    a(f"v_and_b32 {vr(T1)}, 7, {vr(vLANE)}")
    a(f"v_lshlrev_b32 {vr(T2)}, 1, {vr(vG)}")
    a(f"v_xor_b32 {vr(T2)}, {vr(T1)}, {vr(T2)}")
    a(f"v_mul_u32_u24 {vr(vOUT)}, 896, {vr(T0)}")
    a(f"s_mul_i32 {sr(sT0)}, {sr(sWAVE)}, {8*896}")
    a(f"s_lshl_b32 {sr(sT1)}, {sr(sHP)}, 7")
    a(f"s_add_u32 {sr(sT0)}, {sr(sT0)}, {sr(sT1)}")
    a(f"v_add_u32 {vr(vWOD)}, {sr(sT0)}, {vr(vOUT)}")
    a(f"v_lshl_add_u32 {vr(vWOD)}, {vr(T2)}, 4, {vr(vWOD)}")
    a(f"v_lshl_add_u32 {vr(vOUT)}, {vr(T1)}, 4, {vr(vOUT)}")
    a(f"s_lshl_b32 {sr(sT0)}, {sr(sRB)}, 3")
    a(f"s_add_u32 {sr(sT0)}, {sr(sT0)}, {sr(sWAVE)}")
    a(f"s_mul_i32 {sr(sT0)}, {sr(sT0)}, {16*896}")
    a(f"s_add_u32 {sr(sT0)}, {sr(sT0)}, {sr(sT1)}")
    a(f"v_add_u32 {vr(vOUT)}, {sr(sT0)}, {vr(vOUT)}")
    a(f"s_mul_i32 {sr(sT0)}, {sr(sWAVE)}, {16*144}")
    a(f"s_add_u32 {sr(sT0)}, {sr(sT0)}, {P2_CB}")
    a(f"v_mul_u32_u24 {vr(vCR)}, 144, {vr(T0)}")
    a(f"v_lshl_add_u32 {vr(vCR)}, {vr(T1)}, 4, {vr(vCR)}")
    a(f"v_add_u32 {vr(vCR)}, {sr(sT0)}, {vr(vCR)}")
    a(f"v_mul_u32_u24 {vr(vCW)}, 144, {vr(vI16)}")
    a(f"v_lshl_add_u32 {vr(vCW)}, {vr(vG)}, 3, {vr(vCW)}")
    a(f"v_add_u32 {vr(vCW)}, {sr(sT0)}, {vr(vCW)}")
    a(f"v_lshrrev_b32 {vr(T0)}, 2, {vr(vI16)}")
    a(f"v_lshl_add_u32 {vr(T1)}, {vr(vG)}, 2, {vr(T0)}")
    a(f"v_lshlrev_b32 {vr(T1)}, 7, {vr(T1)}")
    a(f"v_and_b32 {vr(T2)}, 3, {vr(vI16)}")
    a(f"v_lshl_add_u32 {vr(T1)}, {vr(T2)}, 3, {vr(T1)}")
    a(f"v_lshrrev_b32 {vr(T0)}, 1, {vr(T0)}")
    a(f"v_and_b32 {vr(T2)}, 1, {vr(vG)}")
    a(f"v_lshl_or_b32 {vr(T0)}, {vr(T2)}, 1, {vr(T0)}")
    a(f"v_lshl_add_u32 {vr(vWO[0])}, {vr(T0)}, 5, {vr(T1)}")
    for t in range(1, 4):
        a(f"v_xor_b32 {vr(vWO[t])}, {t*32}, {vr(vWO[0])}")

A_ONES, A_BIAS, A_SH, A_vEX, A_vPK, A_vPV, A_vHW = 216, 220, 226, 227, 228, 229, 230
def setup_A_consts():
    T0, T1, T2, T3, T4 = vT0, vT1, vT2, vT3, vT4
    BIAS = A_BIAS
    a(f"s_mov_b32 {sr(sODD)}, 0xaaaaaaaa"); a(f"s_mov_b32 {sr(sODD+1)}, 0xaaaaaaaa")
    a(f"s_mov_b32 {sr(sK0)}, {f2u(28**-0.5 * LOG2E)}")
    for i in range(4): a(f"v_mov_b32 {vr(A_ONES+i)}, 0x3f803f80")
    a(f"v_and_b32 {vr(T0)}, 1, {vr(vI16)}")
    a(f"v_lshlrev_b32 {vr(A_SH)}, 4, {vr(T0)}")
    a(f"v_lshl_add_u32 {vr(T1)}, {vr(vG)}, 2, {vr(T0)}")
    a(f"v_mov_b32 {vr(T2)}, 0xf149f2ca")
    a(f"v_cmp_le_u32 vcc, {vr(T1)}, {vr(vI16)}")
    a(f"v_add_u32 {vr(T3)}, 2, {vr(T1)}")
    a("s_nop 0")
    a(f"v_cndmask_b32 {vr(BIAS+2)}, {vr(T2)}, 0, vcc")
    a(f"v_cmp_le_u32 vcc, {vr(T3)}, {vr(vI16)}")
    a(f"v_add_u32 {vr(T4)}, 2, {vr(vI16)}")
    a("s_nop 0")
    a(f"v_cndmask_b32 {vr(BIAS+3)}, {vr(T2)}, 0, vcc")
    a(f"v_cmp_ge_u32 vcc, {vr(T1)}, {vr(T4)}")
    a("s_nop 1")
    a(f"v_cndmask_b32 {vr(BIAS+0)}, {vr(T2)}, 0, vcc")
    a(f"v_cmp_ge_u32 vcc, {vr(T3)}, {vr(T4)}")
    a("s_nop 1")
    a(f"v_cndmask_b32 {vr(BIAS+1)}, {vr(T2)}, 0, vcc")
    a(f"s_or_b32 {sr(sT0)}, {sr(sRB)}, {sr(sMI)}")
    a(f"s_cmp_eq_u32 {sr(sT0)}, 0")
    a(f"s_cselect_b32 {sr(sT0)}, 0xf149f2ca, 0")
    a(f"v_min_f32 {vr(BIAS+4)}, {sr(sT0)}, {vr(BIAS+0)}")
    a(f"v_min_f32 {vr(BIAS+5)}, {sr(sT0)}, {vr(BIAS+1)}")
    a(f"s_lshl_b32 {sr(sT0)}, {sr(sNI)}, 11")
    a(f"s_add_u32 {sr(sT1)}, {sr(sT0)}, {A_EX}")
    a(f"s_add_u32 {sr(sT0)}, {sr(sT0)}, {A_HB}")
    a(f"v_add_u32 {vr(A_vEX)}, {sr(sT1)}, {vr(vL16)}")
    a(f"s_lshl_b32 {sr(sT2)}, {sr(sMP)}, 12")
    a(f"v_add_u32 {vr(A_vEX)}, {sr(sT2)}, {vr(A_vEX)}")
    a(f"s_cmp_eq_u32 {sr(sMP)}, 0")
    a(f"s_cselect_b32 {sr(sT2)}, {sr(sT0)}, {sr(sT1)}")
    a(f"v_add_u32 {vr(A_vPK)}, {sr(sT2)}, {vr(vL16)}")
    a(f"s_lshl_b32 {sr(sT2)}, {sr(sMP)}, 10")
    a(f"s_add_u32 {sr(sT0)}, {sr(sT0)}, {sr(sT2)}")
    a(f"v_add_u32 {vr(A_vHW)}, {sr(sT0)}, {vr(vL16)}")

B_vSY, B_vSW, B_vSR, B_vPQ, B_vKW, B_vKR, B_vZR, B_SEL = 216, 217, 218, 219, 220, 221, 222, 224
B_EPS4 = 232
B_vSK = 223
B_vONE = 250
def setup_B_consts():
    a(f"s_mov_b32 {sr(sONE)}, 0x10001000"); a(f"s_mov_b32 {sr(sONE+1)}, 0x10001000")
    a(f"s_mov_b32 {sr(sL2E)}, {f2u(LOG2E)}"); a(f"s_mov_b32 {sr(sL2E+1)}, {f2u(LOG2E)}")
    a(f"s_mov_b32 {sr(sEPS)}, {f2u(1e-6)}"); a(f"s_mov_b32 {sr(sEPS+1)}, {f2u(1e-6)}")
    a(f"s_lshl_b32 {sr(sT0)}, {sr(sU)}, 11")
    a(f"s_add_u32 {sr(sT1)}, {sr(sT0)}, {B_KVS}")
    a(f"v_add_u32 {vr(B_vSW)}, {sr(sT1)}, {vr(vL16)}")
    a(f"s_xor_b32 {sr(sT1)}, {sr(sT0)}, 4096")
    a(f"s_add_u32 {sr(sT1)}, {sr(sT1)}, {B_KVS}")
    a(f"v_add_u32 {vr(B_vSR)}, {sr(sT1)}, {vr(vL16)}")
    a(f"v_mov_b32 {vr(B_vSY)}, {B_SY}")
    a(f"s_lshl_b32 {sr(sT1)}, {sr(sU)}, 2")
    a(f"v_add_u32 {vr(B_vPQ)}, {sr(sT1)}, {vr(B_vSY)}")
    a(f"s_lshl_b32 {sr(sT1)}, {sr(sNI)}, 2")
    a(f"s_add_u32 {sr(sT1)}, {sr(sT1)}, 16")
    a(f"v_add_u32 {vr(B_vSK)}, {sr(sT1)}, {vr(B_vSY)}")
    a(f"v_mov_b32 {vr(B_vONE)}, 1")
    a(f"s_lshl_b32 {sr(sT0)}, {sr(sHP)}, 2")
    a(f"s_add_u32 {sr(sT0)}, {sr(sT0)}, {sr(sU)}")
    a(f"s_lshl_b32 {sr(sT1)}, {sr(sT0)}, 14")
    a(f"s_add_u32 {sr(sKVO)}, {sr(sT1)}, {WS_KV}")
    a(f"s_lshl_b32 {sr(sT1)}, {sr(sT0)}, 9")
    a(f"s_add_u32 {sr(sF1R)}, {sr(sT1)}, {WS_F1}")
    a(f"s_lshl_b32 {sr(sT1)}, {sr(sRB)}, 5")
    a(f"s_add_u32 {sr(sF1W)}, {sr(sF1R)}, {sr(sT1)}")
    a(f"s_lshl_b32 {sr(sT0)}, {sr(sNI)}, 11")
    a(f"s_add_u32 {sr(sT0)}, {sr(sT0)}, {B_KVF}")
    a(f"v_add_u32 {vr(B_vKR)}, {sr(sT0)}, {vr(vL16)}")
    a(f"s_lshl_b32 {sr(sT1)}, {sr(sMP)}, 3")
    a(f"v_add_u32 {vr(B_vKW)}, {sr(sT1)}, {vr(B_vKR)}")
    a(f"v_lshlrev_b32 {vr(B_vZR)}, 8, {vr(vG)}")
    a(f"v_add_u32 {vr(B_vZR)}, {sr(sT0)}, {vr(B_vZR)}")
    a(f"s_lshl_b32 {sr(sT0)}, {sr(sRB)}, 2")
    a(f"s_add_u32 {sr(sT0)}, {sr(sT0)}, {sr(sU)}")
    a(f"s_lshl_b32 {sr(sT0)}, {sr(sT0)}, 7")
    a(f"s_add_u32 {sr(sGST)}, {sr(sT0)}, {WS_GATE}")
    T0, T1, T2 = vT0, vT1, vT2
    a(f"v_lshrrev_b32 {vr(T0)}, 2, {vr(vI16)}")
    a(f"v_and_b32 {vr(T1)}, 1, {vr(vI16)}")
    a(f"v_lshlrev_b32 {vr(T1)}, 4, {vr(T1)}")
    a(f"v_mov_b32 {vr(T2)}, 0x3f80")
    a(f"v_lshlrev_b32 {vr(T1)}, {vr(T1)}, {vr(T2)}")
    a(f"v_cmp_eq_u32 vcc, {vr(T0)}, {vr(vG)}")
    a(f"v_and_b32 {vr(T2)}, 2, {vr(vI16)}")
    a("s_nop 0")
    a(f"v_cndmask_b32 {vr(T1)}, 0, {vr(T1)}, vcc")
    a(f"v_cmp_eq_u32 vcc, 0, {vr(T2)}")
    for i in (2, 3, 4, 5): a(f"v_mov_b32 {vr(B_SEL+i)}, 0")
    a(f"v_cndmask_b32 {vr(B_SEL+0)}, 0, {vr(T1)}, vcc")
    a(f"v_cndmask_b32 {vr(B_SEL+1)}, {vr(T1)}, 0, vcc")
    a(f"v_mov_b32 {vr(B_SEL+6)}, {vr(B_SEL+0)}")
    a(f"v_mov_b32 {vr(B_SEL+7)}, {vr(B_SEL+1)}")
    for i in range(4): a(f"v_mov_b32 {vr(B_EPS4+i)}, {sr(sEPS)}")

def set_flag(soff, vtmp):
    a(f"v_mov_b32 {vr(vtmp)}, {sr(sTAG)}")
    a(f"v_mov_b32 {vr(vtmp+1)}, {sr(sTAG+1)}")
    a("s_mov_b64 exec, 1")
    a.vmem(f"buffer_store_dwordx2 {vr(vtmp,2)}, off, {sr(SWS,4)}, {sr(soff)} sc1", "flag")
    a("s_mov_b64 exec, -1")

def poll_issue(soff, vtmp):
    a.vmem(f"buffer_load_dwordx2 {vr(vtmp,2)}, {vr(vPOLL)}, {sr(SWS,4)}, {sr(soff)} offen sc1", "poll")

def poll_finish(soff, vtmp, v2=None):
    L = a.newlabel("L_poll"); Ld = a.newlabel("L_polld")
    a(f"s_mov_b32 {sr(sCNT)}, 0")
    if flag("poll2"):
        ld = lambda r: a(f"buffer_load_dwordx2 {vr(r,2)}, {vr(vPOLL)}, {sr(SWS,4)}, {sr(soff)} offen sc1")
        a("s_sleep 2")
        a.label(L)
        ld(v2)
        a("s_waitcnt vmcnt(1)")
        a(f"v_cmp_ne_u64 vcc, {sr(sTAG,2)}, {vr(vtmp,2)}")
        a(f"s_add_u32 {sr(sCNT)}, {sr(sCNT)}, 1")
        a(f"s_cbranch_vccz {Ld}")
        ld(vtmp)
        a("s_waitcnt vmcnt(1)")
        a(f"v_cmp_ne_u64 vcc, {sr(sTAG,2)}, {vr(v2,2)}")
        a(f"s_cmp_gt_u32 {sr(sCNT)}, 0x40000")
        a(f"s_cbranch_vccz {Ld}")
        a(f"s_cbranch_scc0 {L}")
        a.label(Ld)
        a.vm = ["poll"]
        return
    a.label(L)
    a("s_waitcnt vmcnt(0)")
    a(f"v_cmp_ne_u64 vcc, {sr(sTAG,2)}, {vr(vtmp,2)}")
    a(f"s_add_u32 {sr(sCNT)}, {sr(sCNT)}, 1")
    a(f"s_cbranch_vccz {Ld}")
    a(f"s_cmp_gt_u32 {sr(sCNT)}, 0x40000")
    a(f"s_cbranch_scc1 {Ld}")
    a(f"buffer_load_dwordx2 {vr(vtmp,2)}, {vr(vPOLL)}, {sr(SWS,4)}, {sr(soff)} offen sc1")
    a(f"s_branch {L}")
    a.label(Ld)
    a.vm = []

def lds_signal(addr, off=0):
    a("s_mov_b64 exec, 1")
    a(f"ds_add_u32 {vr(addr)}, {vr(B_vONE)} offset:{off}")
    a("s_mov_b64 exec, -1")

def lds_spin(reads, total, tmp):
    L = a.newlabel("L_spin"); Ld = a.newlabel("L_spind")
    a(f"s_mov_b32 {sr(sCNT)}, 0")
    a.label(L)
    for i, (ad, off) in enumerate(reads): a(f"ds_read_b32 {vr(tmp+i)}, {vr(ad)} offset:{off}")
    a(f"s_add_u32 {sr(sCNT)}, {sr(sCNT)}, 1")
    a("s_waitcnt lgkmcnt(0)")
    for i in range(1, len(reads)): a(f"v_add_u32 {vr(tmp)}, {vr(tmp)}, {vr(tmp+i)}")
    a(f"s_cmp_gt_u32 {sr(sCNT)}, 0x200000")
    a(f"v_readfirstlane_b32 {sr(sT0)}, {vr(tmp)}")
    a(f"s_cbranch_scc1 {Ld}")
    a(f"s_cmp_lg_u32 {sr(sT0)}, {total}")
    a(f"s_cbranch_scc1 {L}")
    a.label(Ld)

def w_read_addr(dst, t, nseg, base):
    t0, t1 = vT0, vT1
    a(f"v_and_b32 {vr(t0)}, 3, {vr(vI16)}")
    a(f"v_lshlrev_b32 {vr(t0)}, 3, {vr(t0)}")
    a(f"s_mul_i32 {sr(sT0)}, {sr(sNI)}, 56")
    if t: a(f"s_add_u32 {sr(sT0)}, {sr(sT0)}, 32")
    a(f"v_add_u32 {vr(t0)}, {sr(sT0)}, {vr(t0)}")
    a(f"v_and_b32 {vr(t1)}, 8, {vr(vI16)}")
    a(f"v_lshlrev_b32 {vr(t1)}, 2, {vr(t1)}")
    a(f"v_xor_b32 {vr(t0)}, {vr(t0)}, {vr(t1)}")
    a(f"v_and_b32 {vr(t1)}, 1, {vr(vG)}")
    a(f"v_lshlrev_b32 {vr(t1)}, 6, {vr(t1)}")
    a(f"v_xor_b32 {vr(t0)}, {vr(t0)}, {vr(t1)}")
    a(f"v_lshrrev_b32 {vr(t1)}, 2, {vr(vI16)}")
    a(f"v_lshl_add_u32 {vr(t0)}, {vr(t1)}, 7, {vr(t0)}")
    a(f"v_mul_u32_u24 {vr(t1)}, {nseg*1024}, {vr(vG)}")
    a(f"v_add_u32 {vr(t0)}, {vr(t0)}, {vr(t1)}")
    a(f"v_add_u32 {vr(dst)}, {base}, {vr(t0)}")

def x_read_addr(d0, d1, d2, d3):
    a(f"v_lshrrev_b32 {vr(vT5)}, 1, {vr(vI16)}")
    a(f"v_xor_b32 {vr(vT5)}, {vr(vG)}, {vr(vT5)}")
    a(f"v_lshlrev_b32 {vr(vT5)}, 4, {vr(vT5)}")
    a(f"v_lshl_add_u32 {vr(vT5)}, {vr(vI16)}, 7, {vr(vT5)}")
    a(f"s_lshl_b32 {sr(sT1)}, {sr(sMP)}, 13")
    a(f"v_add_u32 {vr(d0)}, {sr(sT1)}, {vr(vT5)}")
    a(f"v_xor_b32 {vr(d1)}, 64, {vr(d0)}")
    if d2 is not None:
        a(f"v_add_u32 {vr(d2)}, 65536, {vr(d0)}")
        a(f"v_add_u32 {vr(d3)}, 65536, {vr(d1)}")

def pack4(d, t0, t1):
    cvtpk(d, t0, t0+1); cvtpk(d+1, t0+2, t0+3); cvtpk(d+2, t1, t1+1); cvtpk(d+3, t1+2, t1+3)

def R4(b): return list(range(b, b+4))

def sched_step(ms, rd, tail):
    rd = list(rd); nm = len(ms); nr = len(rd); done = 0
    span = max(1, nm - tail)
    for i, (fn, regs) in enumerate(ms):
        a.need(regs)
        fn()
        want = min(nr, -(-(i + 1) * nr // span))
        while done < want:
            a.dsr(rd[done]); done += 1
    while done < nr:
        a.dsr(rd[done]); done += 1

def o_B(PQ, T, O, p):
    KF = [T, T+4]; ZF = T+8
    a(f"ds_read_b128 {vr(ZF,4)}, {vr(B_vZR)} offset:{1024 + 12*16}")
    a(f"ds_read_b128 {vr(KF[0],4)}, {vr(B_vKR)}")
    a(f"ds_read_b128 {vr(KF[1],4)}, {vr(B_vKR)} offset:1024")
    a("s_waitcnt lgkmcnt(2)")
    for tl in range(2): mfma(O+tl*12+8, ZF, PQ+tl*4)
    a("s_waitcnt lgkmcnt(1)")
    for tl in range(2): mfma(O+tl*12, KF[0], PQ+tl*4)
    a("s_waitcnt lgkmcnt(0)")
    for tl in range(2): mfma(O+tl*12+4, KF[1], PQ+tl*4)
    a("s_nop 1")
    for tl in range(2): a(f"v_add_f32 {vr(O+tl*12+8)}, {sr(sEPS)}, {vr(O+tl*12+8)}")
    for tl in range(2): a(f"v_rcp_f32 {vr(O+tl*12+8)}, {vr(O+tl*12+8)}")
    a(f"s_add_u32 {sr(sT0)}, {sr(sOST)}, 16384")
    a("s_nop 0")
    for tl in range(2):
        b = O+tl*12
        for i in range(8): a(f"v_mul_f32 {vr(b+i)}, {vr(b+i)}, {vr(b+8)}")
        Rr = O+24+tl*4
        for i in range(4): cvtpk(Rr+i, b+2*i, b+2*i+1)
        a(f"v_cndmask_b32 {vr(Rr+2)}, 0, {vr(Rr+2)}, {sr(sMASK48,2)}")
        a(f"v_cndmask_b32 {vr(Rr+3)}, 0, {vr(Rr+3)}, {sr(sMASK48,2)}")
        a(f"buffer_store_dwordx4 {vr(Rr,4)}, {vr(vL16)}, {sr(SWS,4)}, {sr(sT0 if tl else sOST)} offen sc1")
    stamp(p + " o stored")
    a("s_waitcnt vmcnt(0)")
    set_flag(sF2W, T)
    stamp(p + " flag2 set")
    a("s_endpgm")

def phi_ops(base, n, tmp):
    seq = []
    for i in range(0, n, 2): seq.append(f"v_pk_mul_f32 {vr(tmp+i,2)}, {vr(base+i,2)}, {sr(sL2E,2)}")
    for i in range(n): seq.append(f"v_exp_f32 {vr(tmp+i)}, {vr(tmp+i)} clamp")
    for i in range(n): seq.append(f"v_max_f32 {vr(base+i)}, {sr(sEPS)}, {vr(base+i)}")
    for i in range(0, n, 2): seq.append(f"v_pk_add_f32 {vr(base+i,2)}, {vr(base+i,2)}, {vr(tmp+i,2)}")
    return seq

def loader():
    vXG0, vXG1, vWG0, vWG1, vH0, vH1 = 10, 11, 12, 13, 14, 15
    a.c("================ loader waves")
    a(f"s_lshl_b32 {sr(sU4K)}, {sr(sU)}, 12")
    a(f"s_mul_i32 {sr(sU6K)}, {sr(sU)}, 6144")
    a(f"v_lshrrev_b32 {vr(vT0)}, 3, {vr(vLANE)}")
    a(f"v_and_b32 {vr(vT1)}, 7, {vr(vLANE)}")
    a(f"v_xor_b32 {vr(vT2)}, {vr(vT1)}, {vr(vG)}")
    a(f"s_lshl_b32 {sr(sT0)}, {sr(sRB)}, 7")
    a(f"s_lshl_b32 {sr(sT1)}, {sr(sU)}, 5")
    a(f"s_add_u32 {sr(sT0)}, {sr(sT0)}, {sr(sT1)}")
    a(f"s_mul_i32 {sr(sT0)}, {sr(sT0)}, 896")
    a(f"v_mul_u32_u24 {vr(vT3)}, 896, {vr(vT0)}")
    a(f"v_lshl_add_u32 {vr(vT3)}, {vr(vT2)}, 4, {vr(vT3)}")
    a(f"v_add_u32 {vr(vXG0)}, {sr(sT0)}, {vr(vT3)}")
    a(f"v_xor_b32 {vr(vT4)}, 64, {vr(vT3)}")
    a(f"v_add_u32 {vr(vT4)}, {8*896-1024}, {vr(vT4)}")
    a(f"v_add_u32 {vr(vXG1)}, {sr(sT0)}, {vr(vT4)}")
    a(f"v_and_b32 {vr(vT2)}, 1, {vr(vG)}")
    a(f"v_lshlrev_b32 {vr(vT2)}, 1, {vr(vT2)}")
    a(f"v_xor_b32 {vr(vT2)}, {vr(vT1)}, {vr(vT2)}")
    a(f"v_xor_b32 {vr(vT5)}, 4, {vr(vT2)}")
    a(f"v_min_u32 {vr(vT2)}, 6, {vr(vT2)}")
    a(f"v_min_u32 {vr(vT5)}, 6, {vr(vT5)}")
    a(f"s_mul_i32 {sr(sT0)}, {sr(sU)}, {16*2688}")
    a(f"s_mul_i32 {sr(sT1)}, {sr(sHP)}, 112")
    a(f"s_add_u32 {sr(sT0)}, {sr(sT0)}, {sr(sT1)}")
    a(f"v_mul_u32_u24 {vr(vWG0)}, 2688, {vr(vT0)}")
    a(f"v_add_u32 {vr(vWG0)}, {sr(sT0)}, {vr(vWG0)}")
    a(f"v_lshl_add_u32 {vr(vWG1)}, {vr(vT5)}, 4, {vr(vWG0)}")
    a(f"v_add_u32 {vr(vWG1)}, {8*2688}, {vr(vWG1)}")
    a(f"v_lshl_add_u32 {vr(vWG0)}, {vr(vT2)}, 4, {vr(vWG0)}")
    a("s_waitcnt lgkmcnt(0)")
    P = sPTR
    srd(SX, P+0, 1835008)
    a(f"s_cmp_eq_u32 {sr(sTYPE)}, 1")
    a(f"s_cselect_b32 {sr(SW)}, {sr(P+2)}, {sr(P+8)}")
    a(f"s_cselect_b32 {sr(SW+1)}, {sr(P+3)}, {sr(P+9)}")
    a(f"s_mov_b32 {sr(SW+2)}, 1204224")
    a(f"s_mov_b32 {sr(SW+3)}, 0x00020000")
    a("s_cbranch_scc0 L_ldB")
    def issue_x(c, base, tag):
        a(f"s_add_u32 m0, {sr(sU4K)}, {base}")
        a(f"s_mov_b32 {sr(sSOX)}, {c*128}")
        a(f"s_mov_b32 {sr(sSOX2)}, {c*128 + 16*896-2048}")
        a.vmem(f"buffer_load_dwordx4 {vr(vXG0)}, {sr(SX,4)}, {sr(sSOX)} offen lds", tag)
        a.vmem(f"buffer_load_dwordx4 {vr(vXG1)}, {sr(SX,4)}, {sr(sSOX)} offen offset:1024 lds", tag)
        a.vmem(f"buffer_load_dwordx4 {vr(vXG0)}, {sr(SX,4)}, {sr(sSOX2)} offen offset:2048 lds", tag)
        a.vmem(f"buffer_load_dwordx4 {vr(vXG1)}, {sr(SX,4)}, {sr(sSOX2)} offen offset:3072 lds", tag)
    def issue_w(c, base, segs, ubase, tag):
        n = len(segs)
        for v in range(2):
            for i, sg in enumerate(segs):
                a(f"s_add_u32 m0, {sr(ubase)}, {base + v*n*1024 + i*1024 - sg*896}")
                a(f"s_mov_b32 {sr(sSOW)}, {c*172032}")
                off = f" offset:{sg*896}" if sg else ""
                a.vmem(f"buffer_load_dwordx4 {vr(vWG0 if v == 0 else vWG1)}, {sr(SW,4)}, {sr(sSOW)} offen{off} lds", tag)
    def wo_prefetch(srdreg):
        if flag("nowopf"): return
        a(f"s_and_b32 {sr(sT0)}, {sr(sJ)}, 15")
        a(f"s_lshl_b32 {sr(sT0)}, {sr(sT0)}, 2")
        a(f"s_add_u32 {sr(sT0)}, {sr(sT0)}, {sr(sU)}")
        a(f"s_lshl_b32 {sr(sT0)}, {sr(sT0)}, 13")
        a(f"v_lshlrev_b32 {vr(vH0)}, 7, {vr(vLANE)}")
        a.vmem(f"buffer_load_dword {vr(vDUM)}, {vr(vH0)}, {sr(srdreg,4)}, {sr(sT0)} offen", "pfwo")
    def first_stamps(p):
        if STAMPS:
            a("s_memrealtime s[88:89]")
            a("s_waitcnt lgkmcnt(0)")
            stamp(p + " entry", 98); stamp(p + " c0 issued", 96); stamp(p + " c1 issued", 88)
    WO_L1 = [(2,0),(3,0),(2,1),(3,1),(4,1)]; WO_L2 = [(4,0),(5,0),(5,1),(6,1)]
    def wo_one(n, b, counted=False):
        for hw in range(2):
            a(f"s_add_u32 m0, {sr(sW1K)}, {P2_WO + b*57344 + n*8192 - hw*4096}")
            a(f"s_mov_b32 {sr(sT2)}, {n*57344}")
            t_ = f"buffer_load_dwordx4 {vr(vWOD if hw == 0 else 16)}, {sr(SWOA if b==0 else SWOB,4)}, {sr(sT2)} offen lds"
            a.vmem(t_, "wo") if counted else a(t_)
    def chunkA(c):
        issue_x(c, L_X[c % 3], f"c{c}"); issue_w(c, L_W[c % 3], (0, 1, 2), sU6K, f"c{c}")
    chunkA(0)
    if STAMPS: a("s_memrealtime s[96:97]")
    a(f"s_lshl_b32 {sr(sT0)}, {sr(sRB)}, 7")
    a(f"s_sub_u32 {sr(sT0)}, {sr(sT0)}, 16")
    a(f"s_mul_i32 {sr(sT0)}, {sr(sT0)}, 896")
    a(f"v_add_u32 {vr(vH0)}, {sr(sT0)}, {vr(vT3)}")
    a(f"v_add_u32 {vr(vH1)}, {sr(sT0)}, {vr(vT4)}")
    a(f"s_lshl_b32 {sr(sT2)}, {sr(sU)}, 11")
    a(f"s_lshl_b32 {sr(sT1)}, {sr(sU)}, 7")
    a(f"s_add_u32 {sr(sT3)}, {sr(sT1)}, 512")
    a(f"s_add_u32 m0, {sr(sT2)}, {A_HALO}")
    a(f"s_cmp_eq_u32 {sr(sRB)}, 0")
    a(f"s_cselect_b32 {sr(sT1)}, 0, {sr(sT1)}")
    a(f"s_cselect_b32 {sr(sT3)}, 0, {sr(sT3)}")
    a.vmem_unc(f"buffer_load_dwordx4 {vr(vH0)}, {sr(SX,4)}, {sr(sT1)} offen lds")
    a.vmem_unc(f"buffer_load_dwordx4 {vr(vH1)}, {sr(SX,4)}, {sr(sT1)} offen offset:1024 lds")
    a(f"s_cmp_eq_u32 {sr(sU)}, 3")
    a("s_cbranch_scc1 L_ld_sided")
    a(f"s_add_u32 m0, {sr(sT2)}, {A_HALO + 8192}")
    a("s_nop 0")
    a.vmem_unc(f"buffer_load_dwordx4 {vr(vH0)}, {sr(SX,4)}, {sr(sT3)} offen lds")
    a.vmem_unc(f"buffer_load_dwordx4 {vr(vH1)}, {sr(SX,4)}, {sr(sT3)} offen offset:1024 lds")
    a.label("L_ld_sided")
    chunkA(1)
    late_srds()
    first_stamps("L")
    for c in range(7):
        if c == 0:
            n = len([t for t in a.vm if t != "c0"])
            a(f"s_waitcnt vmcnt({n}) lgkmcnt(0)"); a.vm = [t for t in a.vm if t != "c0"]
        else:
            a.wait_vm(f"c{c}")
        a("s_barrier")
        if c == 0: compute_tag()
        if c + 2 < 7: chunkA(c + 2)
        if c == 4:
            wo_prefetch(SWOB); late_setup(True)
            a(f"v_subrev_u32 v16, {32*896}, {vr(vWOD)}")
        if flag("woring") and c >= 5:
            for n, b in (WO_L1 if c == 5 else WO_L2): wo_one(n, b, True)
    a("s_barrier")
    a(f"v_subrev_u32 v16, {32*896}, {vr(vWOD)}")
    def wo_block(b):
        for n in range(7):
            if flag("woring") and (n, b) in WO_L1 + WO_L2: continue
            wo_one(n, b)
    if flag("wosplit"):
        a(f"s_cmp_eq_u32 {sr(sHP)}, 7")
        a("s_cbranch_scc1 L_ld_skipA")
        wo_block(0)
        a.label("L_ld_skipA")
        a("s_barrier")
        a(f"s_cmp_eq_u32 {sr(sHP)}, 7")
        a("s_cbranch_scc1 L_idle2")
        a("s_waitcnt vmcnt(0)")
        if not flag("wosplit2"): wo_block(1)
    else:
        if flag("wolate"): a("s_barrier")
        a(f"s_cmp_eq_u32 {sr(sHP)}, 7")
        a("s_cbranch_scc1 L_idle2")
        wo_block(0); wo_block(1)
    stamp("L wo issued")
    a("s_branch L_phase2")
    a.label("L_ldB")
    a.vm = []
    sU2K = sU6K
    a(f"s_lshl_b32 {sr(sU2K)}, {sr(sU)}, 11")
    issue_x(0, BX[0], "c0"); issue_w(0, BW[0], (1, 2), sU4K, "c0")
    if STAMPS: a("s_memrealtime s[96:97]")
    issue_x(1, BX[1], "c1"); issue_w(1, BW[1], (1, 2), sU4K, "c1")
    issue_x(2, BX[2], "c2")
    late_srds()
    first_stamps("M")
    vXR = [16, 17, 18, 19]; vQR = [251, 252]; vGR_ = 15
    for c in range(7):
        a.wait_vm(f"c{c}", " lgkmcnt(0)" if c == 0 else "")
        a("s_barrier")
        if c == 0: compute_tag()
        if 1 <= c <= 5: issue_w(c + 1, BW[(c + 1) % 2], (1, 2), sU4K, f"c{c+1}")
        if c + 3 < 7: issue_x(c + 3, BX[c + 3], f"c{c+3}")
        if c == 3:
            L = a.newlabel("L_gw")
            a(f"s_cmp_lg_u32 {sr(sU)}, 0")
            a(f"s_cbranch_scc1 {L}")
            a(f"v_lshlrev_b32 {vr(vH0)}, 4, {vr(vLANE)}")
            a(f"s_mov_b32 m0, {B_GW}")
            a("s_nop 0")
            a.vmem_unc(f"buffer_load_dwordx4 {vr(vH0)}, {sr(SG,4)}, 0 offen lds")
            a.label(L)
        if c == 4:
            late_setup(False); setup_B_consts()
            x_read_addr(*vXR)
            for t in range(2): w_read_addr(vQR[t], t, 1, BW[0])
            a(f"v_lshlrev_b32 {vr(vGR_)}, 4, {vr(vG)}")
            a(f"v_add_u32 {vr(vGR_)}, {B_GW}, {vr(vGR_)}")
        if c == 5: wo_prefetch(SWOA)
        if c == 6:
            for q in (0, 1): issue_w(q, BQS[q], (0,), sU2K, "g0")
    a("s_barrier")
    stamp("M barH")
    SETS = [24, 52]; AQ = 112; AG = 144; EPS4 = B_EPS4
    def qreads(k, S):
        c, ks = divmod(k, 2)
        xr = vXR[(2 if c >= 4 else 0) + ks]; xo = BX[c] - (65536 if c >= 4 else 0)
        wb = BQS[c] - BW[0] + ks*4096
        out = [f"ds_read_b128 {vr(S,4)}, {vr(xr)} offset:{xo}"]
        out += [f"ds_read_b64_tr_b16 {vr(S+20+2*h,2)}, {vr(vQR[0])} offset:{wb + h*512}" for h in range(2)]
        out += [f"ds_read_b128 {vr(S+tl*4,4)}, {vr(xr)} offset:{xo + tl*2048}" for tl in (1, 2, 3)]
        out += [f"ds_read_b64_tr_b16 {vr(S+24+2*h,2)}, {vr(vQR[1])} offset:{wb + h*512}" for h in range(2)]
        out.append(f"ds_read_b128 {vr(S+16,4)}, {vr(vGR_)} offset:{k*64}")
        return out
    def qm(k, S):
        ms = []
        for t in range(2):
            for tl in range(4):
                d = AQ + (tl*2+t)*4
                ms.append((lambda d=d, t=t, tl=tl: mfma(d, S+20+t*4, S+tl*4, EPS4 if k == 0 else d), R4(S+20+t*4) + R4(S+tl*4)))
        def side():
            L1 = a.newlabel("L_s"); L2 = a.newlabel("L_s")
            C0 = None if k == 0 else AG; C1 = None if k == 0 else AG+4
            a(f"s_cbranch_vccnz {L2}")
            a(f"s_cmp_eq_u32 {sr(sNI)}, 1")
            a(f"s_cbranch_scc1 {L1}")
            mfma(AG, S+16, S+0, C0); mfma(AG+4, S+16, S+4, C1)
            a(f"s_branch {L2}")
            a.label(L1)
            mfma(AG, S+16, S+8, C0); mfma(AG+4, S+16, S+12, C1)
            a.label(L2)
        ms.append((side, R4(S+16)))
        return ms
    a(f"s_cmp_lg_u32 {sr(sHP)}, 0")
    a("s_cselect_b64 vcc, -1, 0")
    groups = [(0, 1), (2, 3, 4), (5, 6)]
    for q in (2, 3): issue_w(q, BQS[q], (0,), sU2K, "g1")
    lds_spin([(B_vSY, 24)], 4, vT0)
    issue_w(4, BQS[4], (0,), sU2K, "g1")
    for g, chs in enumerate(groups):
        a.wait_vm(f"g{g}")
        lds_signal(B_vSY, 32 + 4*g)
        lds_spin([(B_vSY, 32 + 4*g)], 4, vT0)
        a.ds_all()
        ks_list = [2*c + ks for c in chs for ks in range(2)]
        for r in qreads(ks_list[0], SETS[0]): a.dsr(r)
        for i, k in enumerate(ks_list):
            nxt = qreads(ks_list[i+1], SETS[(i+1) & 1]) if i + 1 < len(ks_list) else []
            if not nxt and g == 0:
                a("s_waitcnt lgkmcnt(0)"); a.ds_all()
                lds_signal(B_vSY, 48)
            sched_step(qm(k, SETS[i & 1]), nxt, 2)
        if g == 0:
            lds_spin([(B_vSY, 48)], 4, vT0)
            for q in groups[2]: issue_w(q, BQS[q], (0,), sU2K, "g2")
    a.ds_all()
    stamp("M pass2 done")
    TM = 24
    a("s_nop 4")
    for t_ in phi_ops(AQ, 32, TM): a(t_)
    a(f"s_cbranch_vccnz L_M_nogate")
    for tl in range(2): a(f"v_mul_f32 {vr(AG+tl*4)}, {sr(sL2E)}, {vr(AG+tl*4)}")
    for tl in range(2): a(f"v_exp_f32 {vr(AG+tl*4)}, -{vr(AG+tl*4)}")
    a("s_nop 0")
    for tl in range(2): a(f"v_add_f32 {vr(AG+tl*4)}, 1.0, {vr(AG+tl*4)}")
    for tl in range(2): a(f"v_rcp_f32 {vr(AG+tl*4)}, {vr(AG+tl*4)}")
    a("s_mov_b64 exec, 0xffff")
    for tl in range(2):
        a.vmem_unc(f"buffer_store_dword {vr(AG+tl*4)}, {vr(vGT)}, {sr(SWS,4)}, {sr(sGST)} offen offset:{tl*64} sc1")
    a("s_mov_b64 exec, -1")
    a.label("L_M_nogate")
    PQ = 56
    for tl in range(4):
        d = PQ + tl*4
        pack4(d, AQ+tl*8, AQ+tl*8+4)
        a(f"v_cndmask_b32 {vr(d+2)}, 0, {vr(d+2)}, {sr(sMASK48,2)}")
        a(f"v_cndmask_b32 {vr(d+3)}, 0, {vr(d+3)}, {sr(sMASK48,2)}")
    a(f"v_subrev_u32 {vr(vT1)}, {B_KVS}, {vr(B_vSW)}")
    for tl in range(2): a(f"ds_write_b128 {vr(vT1)}, {vr(PQ+tl*4,4)} offset:{tl*1024}")
    a("s_waitcnt vmcnt(0) lgkmcnt(0)")
    lds_signal(B_vPQ)
    stamp("M pq done")
    lds_spin([(B_vSK, 0)], 2, vT0)
    a.vm = []
    o_B(PQ + 8, 24, 112, "M")

EA_Q = [24, 28]; EA_K = [32, 36]; EA_KP = 40; EA_V = [44, 54]
EA_Q23 = [64, 68]; EA_K23 = [72, 76]; EA_H = 80

def pf_stag(c):
    if not flag("stag") or c > 6: return
    a(f"s_mul_i32 s13, s12, {c}")
    a(f"buffer_load_dword {vr(vDUM)}, v18, {sr(SX,4)}, s13 offen")

def l2_prefetch():
    if flag("nopf"): return
    P = sPTR; SP = SX
    a(f"s_cmp_lt_u32 {sr(sJ)}, 20")
    a(f"s_cselect_b32 {sr(SP)}, {sr(P+2)}, {sr(P+8)}")
    a(f"s_cselect_b32 {sr(SP+1)}, {sr(P+3)}, {sr(P+9)}")
    a(f"s_cselect_b32 {sr(sT2)}, 8, 20")
    a(f"s_mov_b32 {sr(SP+2)}, 1204224")
    a(f"s_mov_b32 {sr(sT3)}, 172032")
    a(f"s_cmp_lt_u32 {sr(sJ)}, 8")
    a(f"s_cselect_b32 {sr(SP)}, {sr(P+0)}, {sr(SP)}")
    a(f"s_cselect_b32 {sr(SP+1)}, {sr(P+1)}, {sr(SP+1)}")
    a(f"s_cselect_b32 {sr(SP+2)}, 1835008, {sr(SP+2)}")
    a(f"s_mov_b32 {sr(SP+3)}, 0x00020000")
    a(f"s_cselect_b32 {sr(sT3)}, 128, {sr(sT3)}")
    a(f"s_cselect_b32 {sr(sT2)}, 0, {sr(sT2)}")
    a(f"s_cselect_b64 vcc, -1, 0")
    a(f"s_sub_u32 {sr(sT2)}, {sr(sJ)}, {sr(sT2)}")
    a(f"s_lshl_b32 {sr(sT2)}, {sr(sT2)}, 6")
    if flag("stag"):
        a(f"s_lshl_b32 {sr(sT1)}, {sr(sU)}, 4")
        a(f"s_add_u32 {sr(sT2)}, {sr(sT2)}, {sr(sT1)}")
        a(f"v_lshrrev_b32 {vr(vT2)}, 2, {vr(vLANE)}")
        a(f"v_add_u32 {vr(vT2)}, {sr(sT2)}, {vr(vT2)}")
    else:
        a(f"v_add_u32 {vr(vT2)}, {sr(sT2)}, {vr(vLANE)}")
    a(f"s_lshr_b32 {sr(sT1)}, {sr(sRB)}, 2")
    a(f"s_lshl_b32 {sr(sT1)}, {sr(sT1)}, 9")
    a(f"v_add_u32 {vr(vT3)}, {sr(sT1)}, {vr(vT2)}")
    a(f"v_mul_u32_u24 {vr(vT3)}, 896, {vr(vT3)}")
    a(f"v_mul_u32_u24 {vr(vT4)}, 43691, {vr(vT2)}")
    a(f"v_lshrrev_b32 {vr(vT4)}, 19, {vr(vT4)}")
    a(f"v_mul_u32_u24 {vr(vT0)}, 12, {vr(vT4)}")
    a(f"v_sub_u32 {vr(vT2)}, {vr(vT2)}, {vr(vT0)}")
    a(f"v_mul_u32_u24 {vr(vT4)}, 2688, {vr(vT4)}")
    a(f"v_lshrrev_b32 {vr(vT0)}, 2, {vr(vT2)}")
    a(f"v_mul_u32_u24 {vr(vT0)}, 896, {vr(vT0)}")
    a(f"v_add_u32 {vr(vT4)}, {vr(vT4)}, {vr(vT0)}")
    a(f"v_and_b32 {vr(vT2)}, 3, {vr(vT2)}")
    a(f"v_lshl_add_u32 {vr(vT4)}, {vr(vT2)}, 7, {vr(vT4)}")
    a(f"s_mul_i32 {sr(sT1)}, {sr(sHALF)}, 384")
    a(f"v_add_u32 {vr(vT4)}, {sr(sT1)}, {vr(vT4)}")
    a(f"v_cndmask_b32 {vr(vT4)}, {vr(vT4)}, {vr(vT3)}, vcc")
    if flag("stag"):
        a(f"v_mov_b32 v18, {vr(vT4)}")
        a(f"s_mov_b32 s12, {sr(sT3)}")
        for c in range(opt("pf0", 2), opt("pf0", 2) + opt("pfinit", 2)): pf_stag(c)
        return
    PF0 = opt("pf0", 1)
    a(f"s_add_u32 {sr(sT1)}, {sr(sU)}, {PF0}")
    a(f"s_mul_i32 {sr(sT1)}, {sr(sT1)}, {sr(sT3)}")
    a(f"buffer_load_dword {vr(vDUM)}, {vr(vT4)}, {sr(SP,4)}, {sr(sT1)} offen")
    L = a.newlabel("L_pf")
    a(f"s_cmp_ge_u32 {sr(sU)}, {3 - PF0}")
    a(f"s_cbranch_scc1 {L}")
    a(f"s_lshl_b32 {sr(sT3)}, {sr(sT3)}, 2")
    a(f"s_add_u32 {sr(sT1)}, {sr(sT1)}, {sr(sT3)}")
    a(f"buffer_load_dword {vr(vDUM)}, {vr(vT4)}, {sr(SP,4)}, {sr(sT1)} offen")
    a.label(L)

def wo_prefetch_early():
    if not flag("woearly"): return
    L = a.newlabel("L_wpe"); L1 = a.newlabel("L_wpe"); L2 = a.newlabel("L_wpe")
    a(f"s_cmp_lt_u32 {sr(sU)}, 2")
    a(f"s_cbranch_scc1 {L}")
    a(f"s_and_b32 {sr(sT0)}, {sr(sJ)}, 15")
    a(f"s_mul_i32 {sr(sT0)}, {sr(sT0)}, 28")
    a(f"s_and_b32 {sr(sT1)}, {sr(sU)}, 1")
    a(f"s_lshl_b32 {sr(sT1)}, {sr(sT1)}, 4")
    a(f"s_add_u32 {sr(sT0)}, {sr(sT0)}, {sr(sT1)}")
    a(f"s_mul_i32 {sr(sT0)}, {sr(sT0)}, 896")
    a(f"s_lshl_b32 {sr(sT1)}, {sr(sHALF)}, 9")
    a(f"s_add_u32 {sr(sT0)}, {sr(sT0)}, {sr(sT1)}")
    a(f"v_lshrrev_b32 {vr(vT0)}, 2, {vr(vLANE)}")
    a(f"v_mul_u32_u24 {vr(vT0)}, 896, {vr(vT0)}")
    a(f"v_and_b32 {vr(vT1)}, 3, {vr(vLANE)}")
    a(f"v_lshl_add_u32 {vr(vT0)}, {vr(vT1)}, 7, {vr(vT0)}")
    a(f"s_cmp_eq_u32 {sr(sTYPE)}, 1")
    a(f"s_cbranch_scc1 {L1}")
    a(f"buffer_load_dword {vr(vDUM)}, {vr(vT0)}, {sr(SWOA,4)}, {sr(sT0)} offen")
    a(f"s_branch {L}")
    a.label(L1)
    a(f"buffer_load_dword {vr(vDUM)}, {vr(vT0)}, {sr(SWOB,4)}, {sr(sT0)} offen")
    a.label(L)

def compute():
    a.label("L_compute")
    a(f"s_and_b32 {sr(sT2)}, {sr(sJ)}, 7")
    a(f"s_or_b32 {sr(sT2)}, {sr(sT2)}, {sr(sWAVE)}")
    a(f"s_cmp_lg_u32 {sr(sT2)}, 0")
    a("s_cbranch_scc1 L_nopf")
    a(f"v_lshlrev_b32 {vr(vT1)}, 7, {vr(vLANE)}")
    for i in range(4):
        if i:
            a(f"v_add_u32 {vr(vT1)}, 8192, {vr(vT1)}")
            a(f"v_min_u32 {vr(vT1)}, L_end-L_pc, {vr(vT1)}")
        a.vmem_unc(f"global_load_dword {vr(vDUM)}, {vr(vT1)}, {sr(sPC,2)}")
    a.label("L_nopf")
    a(f"s_cmp_eq_u32 {sr(sTYPE)}, 0")
    a("s_cbranch_scc1 L_cB")
    vXR0, vXR1, vHR0, vHR1 = 10, 11, 12, 13
    vWR = {(0,0):14, (1,0):15, (0,1):16, (1,1):17}
    SETS = [24, 68]
    ACC = 112; ACX = 208
    def acc(seg, t, tl): return ACC + ((seg*2+t)*4+tl)*4
    x_read_addr(vXR0, vXR1, None, None)
    a(f"v_add_u32 {vr(vHR0)}, {A_HALO}, {vr(vT5)}")
    a(f"v_xor_b32 {vr(vHR1)}, 64, {vr(vHR0)}")
    for t in range(2):
        w_read_addr(vWR[(t,0)], t, 3, L_W[0])
        a(f"v_add_u32 {vr(vWR[(t,1)])}, {L_W[2]-L_W[0]}, {vr(vWR[(t,0)])}")
    a("s_waitcnt lgkmcnt(0)")
    l2_prefetch()
    late_srds(); wo_prefetch_early(); late_setup(True); setup_A_consts()
    def reads(c, ks, S):
        sl = c % 3; out = []
        xr = vXR0 if ks == 0 else vXR1
        reg = 1 if sl == 2 else 0
        wb = (L_W[sl] - L_W[2*reg]) + ks*4*3072
        def wfrag(seg, t):
            for h in range(2):
                out.append(f"ds_read_b64_tr_b16 {vr(S+20+(seg*2+t)*4+2*h,2)}, {vr(vWR[(t,reg)])} offset:{wb + seg*1024 + h*512}")
        def xfrag(tl): out.append(f"ds_read_b128 {vr(S+tl*4,4)}, {vr(xr)} offset:{L_X[sl] + tl*2048}")
        xfrag(0); wfrag(0, 0); xfrag(1); xfrag(2); xfrag(3); wfrag(0, 1)
        for seg in (1, 2):
            for t in range(2): wfrag(seg, t)
        out.append(f"ds_read_b128 {vr(S+16,4)}, {vr(vHR0 if ks == 0 else vHR1)} offset:{c*2048}")
        return out
    def mlist(S, first):
        ms = []
        for seg in range(3):
            for t in range(2):
                for tl in range(4):
                    d = acc(seg, t, tl); W = S+20+(seg*2+t)*4; X = S+tl*4
                    A_, B_ = (W, X) if seg < 2 else (X, W)
                    ms.append((lambda d=d, A_=A_, B_=B_: mfma(d, A_, B_, None if first else d), R4(W) + R4(X)))
        def side():
            L1 = a.newlabel("L_s"); L2 = a.newlabel("L_s")
            C0 = None if first else ACX; C1 = None if first else ACX+4
            a(f"s_cbranch_scc1 {L1}")
            mfma(ACX, S+28, S+16, C0); mfma(ACX+4, S+32, S+16, C1)
            a(f"s_branch {L2}")
            a.label(L1)
            mfma(ACX, S+16, S+36, C0); mfma(ACX+4, S+16, S+40, C1)
            a.label(L2)
        ms.append((side, R4(S+16)))
        return ms
    a("s_waitcnt lgkmcnt(0)")
    compute_tag()
    stamp("A setup done")
    a(f"s_cmp_eq_u32 {sr(sMP)}, 1")
    for c in range(7):
        a.c(f"---- A chunk {c}")
        a("s_waitcnt lgkmcnt(0)")
        a.ds_all()
        a("s_barrier")
        pf_stag(c + opt("pf0", 2) + opt("pfinit", 2))
        r0 = reads(c, 0, SETS[0])
        if c == 0:
            for r in r0: a.dsr(r)
        else:
            sched_step(mlist(SETS[1], False), r0, 2)
        sched_step(mlist(SETS[0], c == 0), reads(c, 1, SETS[1]), 6)
    sched_step(mlist(SETS[1], False), [], 0)
    a.ds_all()
    stamp("A gemm done")
    KB = 24; QB = 44; VB = [60, 70]; HB_ = 80
    pack4(KB+16, acc(1,0,3), acc(1,1,3))
    a(f"ds_write_b128 {vr(A_vEX)}, {vr(KB+16,4)}")
    for et in range(2):
        cvtpk(VB[et]+8, acc(2,et,3), acc(2,et,3)+1); cvtpk(VB[et]+9, acc(2,et,3)+2, acc(2,et,3)+3)
        a(f"ds_write_b64 {vr(A_vEX)}, {vr(VB[et]+8,2)} offset:{1024 + et*8}")
    for tl in range(3): pack4(KB+4+tl*4, acc(1,0,tl), acc(1,1,tl))
    pack4(HB_, ACX, ACX+4)
    a(f"ds_write_b128 {vr(A_vHW)}, {vr(HB_,4)}")
    for tl in range(4):
        pack4(QB+tl*4, acc(0,0,tl), acc(0,1,tl))
        a(f"v_cndmask_b32 {vr(QB+tl*4+2)}, 0, {vr(QB+tl*4+2)}, {sr(sMASK48,2)}")
        a(f"v_cndmask_b32 {vr(QB+tl*4+3)}, 0, {vr(QB+tl*4+3)}, {sr(sMASK48,2)}")
    a("s_waitcnt lgkmcnt(0)")
    a("s_barrier")
    a(f"ds_read_b128 {vr(KB,4)}, {vr(A_vPK)}")
    a(f"ds_read_b64 {vr(VB[0],2)}, {vr(A_vPK)} offset:1024")
    a(f"ds_read_b64 {vr(VB[1],2)}, {vr(A_vPK)} offset:1032")
    for tl in range(3):
        for et in range(2):
            d = VB[et] + 2 + tl*2
            cvtpk(d, acc(2,et,tl), acc(2,et,tl)+1); cvtpk(d+1, acc(2,et,tl)+2, acc(2,et,tl)+3)
    BIAS = A_BIAS
    TT = [84, 112, 140, 168]
    def R(tl, k): return TT[tl] + k
    order = (3, 2, 1, 0)
    for tl in (3, 2, 1):
        mfma(R(tl,0), KB+tl*4, QB+tl*4); mfma(R(tl,4), KB+4+tl*4, QB+tl*4)
    mfma(R(0,4), KB+4, QB)
    a("s_waitcnt lgkmcnt(0)")
    mfma(R(0,0), KB, QB)
    for tl in order:
        for i, (s_, o) in enumerate(((0,0),(0,2),(4,0),(4,2))):
            a(f"v_cndmask_b32 {vr(R(tl,8+i))}, {vr(R(tl,s_+o))}, {vr(R(tl,s_+o+1))}, {sr(sODD,2)}")
        bp = BIAS if tl else BIAS + 4
        for i, b in enumerate((bp, bp+1, BIAS+2, BIAS+3)):
            a(f"v_fma_f32 {vr(R(tl,8+i))}, {vr(R(tl,8+i))}, {sr(sK0)}, {vr(b)}")
        a(f"v_max3_f32 {vr(R(tl,12))}, {vr(R(tl,8))}, {vr(R(tl,9))}, {vr(R(tl,10))}")
        a(f"v_max_f32 {vr(R(tl,12))}, {vr(R(tl,12))}, {vr(R(tl,11))}")
        a(f"v_mov_b32 {vr(R(tl,13))}, {vr(R(tl,12))}")
    for tl in order: a(f"v_permlane32_swap_b32 {vr(R(tl,12))}, {vr(R(tl,13))}")
    for tl in order: a(f"v_max_f32 {vr(R(tl,12))}, {vr(R(tl,12))}, {vr(R(tl,13))}")
    for tl in order: a(f"v_mov_b32 {vr(R(tl,13))}, {vr(R(tl,12))}")
    for tl in order: a(f"v_permlane16_swap_b32 {vr(R(tl,12))}, {vr(R(tl,13))}")
    for tl in order: a(f"v_max_f32 {vr(R(tl,12))}, {vr(R(tl,12))}, {vr(R(tl,13))}")
    for tl in order:
        for i in range(4): a(f"v_sub_f32 {vr(R(tl,8+i))}, {vr(R(tl,8+i))}, {vr(R(tl,12))}")
        for i in range(4): a(f"v_exp_f32 {vr(R(tl,8+i))}, {vr(R(tl,8+i))}")
    for tl in order:
        for i in range(4): a(f"v_cvt_pk_bf16_f32 {vr(R(tl,16+i))}, {vr(R(tl,8+i))}, 0")
        for i in range(4): a(f"v_lshlrev_b32 {vr(R(tl,16+i))}, {vr(A_SH)}, {vr(R(tl,16+i))}")
        if tl == 3: continue
        p = tl + 1
        mfma(R(p,20), A_ONES, R(p,16)); mfma(R(p,0), VB[0]+2*p, R(p,16)); mfma(R(p,4), VB[1]+2*p, R(p,16))
    a("s_nop 1")
    mfma(R(0,20), A_ONES, R(0,16)); mfma(R(0,0), VB[0], R(0,16)); mfma(R(0,4), VB[1], R(0,16))
    for tl in order:
        a(f"v_rcp_f32 {vr(R(tl,12))}, {vr(R(tl,20))}")
        if tl: a(f"s_add_u32 {sr(sT0)}, {sr(sOST)}, {tl*16384}")
        else: a("s_nop 0")
        for i in range(8): a(f"v_mul_f32 {vr(R(tl,i))}, {vr(R(tl,i))}, {vr(R(tl,12))}")
        for i in range(4): cvtpk(R(tl,24+i), R(tl,2*i), R(tl,2*i+1))
        a(f"v_cndmask_b32 {vr(R(tl,26))}, 0, {vr(R(tl,26))}, {sr(sMASK48,2)}")
        a(f"v_cndmask_b32 {vr(R(tl,27))}, 0, {vr(R(tl,27))}, {sr(sMASK48,2)}")
        a(f"buffer_store_dwordx4 {vr(R(tl,24),4)}, {vr(vL16)}, {sr(SWS,4)}, {sr(sT0 if tl else sOST)} offen sc1")
    if flag("wolate") or flag("wosplit"): a("s_barrier")
    stamp("A attn done")
    a(f"v_mov_b32 v24, {sr(sTAG)}")
    a(f"v_mov_b32 v25, {sr(sTAG+1)}")
    a(f"v_lshlrev_b32 v26, 9, {vr(vLANE)}")
    a("s_waitcnt vmcnt(0)")
    a("s_mov_b64 exec, 3")
    a(f"buffer_store_dwordx2 v[24:25], v26, {sr(SWS,4)}, {sr(sF2W)} offen sc1")
    a("s_mov_b64 exec, -1")
    stamp("A flag set")
    a(f"s_cmp_eq_u32 {sr(sHP)}, 7")
    a("s_cbranch_scc1 L_idle2")
    a("s_branch L_phase2")

    a.label("L_cB")
    a.vm = []
    vXR = [10, 11, 12, 13]; vWB = [14, 15]
    SB = [24, 56]; AB = 112
    def accB(seg, t, tl): return AB + ((seg*2+t)*4+tl)*4
    x_read_addr(*vXR)
    for t in range(2): w_read_addr(vWB[t], t, 2, BW[0])
    a("s_waitcnt lgkmcnt(0)")
    l2_prefetch()
    late_srds(); wo_prefetch_early(); late_setup(False); setup_B_consts()
    a(f"v_lshlrev_b32 {vr(vT0)}, 2, {vr(vI16)}")
    a(f"v_add_u32 {vr(vT0)}, {B_SY}, {vr(vT0)}")
    a(f"v_mov_b32 {vr(vT1)}, 0")
    a(f"ds_write_b32 {vr(vT0)}, {vr(vT1)}")
    a("s_waitcnt lgkmcnt(0)")
    compute_tag()
    stamp("B setup done")
    def breads(c, ks, S):
        xr = vXR[(2 if c >= 4 else 0) + ks]; xo = BX[c] - (65536 if c >= 4 else 0)
        wb = BW[c % 2] - BW[0] + ks*4*2048
        out = []
        def wfrag(seg, t):
            for h in range(2):
                out.append(f"ds_read_b64_tr_b16 {vr(S+16+(seg*2+t)*4+2*h,2)}, {vr(vWB[t])} offset:{wb + seg*1024 + h*512}")
        def xfrag(tl): out.append(f"ds_read_b128 {vr(S+tl*4,4)}, {vr(xr)} offset:{xo + tl*2048}")
        xfrag(0); wfrag(0, 0); xfrag(1); xfrag(2); xfrag(3); wfrag(0, 1); wfrag(1, 0); wfrag(1, 1)
        return out
    def bm(S, first):
        ms = []
        for seg in range(2):
            for t in range(2):
                for tl in range(4):
                    d = accB(seg, t, tl); W = S+16+(seg*2+t)*4; X = S+tl*4
                    c0 = B_EPS4 if seg == 0 else None
                    ms.append((lambda d=d, X=X, W=W, c0=c0: mfma(d, X, W, c0 if first else d), R4(W) + R4(X)))
        return ms
    T = 176
    for c in range(7):
        a.c(f"---- B chunk {c}")
        a("s_waitcnt lgkmcnt(0)")
        a.ds_all()
        a("s_barrier")
        pf_stag(c + opt("pf0", 2) + opt("pfinit", 2))
        r0 = breads(c, 0, SB[0])
        if c == 0:
            for r in r0: a.dsr(r)
        else:
            sched_step(bm(SB[1], False), r0, 2)
        if c < 6:
            sched_step(bm(SB[0], c == 0), breads(c, 1, SB[1]), 4)
    m0, m1 = bm(SB[0], False), bm(SB[1], False)
    sched_step(m0[:12], breads(6, 1, SB[1]), 4)
    for fn, regs in m1[:8]:
        a.need(regs); fn()
    rest = m0[12:] + m1[8:]
    ph = phi_ops(AB, 32, T)
    per = -(-len(ph) // (len(rest) - 3))
    for i, (fn, regs) in enumerate(rest):
        a.need(regs); fn()
        if i == 3: a("s_nop 3")
        if i >= 3:
            for _ in range(per):
                if ph: a(ph.pop(0))
    for t_ in ph: a(t_)
    a.ds_all()
    stamp("B gemm done")
    PK = 24; PV = 40; KV = 56
    for ks in range(2):
        for dt in range(2): pack4(PK+(ks*2+dt)*4, accB(0,dt,2*ks), accB(0,dt,2*ks+1))
    for ks in range(2):
        for et in range(2): pack4(PV+(ks*2+et)*4, accB(1,et,2*ks), accB(1,et,2*ks+1))
    a(f"v_mov_b32 {vr(T)}, 0x3f803f80")
    for ks in range(2):
        for i in range(4):
            r = PV+(ks*2+1)*4+i
            a(f"v_cndmask_b32 {vr(r)}, {vr(r)}, {vr(T)}, {sr(sONE,2)}")
    a(f"s_cmp_eq_u32 {sr(sMP)}, 0")
    a("s_nop 0")
    a("s_cbranch_scc1 L_B_s0")
    for dts, base in ((0, KV), (1, KV+8)):
        for ks in range(2):
            for et in range(2): mfma(base+et*4, PK+(ks*2+dts)*4, PV+(ks*2+et)*4, None if ks == 0 else base+et*4)
    a("s_branch L_B_s1")
    a.label("L_B_s0")
    for dts, base in ((1, KV), (0, KV+8)):
        for ks in range(2):
            for et in range(2): mfma(base+et*4, PK+(ks*2+dts)*4, PV+(ks*2+et)*4, None if ks == 0 else base+et*4)
    a.label("L_B_s1")
    a(f"s_lshl_b32 {sr(sT1)}, {sr(sRB)}, 10")
    a(f"s_add_u32 {sr(sT1)}, {sr(sT1)}, {sr(sKVO)}")
    a("s_nop 1")
    a(f"ds_write_b128 {vr(B_vSW)}, {vr(KV,4)}")
    a(f"ds_write_b128 {vr(B_vSW)}, {vr(KV+4,4)} offset:1024")
    a("s_waitcnt lgkmcnt(0)")
    a("s_barrier")
    a(f"ds_read_b128 {vr(KV+16,4)}, {vr(B_vSR)}")
    a(f"ds_read_b128 {vr(KV+20,4)}, {vr(B_vSR)} offset:1024")
    a("s_waitcnt lgkmcnt(0)")
    for i in range(0, 8, 2):
        a(f"v_pk_add_f32 {vr(KV+8+i,2)}, {vr(KV+8+i,2)}, {vr(KV+16+i,2)}")
    pack4(KV+24, KV+8, KV+12)
    a(f"buffer_store_dwordx4 {vr(KV+24,4)}, {vr(vL16)}, {sr(SWS,4)}, {sr(sT1)} offen sc1")
    lds_signal(B_vSY, 24)
    stamp("B partial stored")
    a("s_waitcnt vmcnt(0)")
    set_flag(sF1W, T)
    stamp("B flag1 set")
    poll_issue(sF1R, T+2)
    poll_finish(sF1R, T+2, T+4)
    stamp("B flag1 seen")
    PL = 112; T = 24
    for r in range(16):
        if r % 4 == 0 and r: a(f"s_add_u32 {sr(sT1)}, {sr(sKVO)}, {r*1024}")
        a.vmem(f"buffer_load_dwordx4 {vr(PL+r*4,4)}, {vr(vL16)}, {sr(SWS,4)}, {sr(sKVO if r < 4 else sT1)} offen offset:{(r%4)*1024} sc1", f"pl{r}")
    for r in range(16):
        a.wait_vm(f"pl{r}")
        mfma(T, B_SEL, PL+r*4, None if r == 0 else T)
        mfma(T+4, B_SEL+4, PL+r*4, None if r == 0 else T+4)
    a("s_nop 6")
    cvtpk(T+8, T, T+1); cvtpk(T+9, T+2, T+3)
    cvtpk(T+10, T+4, T+5); cvtpk(T+11, T+6, T+7)
    a(f"ds_write_b64 {vr(B_vKW)}, {vr(T+8,2)}")
    a(f"ds_write_b64 {vr(B_vKW)}, {vr(T+10,2)} offset:1024")
    a("s_waitcnt lgkmcnt(0)")
    lds_signal(B_vSK)
    a(f"v_subrev_u32 {vr(vT2)}, {B_KVS}, {vr(B_vSW)}")
    stamp("B kv done")
    lds_spin([(B_vSK, 0), (B_vPQ, 0)], 3, vT0)
    a(f"ds_read_b128 {vr(64,4)}, {vr(vT2)}")
    a(f"ds_read_b128 {vr(68,4)}, {vr(vT2)} offset:1024")
    a.vm = []
    o_B(64, 24, 112, "B")

def phase2():
    a.label("L_phase2")
    a.vm = []
    ACC = [4, 20]; OF = 36; WF = 100; T = 228
    a(f"v_mov_b32 {vr(T)}, 0")
    a(f"v_mov_b32 {vr(T+1)}, 0")
    a(f"v_lshlrev_b32 {vr(T+2)}, 3, {vr(vLANE)}")
    a(f"v_add_u32 {vr(T+2)}, {P2_ZERO}, {vr(T+2)}")
    a(f"ds_write_b64 {vr(T+2)}, {vr(T,2)}")
    def wreads(h, slot):
        out = []
        for t in range(4):
            base = vWO[t ^ (2 if h & 1 else 0)]
            for hf in range(2):
                out.append(f"ds_read_b64_tr_b16 {vr(WF+slot*16+t*4+hf*2,2)}, {vr(base)} offset:{h*3584 + hf*2048}")
        return out
    if flag("p2pipe"):
        vWB_ = [250, 251, 252, 253]
        for t in range(4): a(f"v_add_u32 {vr(vWB_[t])}, 57344, {vr(vWO[t])}")
        a("s_waitcnt vmcnt(0) lgkmcnt(0)")
        a("s_barrier")
        stamp("P2 wo landed")
        def wr2(step):
            br, h = divmod(step, 16); out = []
            for t in range(4):
                base = (vWO if br == 0 else vWB_)[t ^ (2 if h & 1 else 0)]
                for hf in range(2):
                    out.append(f"ds_read_b64_tr_b16 {vr(WF+(step%8)*16+t*4+hf*2,2)}, {vr(base)} offset:{h*3584 + hf*2048}")
            return out
        def oload(h, tag):
            if h % 4 == 0: a(f"s_add_u32 {sr(sT1)}, {sr(sOLD)}, {h*1024}")
            a.vmem(f"buffer_load_dwordx4 {vr(OF+h*4,4)}, {vr(vL16)}, {sr(SWS,4)}, {sr(sT1)} offen offset:{(h%4)*1024} sc1", f"{tag}{h}")
        poll_issue(sF2R, T+4)
        a.ds_all()
        for st in range(8):
            for r in wr2(st): a.dsr(r)
        poll_finish(sF2R, T+4, T+2)
        stamp("P2 flags seen A")
        for h in range(16): oload(h, "o")
        a(f"s_add_u32 {sr(sF2R)}, {sr(sF2R)}, 2048")
        a(f"s_add_u32 {sr(sOLD)}, {sr(sOLD)}, {8*16384}")
        CHK = opt("chk", 12)
        for st in range(32):
            br, h = divmod(st, 16)
            if st == CHK - 3: poll_issue(sF2R, T+4)
            if st == CHK:
                a.wait_vm_all()
                a(f"v_cmp_ne_u64 vcc, {sr(sTAG,2)}, {vr(T+4,2)}")
                a(f"s_mov_b32 {sr(sBR)}, 0")
                a("s_cbranch_vccnz L_p2_late")
                for hh in range(CHK): oload(hh, "p")
                a(f"s_mov_b32 {sr(sBR)}, 1")
                a.label("L_p2_late")
                a.vm = []
            if st == 16:
                stamp("P2 A half done")
                a(f"s_cmp_eq_u32 {sr(sBR)}, 1")
                a("s_cbranch_scc1 L_p2_haveB")
                poll_issue(sF2R, T+4)
                poll_finish(sF2R, T+4, T+2)
                a.vm = []
                for hh in range(CHK): oload(hh, "p")
                a.label("L_p2_haveB")
                if CHK % 4: a(f"s_add_u32 {sr(sT1)}, {sr(sOLD)}, {(CHK//4)*4096}")
                for hh in range(CHK, 16): oload(hh, "p")
                a.vmem(f"buffer_load_dword {vr(T+6)}, {vr(vGT)}, {sr(SWS,4)}, {sr(sGT)} offen sc1", "g")
                stamp("P2 flags seen B")
            if st < CHK: a.wait_vm(f"o{h}")
            if br == 1: a.wait_vm(f"p{h}")
            rd = wr2(st + 8) if st + 8 < 32 else []
            for t in range(4):
                W = WF + (st % 8)*16 + t*4
                a.need(R4(W))
                mfma(ACC[br]+t*4, W, OF+h*4, None if h == 0 else ACC[br]+t*4)
                for _ in range(2):
                    if rd: a.dsr(rd.pop(0))
        a.ds_all()
    else:
        for br in range(2):
            if br == 0:
                a("s_waitcnt lgkmcnt(0)" if flag("wosplit") else "s_waitcnt vmcnt(0) lgkmcnt(0)")
                a("s_barrier")
                stamp("P2 wo landed")
            else:
                if flag("wosplit2"): a.wait_vm_all()
                if flag("wosplit"): a("s_barrier")
                for t in range(4): a(f"v_add_u32 {vr(vWO[t])}, 57344, {vr(vWO[t])}")
                a(f"s_add_u32 {sr(sF2R)}, {sr(sF2R)}, 2048")
                a(f"s_add_u32 {sr(sOLD)}, {sr(sOLD)}, {8*16384}")
            poll_issue(sF2R, T+4)
            for h in range(8):
                for r in wreads(h, h): a(r)
            poll_finish(sF2R, T+4, T+2)
            stamp(f"P2 flags seen {'AB'[br]}")
            for h in range(16):
                if h % 4 == 0 and h: a(f"s_add_u32 {sr(sT1)}, {sr(sOLD)}, {h*1024}")
                a.vmem(f"buffer_load_dwordx4 {vr(OF+h*4,4)}, {vr(vL16)}, {sr(SWS,4)}, {sr(sOLD if h < 4 else sT1)} offen offset:{(h%4)*1024} sc1", f"o{h}")
            if br == 1:
                a.vmem(f"buffer_load_dword {vr(T+6)}, {vr(vGT)}, {sr(SWS,4)}, {sr(sGT)} offen sc1", "g")
            elif flag("wosplit2"):
                for n in range(7):
                    a(f"s_add_u32 m0, {sr(sW1K)}, {P2_WO + 57344 + n*8192}")
                    a(f"s_mov_b32 {sr(sT2)}, {n*57344}")
                    a.vmem(f"buffer_load_dwordx4 {vr(vWOD)}, {sr(SWOB,4)}, {sr(sT2)} offen lds", "wob")
            a("s_waitcnt lgkmcnt(0)")
            for h in range(16):
                a.wait_vm(f"o{h}")
                rd = wreads(h + 8, h) if h < 8 else []
                if h == 8: a("s_waitcnt lgkmcnt(15)")
                if h >= 14: a(f"s_waitcnt lgkmcnt({(15-h)*8})")
                for t in range(4):
                    mfma(ACC[br]+t*4, WF+(h%8)*16+t*4, OF+h*4, None if h == 0 else ACC[br]+t*4)
                    for _ in range(2):
                        if rd: a(rd.pop(0))
            if br == 0: stamp("P2 A half done")
    a.wait_vm("g")
    a("s_nop 3")
    for t in range(4):
        A_, B_ = ACC[0]+t*4, ACC[1]+t*4
        for i in range(4): a(f"v_sub_f32 {vr(A_+i)}, {vr(A_+i)}, {vr(B_+i)}")
        for i in range(4): a(f"v_fma_f32 {vr(A_+i)}, {vr(A_+i)}, {vr(T+6)}, {vr(B_+i)}")
        cvtpk(OF+2*t, A_, A_+1); cvtpk(OF+2*t+1, A_+2, A_+3)
        a(f"ds_write_b64 {vr(vCW)}, {vr(OF+2*t,2)} offset:{t*32}")
    a("s_waitcnt lgkmcnt(0)")
    a(f"ds_read_b128 {vr(OF+8,4)}, {vr(vCR)}")
    a(f"ds_read_b128 {vr(OF+12,4)}, {vr(vCR)} offset:{8*144}")
    a(f"s_mov_b32 {sr(sT0)}, {8*896}")
    a("s_waitcnt lgkmcnt(1)")
    OM = " sc1" if flag("outsc1") else (" nt" if flag("outnt") else "")
    a(f"buffer_store_dwordx4 {vr(OF+8,4)}, {vr(vOUT)}, {sr(SOUT,4)}, 0 offen{OM}")
    a("s_waitcnt lgkmcnt(0)")
    a(f"buffer_store_dwordx4 {vr(OF+12,4)}, {vr(vOUT)}, {sr(SOUT,4)}, {sr(sT0)} offen{OM}")
    stamp("P2 done")
    a("s_endpgm")
    a.label("L_idle2")
    a(f"s_cmp_lg_u32 {sr(sRB)}, 15")
    a("s_cbranch_scc1 L_end")
    a(f"v_lshlrev_b32 v10, 5, v0")
    a(f"s_mov_b32 {sr(sCNT)}, 0")
    a.label("L_jan")
    for k in range(4):
        a(f"s_mov_b32 {sr(sT0)}, {WS_F2 + k*16384}")
        a(f"buffer_load_dwordx2 {vr(12+2*k,2)}, v10, {sr(SWS,4)}, {sr(sT0)} offen sc1")
    a(f"s_add_u32 {sr(sCNT)}, {sr(sCNT)}, 1")
    a("s_waitcnt vmcnt(0)")
    a(f"v_cmp_ne_u64 {sr(sT0,2)}, {sr(sTAG,2)}, v[12:13]")
    a(f"v_cmp_ne_u64 {sr(sT2,2)}, {sr(sTAG,2)}, v[14:15]")
    a(f"s_or_b64 {sr(sT0,2)}, {sr(sT0,2)}, {sr(sT2,2)}")
    a(f"v_cmp_ne_u64 {sr(sT2,2)}, {sr(sTAG,2)}, v[16:17]")
    a(f"s_or_b64 {sr(sT0,2)}, {sr(sT0,2)}, {sr(sT2,2)}")
    a(f"v_cmp_ne_u64 {sr(sT2,2)}, {sr(sTAG,2)}, v[18:19]")
    a(f"s_or_b64 {sr(sT0,2)}, {sr(sT0,2)}, {sr(sT2,2)}")
    a("s_cbranch_scc0 L_jand")
    a(f"s_cmp_gt_u32 {sr(sCNT)}, 0x40000")
    a("s_cbranch_scc1 L_jand")
    a("s_sleep 4")
    a("s_branch L_jan")
    a.label("L_jand")
    a("s_barrier")
    a(f"s_cmp_lg_u32 {sr(sWAVE)}, 0")
    a("s_cbranch_scc1 L_end")
    a(f"s_mov_b32 {sr(sT0)}, {WS_EPOCH}")
    set_flag(sT0, 10)
    a.label("L_end")
    a("s_endpgm")

prologue()
loader()
a.vm = []
compute()
phase2()

hdr = f"""; fused gated-mix kernel: generated by gen/gen6.py
; @launch grid=(256,1,1) block=(512,1,1) lds={LDS_BYTES}
.amdgcn_target "amdgcn-amd-amdhsa--gfx950"
.text
.globl {NAME}_kernel
.p2align 8
.type {NAME}_kernel,@function
"""
ftr = f"""
.section .rodata,"a"
.p2align 6
.amdhsa_kernel {NAME}_kernel
  .amdhsa_next_free_vgpr 256
  .amdhsa_next_free_sgpr 102
  .amdhsa_accum_offset 256
  .amdhsa_group_segment_fixed_size 0
  .amdhsa_kernarg_size 80
  .amdhsa_user_sgpr_count 2
  .amdhsa_user_sgpr_kernarg_segment_ptr 1
  .amdhsa_system_sgpr_workgroup_id_x 1
.end_amdhsa_kernel
"""
out = [x for x in sys.argv[1:] if not x.startswith("--")]
path = out[0] if out else f"cdna_kernels/{NAME}.s"
open(path, "w").write(hdr + "\n".join(a.lines) + ftr)
print("wrote", path, len(a.lines), "lines")
```

```python
import sys, struct, re

NAME = "gated_mix__sliding_local_dilated__linear_attn_block__prompt"
def flag(n): return ("--" + n) in sys.argv
def opt(n, d):
    for x in sys.argv:
        if x.startswith(f"--{n}="): return int(x.split("=")[1])
    return d
STAMPS, DBGST, FINE = flag("stamps"), flag("dbgstamps"), flag("fine")
ROT = flag("rot")

WS_EPOCH = 0
WS_F1 = 0x1000
WS_F2 = 0x10000
WS_KV = 0x40000
WS_GATE = 0x180000
WS_O = 0x200000
WS_STAMP = 0x600000
WS_SIZE = 0x800000

L_X = [0, 16384, 32768]
L_W = [49152, 73728, 98304]
R0 = 122880
A_HALO = R0
A_HB = R0 + 14336
A_EX = A_HB + 4096
BX = [c*16384 for c in range(7)]
BW = [114688, 131072]
BQS = [131072, 139264, 114688, 122880, 149504, 131072, 139264]
B_GW = 147456
B_KVS = B_GW + 2048
B_KVF = B_KVS + 8192
B_SY = B_KVF + 4096
assert B_SY + 64 <= 163840
P2_WO = 0
P2_ZERO = 114688
P2_G = 115200
P2_CB = 115456
P2_CBSZ = 64 * 272
LDS_BYTES = 163840

LOG2E = 1.4426950408889634
def f2u(x): return struct.unpack("<I", struct.pack("<f", x))[0]

class Asm:
    def __init__(self):
        self.lines = []; self.vm = []; self.lbl = 0; self.ds = []
    def __call__(self, s): self.lines.append("    " + s)
    def c(self, s): self.lines.append("    ; " + s)
    def label(self, name): self.lines.append(name + ":")
    def newlabel(self, p="L"):
        self.lbl += 1; return f"{p}_{self.lbl}"
    def vmem(self, s, tag): self(s); self.vm.append(tag)
    def vmem_unc(self, s): self(s)
    def wait_vm(self, tag, extra=""):
        idx = max(i for i, t in enumerate(self.vm) if t == tag)
        n = len(self.vm) - 1 - idx
        assert n <= 63
        self(f"s_waitcnt vmcnt({n}){extra}")
        self.vm = self.vm[idx + 1:]
    def wait_vm_all(self, extra=""):
        self(f"s_waitcnt vmcnt(0){extra}"); self.vm = []
    def dsr(self, text):
        m = re.search(r"v\[(\d+):(\d+)\]", text)
        self(text); self.ds.append(set(range(int(m.group(1)), int(m.group(2)) + 1)))
    def need(self, regs):
        regs = set(regs)
        idx = max((i for i, r in enumerate(self.ds) if r & regs), default=-1)
        if idx < 0: return
        n = len(self.ds) - 1 - idx
        self(f"s_waitcnt lgkmcnt({min(n, 15)})")
        self.ds = self.ds[idx + 1:] if n <= 15 else self.ds[-15:]
    def ds_all(self): self.ds = []

def vr(b, n=1): return f"v{b}" if n == 1 else f"v[{b}:{b+n-1}]"
def sr(b, n=1): return f"s{b}" if n == 1 else f"s[{b}:{b+n-1}]"
a = Asm()

sROT = 3
sU, sMP, sROLE, sEXB = 4, 5, 6, 7
SX, SW, SWS, SWOA, SWOB, SOUT, SG = 8, 12, 16, 20, 24, 28, 32
sWAVE, sMI, sNI, sRB, sHP, sTYPE = 36, 37, 38, 39, 40, 41
sTAG = 42
sT0, sT1, sT2, sT3 = 44, 45, 46, 47
sW1K, sU4K, sU6K = 48, 49, 50
sSOX, sSOW, sSOX2 = 51, 52, 53
sMASK48, sODD, sONE, sEXEC = 54, 56, 58, 60
sCB, sHALF, sCNT, sJ = 62, 63, 64, 65
sPC = 66
sL2E, sEPS = 68, 70
sST = 72
sPTR = 76
sOST, sF2W, sF2R, sOLD = 76, 77, 78, 79
sGT, sKVO, sF1W, sF1R, sK0, sBR, sGST = 80, 81, 82, 83, 84, 85, 86

vLANE, vI16, vG = 1, 2, 3
vT0, vT1, vT2, vT3, vT4, vT5 = 4, 5, 6, 7, 8, 9
vDUM = 23
vL16, vPOLL, vWOD = 236, 237, 238
vWO = [240, 241, 242, 243]
vGT, vCW, vCR, vGR, vGW, vOUT = 244, 245, 246, 247, 248, 249

stamp_idx = [0]
def stamp(name, src=None):
    if DBGST:
        i = stamp_idx[0]; stamp_idx[0] += 1
        if i > 15: return
        L = a.newlabel("L_st")
        a.c(f"stamp {i}: {name}")
        a(f"s_and_b32 s74, s2, 127")
        a(f"s_and_b32 s75, {sr(sWAVE)}, 3")
        a(f"s_or_b32 s74, s74, s75")
        if name.startswith("P2"): a(f"s_or_b32 s74, s74, s2"); a(f"s_or_b32 s74, s74, {sr(sWAVE)}")
        a(f"s_cmp_lg_u32 s74, 0")
        a(f"s_cbranch_scc1 {L}")
        a(f"s_memrealtime {sr(sST,2)}")
        a("s_waitcnt lgkmcnt(0)")
        a(f"s_sub_u32 {sr(sST)}, {sr(sST)}, s98")
        a(f"v_mov_b32 v22, {sr(sST)}")
        a(f"v_mov_b32 v21, {i*4}")
        a(f"s_mov_b64 {sr(sST,2)}, exec")
        a("s_mov_b64 exec, 1")
        a.vmem_unc(f"global_store_dword v21, v22, s[96:97]")
        a(f"s_mov_b64 exec, {sr(sST,2)}")
        a.label(L)
        return
    if not STAMPS: return
    i = stamp_idx[0]; stamp_idx[0] += 1
    a.c(f"stamp {i}: {name}")
    if src is None:
        a(f"{'s_memtime' if flag('cyc') else 's_memrealtime'} {sr(sST,2)}")
        a("s_waitcnt lgkmcnt(0)")
    else:
        a(f"s_mov_b32 {sr(sST)}, s{src}")
    a(f"v_mov_b32 v22, {sr(sST)}")
    a(f"s_lshl_b32 s74, s2, 3")
    a(f"s_or_b32 s74, s74, {sr(sWAVE)}")
    a(f"s_lshl_b32 s74, s74, 8")
    a(f"s_or_b32 s74, s74, {WS_STAMP + i*4}")
    a(f"s_mov_b64 {sr(sST,2)}, exec")
    a("s_mov_b64 exec, 1")
    a.vmem_unc(f"buffer_store_dword v22, off, {sr(SWS,4)}, s74")
    a(f"s_mov_b64 exec, {sr(sST,2)}")

def mfma(d, A, B, C=None):
    c = vr(C, 4) if C is not None else "0"
    a(f"v_mfma_f32_16x16x32_bf16 {vr(d,4)}, {vr(A,4)}, {vr(B,4)}, {c}")
def cvtpk(d, x, y): a(f"v_cvt_pk_bf16_f32 {vr(d)}, {vr(x)}, {vr(y)}")
def srd(d, p, n):
    a(f"s_mov_b32 {sr(d)}, {sr(p)}"); a(f"s_mov_b32 {sr(d+1)}, {sr(p+1)}")
    a(f"s_mov_b32 {sr(d+2)}, {n}"); a(f"s_mov_b32 {sr(d+3)}, 0x00020000")

def true_chunk(dst, c):
    if not ROT:
        a(f"s_mov_b32 {sr(dst)}, {c}"); return
    a(f"s_add_u32 {sr(dst)}, {sr(sROT)}, {c}")
    a(f"s_cmp_ge_u32 {sr(dst)}, 7")
    a(f"s_cselect_b32 s75, 7, 0")
    a(f"s_sub_u32 {sr(dst)}, {sr(dst)}, s75")

def prologue():
    a.label(f"{NAME}_kernel")
    if DBGST or STAMPS: a("s_memrealtime s[98:99]")
    a("s_cmp_ge_u32 s2, 256")
    a("s_cbranch_scc1 L_end")
    a(f"s_load_dwordx16 {sr(sPTR,16)}, s[0:1], 0")
    a(f"s_load_dwordx4 {sr(sPTR+16,4)}, s[0:1], 64")
    a(f"s_getpc_b64 {sr(sPC,2)}")
    a.label("L_pc")
    if flag("cpfearly"):
        a("s_cmp_ge_u32 s2, 32")
        a("s_cbranch_scc1 L_nopf")
        a(f"v_lshlrev_b32 {vr(vT1)}, 6, v0")
        a(f"v_min_u32 {vr(vT1)}, L_end-L_pc, {vr(vT1)}")
        a.vmem_unc(f"global_load_dword {vr(vDUM)}, {vr(vT1)}, {sr(sPC,2)}")
        a.label("L_nopf")
    a(f"v_lshrrev_b32 {vr(vT0)}, 6, v0")
    a(f"v_and_b32 {vr(vLANE)}, 63, v0")
    a(f"v_readfirstlane_b32 {sr(sWAVE)}, {vr(vT0)}")
    a(f"v_and_b32 {vr(vI16)}, 15, v0")
    a(f"v_bfe_u32 {vr(vG)}, v0, 4, 2")
    a(f"s_and_b32 {sr(sT0)}, s2, 7")
    a(f"s_lshr_b32 {sr(sJ)}, s2, 3")
    a(f"s_lshr_b32 {sr(sT2)}, {sr(sT0)}, 1")
    a(f"s_lshl_b32 {sr(sT2)}, {sr(sT2)}, 2")
    a(f"s_and_b32 {sr(sT1)}, {sr(sJ)}, 3")
    a(f"s_add_u32 {sr(sRB)}, {sr(sT2)}, {sr(sT1)}")
    a(f"s_and_b32 {sr(sHALF)}, {sr(sT0)}, 1")
    a(f"s_lshl_b32 {sr(sT2)}, {sr(sHALF)}, 2")
    a(f"s_lshr_b32 {sr(sCB)}, {sr(sJ)}, 2")
    a(f"s_and_b32 {sr(sT3)}, {sr(sCB)}, 3")
    a(f"s_add_u32 {sr(sHP)}, {sr(sT2)}, {sr(sT3)}")
    a(f"s_lshr_b32 {sr(sTYPE)}, {sr(sJ)}, 4")
    if ROT:
        a(f"s_lshl_b32 {sr(sT1)}, {sr(sT1)}, 1")
        a(f"s_add_u32 {sr(sROT)}, {sr(sT1)}, {sr(sCB)}")
        a(f"s_cmp_ge_u32 {sr(sROT)}, 7")
        a(f"s_cselect_b32 {sr(sT0)}, 7, 0")
        a(f"s_sub_u32 {sr(sROT)}, {sr(sROT)}, {sr(sT0)}")
    else:
        a(f"s_mov_b32 {sr(sROT)}, 0")
    a(f"s_and_b32 {sr(sU)}, {sr(sWAVE)}, 3")
    a(f"s_lshr_b32 {sr(sROLE)}, {sr(sWAVE)}, 2")
    a(f"s_lshr_b32 {sr(sMP)}, {sr(sU)}, 1")
    a(f"s_and_b32 {sr(sNI)}, {sr(sWAVE)}, 1")
    a(f"s_lshl_b32 {sr(sMI)}, {sr(sMP)}, 1")
    a(f"s_add_u32 {sr(sMI)}, {sr(sMI)}, {sr(sROLE)}")
    a(f"s_lshl_b32 {sr(sW1K)}, {sr(sWAVE)}, 10")
    a(f"s_cmp_eq_u32 {sr(sROLE)}, 0")
    a("s_cbranch_scc1 L_compute")

def late_srds():
    P = sPTR
    srd(SWS, P+18, WS_SIZE)
    a(f"s_load_dwordx2 {sr(sTAG,2)}, {sr(P+18,2)}, {WS_EPOCH}")
    srd(SWOA, P+4, 401408); srd(SWOB, P+10, 401408); srd(SOUT, P+14, 1835008); srd(SG, P+12, 896)
    if DBGST:
        a(f"s_mov_b32 s96, {sr(P+16)}"); a(f"s_mov_b32 s97, {sr(P+17)}")

def compute_tag():
    a(f"s_add_u32 {sr(sTAG)}, {sr(sTAG)}, 0x7f4a7c15")
    a(f"s_addc_u32 {sr(sTAG+1)}, {sr(sTAG+1)}, 0x9e3779b9")

def late_setup(p2):
    T0, T1, T2 = vT0, vT1, vT2
    a(f"s_mov_b32 {sr(sMASK48)}, -1")
    a(f"s_mov_b32 {sr(sMASK48+1)}, 0xffff")
    a(f"v_lshlrev_b32 {vr(vL16)}, 4, {vr(vLANE)}")
    a(f"v_lshlrev_b32 {vr(vPOLL)}, 5, {vr(vI16)}")
    a(f"v_lshlrev_b32 {vr(vGT)}, 2, {vr(vI16)}")
    a(f"s_lshl_b32 {sr(sT0)}, {sr(sRB)}, 1")
    a(f"s_add_u32 {sr(sT0)}, {sr(sT0)}, 1")
    a(f"s_sub_u32 {sr(sT0)}, {sr(sT0)}, {sr(sTYPE)}")
    a(f"s_lshl_b32 {sr(sT0)}, {sr(sT0)}, 2")
    a(f"s_add_u32 {sr(sT0)}, {sr(sT0)}, {sr(sMI)}")
    a(f"s_lshl_b32 {sr(sT1)}, {sr(sHP)}, 1")
    a(f"s_add_u32 {sr(sT1)}, {sr(sT1)}, {sr(sNI)}")
    a(f"s_lshl_b32 {sr(sT2)}, {sr(sT0)}, 5")
    a(f"s_add_u32 {sr(sT2)}, {sr(sT2)}, {sr(sT1)}")
    a(f"s_lshl_b32 {sr(sT2)}, {sr(sT2)}, 10")
    a(f"s_add_u32 {sr(sOST)}, {sr(sT2)}, {WS_O}")
    a(f"s_lshl_b32 {sr(sT2)}, {sr(sT0)}, 4")
    a(f"s_add_u32 {sr(sT2)}, {sr(sT2)}, {sr(sT1)}")
    a(f"s_lshl_b32 {sr(sT2)}, {sr(sT2)}, 5")
    a(f"s_add_u32 {sr(sF2W)}, {sr(sT2)}, {WS_F2}")
    if not p2: return
    a(f"s_lshl_b32 {sr(sT0)}, {sr(sRB)}, 4")
    a(f"s_add_u32 {sr(sT0)}, {sr(sT0)}, {sr(sWAVE)}")
    a(f"s_lshl_b32 {sr(sT1)}, {sr(sT0)}, 14")
    a(f"s_add_u32 {sr(sOLD)}, {sr(sT1)}, {WS_O}")
    a(f"s_lshl_b32 {sr(sT0)}, {sr(sRB)}, 3")
    a(f"s_lshr_b32 {sr(sT1)}, {sr(sWAVE)}, 1")
    a(f"s_add_u32 {sr(sT1)}, {sr(sT1)}, {sr(sT0)}")
    a(f"s_lshl_b32 {sr(sT1)}, {sr(sT1)}, 9")
    a(f"s_add_u32 {sr(sF2R)}, {sr(sT1)}, {WS_F2}")
    a(f"s_add_u32 {sr(sT0)}, {sr(sT0)}, {sr(sWAVE)}")
    a(f"s_lshl_b32 {sr(sT0)}, {sr(sT0)}, 6")
    a(f"s_add_u32 {sr(sGT)}, {sr(sT0)}, {WS_GATE}")
    a(f"v_lshrrev_b32 {vr(T0)}, 3, {vr(vLANE)}")
    a(f"v_and_b32 {vr(T1)}, 7, {vr(vLANE)}")
    a(f"v_lshlrev_b32 {vr(T2)}, 1, {vr(vG)}")
    a(f"v_xor_b32 {vr(T2)}, {vr(T1)}, {vr(T2)}")
    a(f"v_mul_u32_u24 {vr(vOUT)}, 896, {vr(T0)}")
    a(f"s_mul_i32 {sr(sT0)}, {sr(sWAVE)}, {8*896}")
    a(f"s_lshl_b32 {sr(sT1)}, {sr(sHP)}, 7")
    a(f"s_add_u32 {sr(sT0)}, {sr(sT0)}, {sr(sT1)}")
    a(f"v_add_u32 {vr(vWOD)}, {sr(sT0)}, {vr(vOUT)}")
    a(f"v_lshl_add_u32 {vr(vWOD)}, {vr(T2)}, 4, {vr(vWOD)}")
    a(f"v_lshl_add_u32 {vr(vOUT)}, {vr(T1)}, 4, {vr(vOUT)}")
    a(f"s_lshl_b32 {sr(sT0)}, {sr(sRB)}, 3")
    a(f"s_add_u32 {sr(sT0)}, {sr(sT0)}, {sr(sWAVE)}")
    a(f"s_mul_i32 {sr(sT0)}, {sr(sT0)}, {16*896}")
    a(f"s_add_u32 {sr(sT0)}, {sr(sT0)}, {sr(sT1)}")
    a(f"v_add_u32 {vr(vOUT)}, {sr(sT0)}, {vr(vOUT)}")
    a(f"s_mul_i32 {sr(sT0)}, {sr(sWAVE)}, {16*144}")
    a(f"s_add_u32 {sr(sT0)}, {sr(sT0)}, {P2_CB}")
    a(f"v_mul_u32_u24 {vr(vCR)}, 144, {vr(T0)}")
    a(f"v_lshl_add_u32 {vr(vCR)}, {vr(T1)}, 4, {vr(vCR)}")
    a(f"v_add_u32 {vr(vCR)}, {sr(sT0)}, {vr(vCR)}")
    a(f"v_mul_u32_u24 {vr(vCW)}, 144, {vr(vI16)}")
    a(f"v_lshl_add_u32 {vr(vCW)}, {vr(vG)}, 3, {vr(vCW)}")
    a(f"v_add_u32 {vr(vCW)}, {sr(sT0)}, {vr(vCW)}")
    a(f"v_lshrrev_b32 {vr(T0)}, 2, {vr(vI16)}")
    a(f"v_lshl_add_u32 {vr(T1)}, {vr(vG)}, 2, {vr(T0)}")
    a(f"v_lshlrev_b32 {vr(T1)}, 7, {vr(T1)}")
    a(f"v_and_b32 {vr(T2)}, 3, {vr(vI16)}")
    a(f"v_lshl_add_u32 {vr(T1)}, {vr(T2)}, 3, {vr(T1)}")
    a(f"v_lshrrev_b32 {vr(T0)}, 1, {vr(T0)}")
    a(f"v_and_b32 {vr(T2)}, 1, {vr(vG)}")
    a(f"v_lshl_or_b32 {vr(T0)}, {vr(T2)}, 1, {vr(T0)}")
    a(f"v_lshl_add_u32 {vr(vWO[0])}, {vr(T0)}, 5, {vr(T1)}")
    for t in range(1, 4):
        a(f"v_xor_b32 {vr(vWO[t])}, {t*32}, {vr(vWO[0])}")

A_ONES, A_BIAS, A_SH, A_vEX, A_vPK, A_vPV, A_vHW = 216, 220, 226, 227, 228, 229, 230
def setup_A_consts():
    T0, T1, T2, T3, T4 = vT0, vT1, vT2, vT3, vT4
    BIAS = A_BIAS
    a(f"s_mov_b32 {sr(sODD)}, 0xaaaaaaaa"); a(f"s_mov_b32 {sr(sODD+1)}, 0xaaaaaaaa")
    a(f"s_mov_b32 {sr(sK0)}, {f2u(28**-0.5 * LOG2E)}")
    for i in range(4): a(f"v_mov_b32 {vr(A_ONES+i)}, 0x3f803f80")
    a(f"v_and_b32 {vr(T0)}, 1, {vr(vI16)}")
    a(f"v_lshlrev_b32 {vr(A_SH)}, 4, {vr(T0)}")
    a(f"v_lshl_add_u32 {vr(T1)}, {vr(vG)}, 2, {vr(T0)}")
    a(f"v_mov_b32 {vr(T2)}, 0xf149f2ca")
    a(f"v_cmp_le_u32 vcc, {vr(T1)}, {vr(vI16)}")
    a(f"v_add_u32 {vr(T3)}, 2, {vr(T1)}")
    a("s_nop 0")
    a(f"v_cndmask_b32 {vr(BIAS+2)}, {vr(T2)}, 0, vcc")
    a(f"v_cmp_le_u32 vcc, {vr(T3)}, {vr(vI16)}")
    a(f"v_add_u32 {vr(T4)}, 2, {vr(vI16)}")
    a("s_nop 0")
    a(f"v_cndmask_b32 {vr(BIAS+3)}, {vr(T2)}, 0, vcc")
    a(f"v_cmp_ge_u32 vcc, {vr(T1)}, {vr(T4)}")
    a("s_nop 1")
    a(f"v_cndmask_b32 {vr(BIAS+0)}, {vr(T2)}, 0, vcc")
    a(f"v_cmp_ge_u32 vcc, {vr(T3)}, {vr(T4)}")
    a("s_nop 1")
    a(f"v_cndmask_b32 {vr(BIAS+1)}, {vr(T2)}, 0, vcc")
    a(f"s_or_b32 {sr(sT0)}, {sr(sRB)}, {sr(sMI)}")
    a(f"s_cmp_eq_u32 {sr(sT0)}, 0")
    a(f"s_cselect_b32 {sr(sT0)}, 0xf149f2ca, 0")
    a(f"v_min_f32 {vr(BIAS+4)}, {sr(sT0)}, {vr(BIAS+0)}")
    a(f"v_min_f32 {vr(BIAS+5)}, {sr(sT0)}, {vr(BIAS+1)}")
    a(f"s_lshl_b32 {sr(sT0)}, {sr(sNI)}, 11")
    a(f"s_add_u32 {sr(sT1)}, {sr(sT0)}, {A_EX}")
    a(f"s_add_u32 {sr(sT0)}, {sr(sT0)}, {A_HB}")
    a(f"v_add_u32 {vr(A_vEX)}, {sr(sT1)}, {vr(vL16)}")
    a(f"s_lshl_b32 {sr(sT2)}, {sr(sMP)}, 12")
    a(f"v_add_u32 {vr(A_vEX)}, {sr(sT2)}, {vr(A_vEX)}")
    a(f"s_cmp_eq_u32 {sr(sMP)}, 0")
    a(f"s_cselect_b32 {sr(sT2)}, {sr(sT0)}, {sr(sT1)}")
    a(f"v_add_u32 {vr(A_vPK)}, {sr(sT2)}, {vr(vL16)}")
    a(f"s_lshl_b32 {sr(sT2)}, {sr(sMP)}, 10")
    a(f"s_add_u32 {sr(sT0)}, {sr(sT0)}, {sr(sT2)}")
    a(f"v_add_u32 {vr(A_vHW)}, {sr(sT0)}, {vr(vL16)}")

B_vSY, B_vSW, B_vSR, B_vPQ, B_vKW, B_vKR, B_vZR, B_SEL = 216, 217, 218, 219, 220, 221, 222, 224
B_EPS4 = 232
B_vSK = 223
B_vONE = 250
def setup_B_consts():
    a(f"s_mov_b32 {sr(sONE)}, 0x10001000"); a(f"s_mov_b32 {sr(sONE+1)}, 0x10001000")
    a(f"s_mov_b32 {sr(sL2E)}, {f2u(LOG2E)}"); a(f"s_mov_b32 {sr(sL2E+1)}, {f2u(LOG2E)}")
    a(f"s_mov_b32 {sr(sEPS)}, {f2u(1e-6)}"); a(f"s_mov_b32 {sr(sEPS+1)}, {f2u(1e-6)}")
    a(f"s_lshl_b32 {sr(sT0)}, {sr(sU)}, 11")
    a(f"s_add_u32 {sr(sT1)}, {sr(sT0)}, {B_KVS}")
    a(f"v_add_u32 {vr(B_vSW)}, {sr(sT1)}, {vr(vL16)}")
    a(f"s_xor_b32 {sr(sT1)}, {sr(sT0)}, 4096")
    a(f"s_add_u32 {sr(sT1)}, {sr(sT1)}, {B_KVS}")
    a(f"v_add_u32 {vr(B_vSR)}, {sr(sT1)}, {vr(vL16)}")
    a(f"v_mov_b32 {vr(B_vSY)}, {B_SY}")
    a(f"s_lshl_b32 {sr(sT1)}, {sr(sU)}, 2")
    a(f"v_add_u32 {vr(B_vPQ)}, {sr(sT1)}, {vr(B_vSY)}")
    a(f"s_lshl_b32 {sr(sT1)}, {sr(sNI)}, 2")
    a(f"s_add_u32 {sr(sT1)}, {sr(sT1)}, 16")
    a(f"v_add_u32 {vr(B_vSK)}, {sr(sT1)}, {vr(B_vSY)}")
    a(f"v_mov_b32 {vr(B_vONE)}, 1")
    a(f"s_lshl_b32 {sr(sT0)}, {sr(sHP)}, 2")
    a(f"s_add_u32 {sr(sT0)}, {sr(sT0)}, {sr(sU)}")
    a(f"s_lshl_b32 {sr(sT1)}, {sr(sT0)}, 14")
    a(f"s_add_u32 {sr(sKVO)}, {sr(sT1)}, {WS_KV}")
    a(f"s_lshl_b32 {sr(sT1)}, {sr(sT0)}, 9")
    a(f"s_add_u32 {sr(sF1R)}, {sr(sT1)}, {WS_F1}")
    a(f"s_lshl_b32 {sr(sT1)}, {sr(sRB)}, 5")
    a(f"s_add_u32 {sr(sF1W)}, {sr(sF1R)}, {sr(sT1)}")
    a(f"s_lshl_b32 {sr(sT0)}, {sr(sNI)}, 11")
    a(f"s_add_u32 {sr(sT0)}, {sr(sT0)}, {B_KVF}")
    a(f"v_add_u32 {vr(B_vKR)}, {sr(sT0)}, {vr(vL16)}")
    a(f"s_lshl_b32 {sr(sT1)}, {sr(sMP)}, 3")
    a(f"v_add_u32 {vr(B_vKW)}, {sr(sT1)}, {vr(B_vKR)}")
    a(f"v_lshlrev_b32 {vr(B_vZR)}, 8, {vr(vG)}")
    a(f"v_add_u32 {vr(B_vZR)}, {sr(sT0)}, {vr(B_vZR)}")
    a(f"s_lshl_b32 {sr(sT0)}, {sr(sRB)}, 2")
    a(f"s_add_u32 {sr(sT0)}, {sr(sT0)}, {sr(sU)}")
    a(f"s_lshl_b32 {sr(sT0)}, {sr(sT0)}, 7")
    a(f"s_add_u32 {sr(sGST)}, {sr(sT0)}, {WS_GATE}")
    T0, T1, T2 = vT0, vT1, vT2
    a(f"v_lshrrev_b32 {vr(T0)}, 2, {vr(vI16)}")
    a(f"v_and_b32 {vr(T1)}, 1, {vr(vI16)}")
    a(f"v_lshlrev_b32 {vr(T1)}, 4, {vr(T1)}")
    a(f"v_mov_b32 {vr(T2)}, 0x3f80")
    a(f"v_lshlrev_b32 {vr(T1)}, {vr(T1)}, {vr(T2)}")
    a(f"v_cmp_eq_u32 vcc, {vr(T0)}, {vr(vG)}")
    a(f"v_and_b32 {vr(T2)}, 2, {vr(vI16)}")
    a("s_nop 0")
    a(f"v_cndmask_b32 {vr(T1)}, 0, {vr(T1)}, vcc")
    a(f"v_cmp_eq_u32 vcc, 0, {vr(T2)}")
    for i in (2, 3, 4, 5): a(f"v_mov_b32 {vr(B_SEL+i)}, 0")
    a(f"v_cndmask_b32 {vr(B_SEL+0)}, 0, {vr(T1)}, vcc")
    a(f"v_cndmask_b32 {vr(B_SEL+1)}, {vr(T1)}, 0, vcc")
    a(f"v_mov_b32 {vr(B_SEL+6)}, {vr(B_SEL+0)}")
    a(f"v_mov_b32 {vr(B_SEL+7)}, {vr(B_SEL+1)}")
    for i in range(4): a(f"v_mov_b32 {vr(B_EPS4+i)}, {sr(sEPS)}")

def set_flag(soff, vtmp):
    a(f"v_mov_b32 {vr(vtmp)}, {sr(sTAG)}")
    a(f"v_mov_b32 {vr(vtmp+1)}, {sr(sTAG+1)}")
    a("s_mov_b64 exec, 1")
    a.vmem(f"buffer_store_dwordx2 {vr(vtmp,2)}, off, {sr(SWS,4)}, {sr(soff)} sc1", "flag")
    a("s_mov_b64 exec, -1")

def poll_issue(soff, vtmp):
    a.vmem(f"buffer_load_dwordx2 {vr(vtmp,2)}, {vr(vPOLL)}, {sr(SWS,4)}, {sr(soff)} offen sc1", "poll")

def poll_finish(soff, vtmp, v2=None):
    L = a.newlabel("L_poll"); Ld = a.newlabel("L_polld")
    a(f"s_mov_b32 {sr(sCNT)}, 0")
    if flag("poll2"):
        ld = lambda r: a(f"buffer_load_dwordx2 {vr(r,2)}, {vr(vPOLL)}, {sr(SWS,4)}, {sr(soff)} offen sc1")
        a("s_sleep 2")
        a.label(L)
        ld(v2)
        a("s_waitcnt vmcnt(1)")
        a(f"v_cmp_ne_u64 vcc, {sr(sTAG,2)}, {vr(vtmp,2)}")
        a(f"s_add_u32 {sr(sCNT)}, {sr(sCNT)}, 1")
        a(f"s_cbranch_vccz {Ld}")
        ld(vtmp)
        a("s_waitcnt vmcnt(1)")
        a(f"v_cmp_ne_u64 vcc, {sr(sTAG,2)}, {vr(v2,2)}")
        a(f"s_cmp_gt_u32 {sr(sCNT)}, 0x40000")
        a(f"s_cbranch_vccz {Ld}")
        a(f"s_cbranch_scc0 {L}")
        a.label(Ld)
        a.vm = ["poll"]
        return
    a.label(L)
    a("s_waitcnt vmcnt(0)")
    a(f"v_cmp_ne_u64 vcc, {sr(sTAG,2)}, {vr(vtmp,2)}")
    a(f"s_add_u32 {sr(sCNT)}, {sr(sCNT)}, 1")
    a(f"s_cbranch_vccz {Ld}")
    a(f"s_cmp_gt_u32 {sr(sCNT)}, 0x40000")
    a(f"s_cbranch_scc1 {Ld}")
    a(f"buffer_load_dwordx2 {vr(vtmp,2)}, {vr(vPOLL)}, {sr(SWS,4)}, {sr(soff)} offen sc1")
    a(f"s_branch {L}")
    a.label(Ld)
    a.vm = []

def lds_signal(addr, off=0):
    a("s_mov_b64 exec, 1")
    a(f"ds_add_u32 {vr(addr)}, {vr(B_vONE)} offset:{off}")
    a("s_mov_b64 exec, -1")

def lds_spin(reads, total, tmp):
    L = a.newlabel("L_spin"); Ld = a.newlabel("L_spind")
    a(f"s_mov_b32 {sr(sCNT)}, 0")
    a.label(L)
    for i, (ad, off) in enumerate(reads): a(f"ds_read_b32 {vr(tmp+i)}, {vr(ad)} offset:{off}")
    a(f"s_add_u32 {sr(sCNT)}, {sr(sCNT)}, 1")
    a("s_waitcnt lgkmcnt(0)")
    for i in range(1, len(reads)): a(f"v_add_u32 {vr(tmp)}, {vr(tmp)}, {vr(tmp+i)}")
    a(f"s_cmp_gt_u32 {sr(sCNT)}, 0x200000")
    a(f"v_readfirstlane_b32 {sr(sT0)}, {vr(tmp)}")
    a(f"s_cbranch_scc1 {Ld}")
    a(f"s_cmp_lg_u32 {sr(sT0)}, {total}")
    a(f"s_cbranch_scc1 {L}")
    a.label(Ld)

def w_read_addr(dst, t, nseg, base):
    t0, t1 = vT0, vT1
    a(f"v_and_b32 {vr(t0)}, 3, {vr(vI16)}")
    a(f"v_lshlrev_b32 {vr(t0)}, 3, {vr(t0)}")
    a(f"s_mul_i32 {sr(sT0)}, {sr(sNI)}, 56")
    if t: a(f"s_add_u32 {sr(sT0)}, {sr(sT0)}, 32")
    a(f"v_add_u32 {vr(t0)}, {sr(sT0)}, {vr(t0)}")
    a(f"v_and_b32 {vr(t1)}, 8, {vr(vI16)}")
    a(f"v_lshlrev_b32 {vr(t1)}, 2, {vr(t1)}")
    a(f"v_xor_b32 {vr(t0)}, {vr(t0)}, {vr(t1)}")
    a(f"v_and_b32 {vr(t1)}, 1, {vr(vG)}")
    a(f"v_lshlrev_b32 {vr(t1)}, 6, {vr(t1)}")
    a(f"v_xor_b32 {vr(t0)}, {vr(t0)}, {vr(t1)}")
    a(f"v_lshrrev_b32 {vr(t1)}, 2, {vr(vI16)}")
    a(f"v_lshl_add_u32 {vr(t0)}, {vr(t1)}, 7, {vr(t0)}")
    a(f"v_mul_u32_u24 {vr(t1)}, {nseg*1024}, {vr(vG)}")
    a(f"v_add_u32 {vr(t0)}, {vr(t0)}, {vr(t1)}")
    a(f"v_add_u32 {vr(dst)}, {base}, {vr(t0)}")

def x_read_addr(d0, d1, d2, d3):
    a(f"v_lshrrev_b32 {vr(vT5)}, 1, {vr(vI16)}")
    a(f"v_xor_b32 {vr(vT5)}, {vr(vG)}, {vr(vT5)}")
    a(f"v_lshlrev_b32 {vr(vT5)}, 4, {vr(vT5)}")
    a(f"v_lshl_add_u32 {vr(vT5)}, {vr(vI16)}, 7, {vr(vT5)}")
    a(f"s_lshl_b32 {sr(sT1)}, {sr(sMP)}, 13")
    a(f"v_add_u32 {vr(d0)}, {sr(sT1)}, {vr(vT5)}")
    a(f"v_xor_b32 {vr(d1)}, 64, {vr(d0)}")
    if d2 is not None:
        a(f"v_add_u32 {vr(d2)}, 65536, {vr(d0)}")
        a(f"v_add_u32 {vr(d3)}, 65536, {vr(d1)}")

def pack4(d, t0, t1):
    cvtpk(d, t0, t0+1); cvtpk(d+1, t0+2, t0+3); cvtpk(d+2, t1, t1+1); cvtpk(d+3, t1+2, t1+3)

def R4(b): return list(range(b, b+4))

def sched_step(ms, rd, tail):
    rd = list(rd); nm = len(ms); nr = len(rd); done = 0
    span = max(1, nm - tail)
    for i, (fn, regs) in enumerate(ms):
        a.need(regs)
        fn()
        want = min(nr, -(-(i + 1) * nr // span))
        while done < want:
            a.dsr(rd[done]); done += 1
    while done < nr:
        a.dsr(rd[done]); done += 1

def o_B(PQ, T, O, p):
    KF = [T, T+4]; ZF = T+8
    a(f"ds_read_b128 {vr(ZF,4)}, {vr(B_vZR)} offset:{1024 + 12*16}")
    a(f"ds_read_b128 {vr(KF[0],4)}, {vr(B_vKR)}")
    a(f"ds_read_b128 {vr(KF[1],4)}, {vr(B_vKR)} offset:1024")
    a("s_waitcnt lgkmcnt(2)")
    for tl in range(2): mfma(O+tl*12+8, ZF, PQ+tl*4)
    a("s_waitcnt lgkmcnt(1)")
    for tl in range(2): mfma(O+tl*12, KF[0], PQ+tl*4)
    a("s_waitcnt lgkmcnt(0)")
    for tl in range(2): mfma(O+tl*12+4, KF[1], PQ+tl*4)
    a("s_nop 1")
    for tl in range(2): a(f"v_add_f32 {vr(O+tl*12+8)}, {sr(sEPS)}, {vr(O+tl*12+8)}")
    for tl in range(2): a(f"v_rcp_f32 {vr(O+tl*12+8)}, {vr(O+tl*12+8)}")
    a(f"s_add_u32 {sr(sT0)}, {sr(sOST)}, 16384")
    a("s_nop 0")
    for tl in range(2):
        b = O+tl*12
        for i in range(8): a(f"v_mul_f32 {vr(b+i)}, {vr(b+i)}, {vr(b+8)}")
        Rr = O+24+tl*4
        for i in range(4): cvtpk(Rr+i, b+2*i, b+2*i+1)
        a(f"v_cndmask_b32 {vr(Rr+2)}, 0, {vr(Rr+2)}, {sr(sMASK48,2)}")
        a(f"v_cndmask_b32 {vr(Rr+3)}, 0, {vr(Rr+3)}, {sr(sMASK48,2)}")
        a(f"buffer_store_dwordx4 {vr(Rr,4)}, {vr(vL16)}, {sr(SWS,4)}, {sr(sT0 if tl else sOST)} offen sc1")
    stamp(p + " o stored")
    a("s_waitcnt vmcnt(0)")
    set_flag(sF2W, T)
    stamp(p + " flag2 set")
    a("s_endpgm")

def phi_ops(base, n, tmp):
    seq = []
    for i in range(0, n, 2): seq.append(f"v_pk_mul_f32 {vr(tmp+i,2)}, {vr(base+i,2)}, {sr(sL2E,2)}")
    for i in range(n): seq.append(f"v_exp_f32 {vr(tmp+i)}, {vr(tmp+i)} clamp")
    for i in range(n): seq.append(f"v_max_f32 {vr(base+i)}, {sr(sEPS)}, {vr(base+i)}")
    for i in range(0, n, 2): seq.append(f"v_pk_add_f32 {vr(base+i,2)}, {vr(base+i,2)}, {vr(tmp+i,2)}")
    return seq

def loader():
    vXG0, vXG1, vWG0, vWG1, vH0, vH1 = 10, 11, 12, 13, 14, 15
    a.c("================ loader waves")
    a(f"s_lshl_b32 {sr(sU4K)}, {sr(sU)}, 12")
    a(f"s_mul_i32 {sr(sU6K)}, {sr(sU)}, 6144")
    a(f"v_lshrrev_b32 {vr(vT0)}, 3, {vr(vLANE)}")
    a(f"v_and_b32 {vr(vT1)}, 7, {vr(vLANE)}")
    a(f"v_xor_b32 {vr(vT2)}, {vr(vT1)}, {vr(vG)}")
    a(f"s_lshl_b32 {sr(sT0)}, {sr(sRB)}, 7")
    a(f"s_lshl_b32 {sr(sT1)}, {sr(sU)}, 5")
    a(f"s_add_u32 {sr(sT0)}, {sr(sT0)}, {sr(sT1)}")
    a(f"s_mul_i32 {sr(sT0)}, {sr(sT0)}, 896")
    a(f"v_mul_u32_u24 {vr(vT3)}, 896, {vr(vT0)}")
    a(f"v_lshl_add_u32 {vr(vT3)}, {vr(vT2)}, 4, {vr(vT3)}")
    a(f"v_add_u32 {vr(vXG0)}, {sr(sT0)}, {vr(vT3)}")
    a(f"v_xor_b32 {vr(vT4)}, 64, {vr(vT3)}")
    a(f"v_add_u32 {vr(vT4)}, {8*896-1024}, {vr(vT4)}")
    a(f"v_add_u32 {vr(vXG1)}, {sr(sT0)}, {vr(vT4)}")
    a(f"v_and_b32 {vr(vT2)}, 1, {vr(vG)}")
    a(f"v_lshlrev_b32 {vr(vT2)}, 1, {vr(vT2)}")
    a(f"v_xor_b32 {vr(vT2)}, {vr(vT1)}, {vr(vT2)}")
    a(f"v_xor_b32 {vr(vT5)}, 4, {vr(vT2)}")
    a(f"v_min_u32 {vr(vT2)}, 6, {vr(vT2)}")
    a(f"v_min_u32 {vr(vT5)}, 6, {vr(vT5)}")
    a(f"s_mul_i32 {sr(sT0)}, {sr(sU)}, {16*2688}")
    a(f"s_mul_i32 {sr(sT1)}, {sr(sHP)}, 112")
    a(f"s_add_u32 {sr(sT0)}, {sr(sT0)}, {sr(sT1)}")
    a(f"v_mul_u32_u24 {vr(vWG0)}, 2688, {vr(vT0)}")
    a(f"v_add_u32 {vr(vWG0)}, {sr(sT0)}, {vr(vWG0)}")
    a(f"v_lshl_add_u32 {vr(vWG1)}, {vr(vT5)}, 4, {vr(vWG0)}")
    a(f"v_add_u32 {vr(vWG1)}, {8*2688}, {vr(vWG1)}")
    a(f"v_lshl_add_u32 {vr(vWG0)}, {vr(vT2)}, 4, {vr(vWG0)}")
    a("s_waitcnt lgkmcnt(0)")
    P = sPTR
    srd(SX, P+0, 1835008)
    a(f"s_cmp_eq_u32 {sr(sTYPE)}, 1")
    a(f"s_cselect_b32 {sr(SW)}, {sr(P+2)}, {sr(P+8)}")
    a(f"s_cselect_b32 {sr(SW+1)}, {sr(P+3)}, {sr(P+9)}")
    a(f"s_mov_b32 {sr(SW+2)}, 1204224")
    a(f"s_mov_b32 {sr(SW+3)}, 0x00020000")
    a("s_cbranch_scc0 L_ldB")
    def issue_x(c, base, tag):
        a(f"s_add_u32 m0, {sr(sU4K)}, {base}")
        a(f"s_mov_b32 {sr(sSOX)}, {c*128}")
        a(f"s_mov_b32 {sr(sSOX2)}, {c*128 + 16*896-2048}")
        a.vmem(f"buffer_load_dwordx4 {vr(vXG0)}, {sr(SX,4)}, {sr(sSOX)} offen lds", tag)
        a.vmem(f"buffer_load_dwordx4 {vr(vXG1)}, {sr(SX,4)}, {sr(sSOX)} offen offset:1024 lds", tag)
        a.vmem(f"buffer_load_dwordx4 {vr(vXG0)}, {sr(SX,4)}, {sr(sSOX2)} offen offset:2048 lds", tag)
        a.vmem(f"buffer_load_dwordx4 {vr(vXG1)}, {sr(SX,4)}, {sr(sSOX2)} offen offset:3072 lds", tag)
    def issue_w(c, base, segs, ubase, tag):
        n = len(segs)
        for v in range(2):
            for i, sg in enumerate(segs):
                a(f"s_add_u32 m0, {sr(ubase)}, {base + v*n*1024 + i*1024 - sg*896}")
                a(f"s_mov_b32 {sr(sSOW)}, {c*172032}")
                off = f" offset:{sg*896}" if sg else ""
                a.vmem(f"buffer_load_dwordx4 {vr(vWG0 if v == 0 else vWG1)}, {sr(SW,4)}, {sr(sSOW)} offen{off} lds", tag)
    def wo_prefetch(srdreg):
        if flag("nowopf"): return
        a(f"s_and_b32 {sr(sT0)}, {sr(sJ)}, 15")
        a(f"s_lshl_b32 {sr(sT0)}, {sr(sT0)}, 2")
        a(f"s_add_u32 {sr(sT0)}, {sr(sT0)}, {sr(sU)}")
        a(f"s_lshl_b32 {sr(sT0)}, {sr(sT0)}, 13")
        a(f"v_lshlrev_b32 {vr(vH0)}, 7, {vr(vLANE)}")
        a.vmem(f"buffer_load_dword {vr(vDUM)}, {vr(vH0)}, {sr(srdreg,4)}, {sr(sT0)} offen", "pfwo")
    def first_stamps(p):
        if STAMPS:
            a("s_memrealtime s[88:89]")
            a("s_waitcnt lgkmcnt(0)")
            stamp(p + " entry", 98); stamp(p + " c0 issued", 96); stamp(p + " c1 issued", 88)
    WO_L1 = [(2,0),(3,0),(2,1),(3,1),(4,1)]; WO_L2 = [(4,0),(5,0),(5,1),(6,1)]
    def wo_one(n, b, counted=False):
        for hw in range(2):
            a(f"s_add_u32 m0, {sr(sW1K)}, {P2_WO + b*57344 + n*8192 - hw*4096}")
            a(f"s_mov_b32 {sr(sT2)}, {n*57344}")
            t_ = f"buffer_load_dwordx4 {vr(vWOD if hw == 0 else 16)}, {sr(SWOA if b==0 else SWOB,4)}, {sr(sT2)} offen lds"
            a.vmem(t_, "wo") if counted else a(t_)
    def chunkA(c):
        issue_x(c, L_X[c % 3], f"c{c}"); issue_w(c, L_W[c % 3], (0, 1, 2), sU6K, f"c{c}")
    chunkA(0)
    if STAMPS: a("s_memrealtime s[96:97]")
    a(f"s_lshl_b32 {sr(sT0)}, {sr(sRB)}, 7")
    a(f"s_sub_u32 {sr(sT0)}, {sr(sT0)}, 16")
    a(f"s_mul_i32 {sr(sT0)}, {sr(sT0)}, 896")
    a(f"v_add_u32 {vr(vH0)}, {sr(sT0)}, {vr(vT3)}")
    a(f"v_add_u32 {vr(vH1)}, {sr(sT0)}, {vr(vT4)}")
    a(f"s_lshl_b32 {sr(sT2)}, {sr(sU)}, 11")
    a(f"s_lshl_b32 {sr(sT1)}, {sr(sU)}, 7")
    a(f"s_add_u32 {sr(sT3)}, {sr(sT1)}, 512")
    a(f"s_add_u32 m0, {sr(sT2)}, {A_HALO}")
    a(f"s_cmp_eq_u32 {sr(sRB)}, 0")
    a(f"s_cselect_b32 {sr(sT1)}, 0, {sr(sT1)}")
    a(f"s_cselect_b32 {sr(sT3)}, 0, {sr(sT3)}")
    a.vmem_unc(f"buffer_load_dwordx4 {vr(vH0)}, {sr(SX,4)}, {sr(sT1)} offen lds")
    a.vmem_unc(f"buffer_load_dwordx4 {vr(vH1)}, {sr(SX,4)}, {sr(sT1)} offen offset:1024 lds")
    a(f"s_cmp_eq_u32 {sr(sU)}, 3")
    a("s_cbranch_scc1 L_ld_sided")
    a(f"s_add_u32 m0, {sr(sT2)}, {A_HALO + 8192}")
    a("s_nop 0")
    a.vmem_unc(f"buffer_load_dwordx4 {vr(vH0)}, {sr(SX,4)}, {sr(sT3)} offen lds")
    a.vmem_unc(f"buffer_load_dwordx4 {vr(vH1)}, {sr(SX,4)}, {sr(sT3)} offen offset:1024 lds")
    a.label("L_ld_sided")
    chunkA(1)
    late_srds()
    first_stamps("L")
    for c in range(7):
        if c == 0:
            n = len([t for t in a.vm if t != "c0"])
            a(f"s_waitcnt vmcnt({n}) lgkmcnt(0)"); a.vm = [t for t in a.vm if t != "c0"]
        else:
            a.wait_vm(f"c{c}")
        a("s_barrier")
        if c == 0: compute_tag()
        if c + 2 < 7: chunkA(c + 2)
        if c == 4:
            wo_prefetch(SWOB); late_setup(True)
            a(f"v_subrev_u32 v16, {32*896}, {vr(vWOD)}")
        if flag("woring") and c >= 5:
            for n, b in (WO_L1 if c == 5 else WO_L2): wo_one(n, b, True)
    a("s_barrier")
    a(f"v_subrev_u32 v16, {32*896}, {vr(vWOD)}")
    def wo_block(b):
        for n in range(7):
            if flag("woring") and (n, b) in WO_L1 + WO_L2: continue
            wo_one(n, b)
    if flag("wosplit"):
        a(f"s_cmp_eq_u32 {sr(sHP)}, 7")
        a("s_cbranch_scc1 L_ld_skipA")
        wo_block(0)
        a.label("L_ld_skipA")
        a("s_barrier")
        a(f"s_cmp_eq_u32 {sr(sHP)}, 7")
        a("s_cbranch_scc1 L_idle2")
        a("s_waitcnt vmcnt(0)")
        if not flag("wosplit2"): wo_block(1)
    else:
        if flag("wolate"): a("s_barrier")
        a(f"s_cmp_eq_u32 {sr(sHP)}, 7")
        a("s_cbranch_scc1 L_idle2")
        wo_block(0); wo_block(1)
    stamp("L wo issued")
    a("s_branch L_phase2")
    a.label("L_ldB")
    a.vm = []
    sU2K = sU6K
    a(f"s_lshl_b32 {sr(sU2K)}, {sr(sU)}, 11")
    issue_x(0, BX[0], "c0"); issue_w(0, BW[0], (1, 2), sU4K, "c0")
    if STAMPS: a("s_memrealtime s[96:97]")
    issue_x(1, BX[1], "c1"); issue_w(1, BW[1], (1, 2), sU4K, "c1")
    issue_x(2, BX[2], "c2")
    late_srds()
    first_stamps("M")
    vXR = [16, 17, 18, 19]; vQR = [251, 252]; vGR_ = 15
    for c in range(7):
        a.wait_vm(f"c{c}", " lgkmcnt(0)" if c == 0 else "")
        a("s_barrier")
        if c == 0: compute_tag()
        if 1 <= c <= 5: issue_w(c + 1, BW[(c + 1) % 2], (1, 2), sU4K, f"c{c+1}")
        if c + 3 < 7: issue_x(c + 3, BX[c + 3], f"c{c+3}")
        if c == 3:
            L = a.newlabel("L_gw")
            a(f"s_cmp_lg_u32 {sr(sU)}, 0")
            a(f"s_cbranch_scc1 {L}")
            a(f"v_lshlrev_b32 {vr(vH0)}, 4, {vr(vLANE)}")
            a(f"s_mov_b32 m0, {B_GW}")
            a("s_nop 0")
            a.vmem_unc(f"buffer_load_dwordx4 {vr(vH0)}, {sr(SG,4)}, 0 offen lds")
            a.label(L)
        if c == 4:
            late_setup(False); setup_B_consts()
            x_read_addr(*vXR)
            for t in range(2): w_read_addr(vQR[t], t, 1, BW[0])
            a(f"v_lshlrev_b32 {vr(vGR_)}, 4, {vr(vG)}")
            a(f"v_add_u32 {vr(vGR_)}, {B_GW}, {vr(vGR_)}")
        if c == 5: wo_prefetch(SWOA)
        if c == 6:
            for q in (0, 1): issue_w(q, BQS[q], (0,), sU2K, "g0")
    a("s_barrier")
    stamp("M barH")
    SETS = [24, 52]; AQ = 112; AG = 144; EPS4 = B_EPS4
    def qreads(k, S):
        c, ks = divmod(k, 2)
        xr = vXR[(2 if c >= 4 else 0) + ks]; xo = BX[c] - (65536 if c >= 4 else 0)
        wb = BQS[c] - BW[0] + ks*4096
        out = [f"ds_read_b128 {vr(S,4)}, {vr(xr)} offset:{xo}"]
        out += [f"ds_read_b64_tr_b16 {vr(S+20+2*h,2)}, {vr(vQR[0])} offset:{wb + h*512}" for h in range(2)]
        out += [f"ds_read_b128 {vr(S+tl*4,4)}, {vr(xr)} offset:{xo + tl*2048}" for tl in (1, 2, 3)]
        out += [f"ds_read_b64_tr_b16 {vr(S+24+2*h,2)}, {vr(vQR[1])} offset:{wb + h*512}" for h in range(2)]
        out.append(f"ds_read_b128 {vr(S+16,4)}, {vr(vGR_)} offset:{k*64}")
        return out
    def qm(k, S):
        ms = []
        for t in range(2):
            for tl in range(4):
                d = AQ + (tl*2+t)*4
                ms.append((lambda d=d, t=t, tl=tl: mfma(d, S+20+t*4, S+tl*4, EPS4 if k == 0 else d), R4(S+20+t*4) + R4(S+tl*4)))
        def side():
            L1 = a.newlabel("L_s"); L2 = a.newlabel("L_s")
            C0 = None if k == 0 else AG; C1 = None if k == 0 else AG+4
            a(f"s_cbranch_vccnz {L2}")
            a(f"s_cmp_eq_u32 {sr(sNI)}, 1")
            a(f"s_cbranch_scc1 {L1}")
            mfma(AG, S+16, S+0, C0); mfma(AG+4, S+16, S+4, C1)
            a(f"s_branch {L2}")
            a.label(L1)
            mfma(AG, S+16, S+8, C0); mfma(AG+4, S+16, S+12, C1)
            a.label(L2)
        ms.append((side, R4(S+16)))
        return ms
    a(f"s_cmp_lg_u32 {sr(sHP)}, 0")
    a("s_cselect_b64 vcc, -1, 0")
    groups = [(0, 1), (2, 3, 4), (5, 6)]
    for q in (2, 3): issue_w(q, BQS[q], (0,), sU2K, "g1")
    lds_spin([(B_vSY, 24)], 4, vT0)
    issue_w(4, BQS[4], (0,), sU2K, "g1")
    for g, chs in enumerate(groups):
        a.wait_vm(f"g{g}")
        lds_signal(B_vSY, 32 + 4*g)
        lds_spin([(B_vSY, 32 + 4*g)], 4, vT0)
        a.ds_all()
        ks_list = [2*c + ks for c in chs for ks in range(2)]
        for r in qreads(ks_list[0], SETS[0]): a.dsr(r)
        for i, k in enumerate(ks_list):
            nxt = qreads(ks_list[i+1], SETS[(i+1) & 1]) if i + 1 < len(ks_list) else []
            if not nxt and g == 0:
                a("s_waitcnt lgkmcnt(0)"); a.ds_all()
                lds_signal(B_vSY, 48)
            sched_step(qm(k, SETS[i & 1]), nxt, 2)
        if g == 0:
            lds_spin([(B_vSY, 48)], 4, vT0)
            for q in groups[2]: issue_w(q, BQS[q], (0,), sU2K, "g2")
    a.ds_all()
    stamp("M pass2 done")
    TM = 24
    a("s_nop 4")
    for t_ in phi_ops(AQ, 32, TM): a(t_)
    a(f"s_cbranch_vccnz L_M_nogate")
    for tl in range(2): a(f"v_mul_f32 {vr(AG+tl*4)}, {sr(sL2E)}, {vr(AG+tl*4)}")
    for tl in range(2): a(f"v_exp_f32 {vr(AG+tl*4)}, -{vr(AG+tl*4)}")
    a("s_nop 0")
    for tl in range(2): a(f"v_add_f32 {vr(AG+tl*4)}, 1.0, {vr(AG+tl*4)}")
    for tl in range(2): a(f"v_rcp_f32 {vr(AG+tl*4)}, {vr(AG+tl*4)}")
    a("s_mov_b64 exec, 0xffff")
    for tl in range(2):
        a.vmem_unc(f"buffer_store_dword {vr(AG+tl*4)}, {vr(vGT)}, {sr(SWS,4)}, {sr(sGST)} offen offset:{tl*64} sc1")
    a("s_mov_b64 exec, -1")
    a.label("L_M_nogate")
    PQ = 56
    for tl in range(4):
        d = PQ + tl*4
        pack4(d, AQ+tl*8, AQ+tl*8+4)
        a(f"v_cndmask_b32 {vr(d+2)}, 0, {vr(d+2)}, {sr(sMASK48,2)}")
        a(f"v_cndmask_b32 {vr(d+3)}, 0, {vr(d+3)}, {sr(sMASK48,2)}")
    a(f"v_subrev_u32 {vr(vT1)}, {B_KVS}, {vr(B_vSW)}")
    for tl in range(2): a(f"ds_write_b128 {vr(vT1)}, {vr(PQ+tl*4,4)} offset:{tl*1024}")
    a("s_waitcnt vmcnt(0) lgkmcnt(0)")
    lds_signal(B_vPQ)
    stamp("M pq done")
    lds_spin([(B_vSK, 0)], 2, vT0)
    a.vm = []
    o_B(PQ + 8, 24, 112, "M")

EA_Q = [24, 28]; EA_K = [32, 36]; EA_KP = 40; EA_V = [44, 54]
EA_Q23 = [64, 68]; EA_K23 = [72, 76]; EA_H = 80

def pf_stag(c):
    if not flag("stag") or c > 6: return
    a(f"s_mul_i32 s13, s12, {c}")
    a(f"buffer_load_dword {vr(vDUM)}, v18, {sr(SX,4)}, s13 offen")

def l2_prefetch():
    if flag("nopf"): return
    P = sPTR; SP = SX
    a(f"s_cmp_lt_u32 {sr(sJ)}, 20")
    a(f"s_cselect_b32 {sr(SP)}, {sr(P+2)}, {sr(P+8)}")
    a(f"s_cselect_b32 {sr(SP+1)}, {sr(P+3)}, {sr(P+9)}")
    a(f"s_cselect_b32 {sr(sT2)}, 8, 20")
    a(f"s_mov_b32 {sr(SP+2)}, 1204224")
    a(f"s_mov_b32 {sr(sT3)}, 172032")
    a(f"s_cmp_lt_u32 {sr(sJ)}, 8")
    a(f"s_cselect_b32 {sr(SP)}, {sr(P+0)}, {sr(SP)}")
    a(f"s_cselect_b32 {sr(SP+1)}, {sr(P+1)}, {sr(SP+1)}")
    a(f"s_cselect_b32 {sr(SP+2)}, 1835008, {sr(SP+2)}")
    a(f"s_mov_b32 {sr(SP+3)}, 0x00020000")
    a(f"s_cselect_b32 {sr(sT3)}, 128, {sr(sT3)}")
    a(f"s_cselect_b32 {sr(sT2)}, 0, {sr(sT2)}")
    a(f"s_cselect_b64 vcc, -1, 0")
    a(f"s_sub_u32 {sr(sT2)}, {sr(sJ)}, {sr(sT2)}")
    a(f"s_lshl_b32 {sr(sT2)}, {sr(sT2)}, 6")
    if flag("stag"):
        a(f"s_lshl_b32 {sr(sT1)}, {sr(sU)}, 4")
        a(f"s_add_u32 {sr(sT2)}, {sr(sT2)}, {sr(sT1)}")
        a(f"v_lshrrev_b32 {vr(vT2)}, 2, {vr(vLANE)}")
        a(f"v_add_u32 {vr(vT2)}, {sr(sT2)}, {vr(vT2)}")
    else:
        a(f"v_add_u32 {vr(vT2)}, {sr(sT2)}, {vr(vLANE)}")
    a(f"s_lshr_b32 {sr(sT1)}, {sr(sRB)}, 2")
    a(f"s_lshl_b32 {sr(sT1)}, {sr(sT1)}, 9")
    a(f"v_add_u32 {vr(vT3)}, {sr(sT1)}, {vr(vT2)}")
    a(f"v_mul_u32_u24 {vr(vT3)}, 896, {vr(vT3)}")
    a(f"v_mul_u32_u24 {vr(vT4)}, 43691, {vr(vT2)}")
    a(f"v_lshrrev_b32 {vr(vT4)}, 19, {vr(vT4)}")
    a(f"v_mul_u32_u24 {vr(vT0)}, 12, {vr(vT4)}")
    a(f"v_sub_u32 {vr(vT2)}, {vr(vT2)}, {vr(vT0)}")
    a(f"v_mul_u32_u24 {vr(vT4)}, 2688, {vr(vT4)}")
    a(f"v_lshrrev_b32 {vr(vT0)}, 2, {vr(vT2)}")
    a(f"v_mul_u32_u24 {vr(vT0)}, 896, {vr(vT0)}")
    a(f"v_add_u32 {vr(vT4)}, {vr(vT4)}, {vr(vT0)}")
    a(f"v_and_b32 {vr(vT2)}, 3, {vr(vT2)}")
    a(f"v_lshl_add_u32 {vr(vT4)}, {vr(vT2)}, 7, {vr(vT4)}")
    a(f"s_mul_i32 {sr(sT1)}, {sr(sHALF)}, 384")
    a(f"v_add_u32 {vr(vT4)}, {sr(sT1)}, {vr(vT4)}")
    a(f"v_cndmask_b32 {vr(vT4)}, {vr(vT4)}, {vr(vT3)}, vcc")
    if flag("stag"):
        a(f"v_mov_b32 v18, {vr(vT4)}")
        a(f"s_mov_b32 s12, {sr(sT3)}")
        for c in range(opt("pf0", 2), opt("pf0", 2) + opt("pfinit", 2)): pf_stag(c)
        return
    PF0 = opt("pf0", 1)
    a(f"s_add_u32 {sr(sT1)}, {sr(sU)}, {PF0}")
    a(f"s_mul_i32 {sr(sT1)}, {sr(sT1)}, {sr(sT3)}")
    a(f"buffer_load_dword {vr(vDUM)}, {vr(vT4)}, {sr(SP,4)}, {sr(sT1)} offen")
    L = a.newlabel("L_pf")
    a(f"s_cmp_ge_u32 {sr(sU)}, {3 - PF0}")
    a(f"s_cbranch_scc1 {L}")
    a(f"s_lshl_b32 {sr(sT3)}, {sr(sT3)}, 2")
    a(f"s_add_u32 {sr(sT1)}, {sr(sT1)}, {sr(sT3)}")
    a(f"buffer_load_dword {vr(vDUM)}, {vr(vT4)}, {sr(SP,4)}, {sr(sT1)} offen")
    a.label(L)

def wo_prefetch_early():
    if not flag("woearly"): return
    L = a.newlabel("L_wpe"); L1 = a.newlabel("L_wpe"); L2 = a.newlabel("L_wpe")
    a(f"s_cmp_lt_u32 {sr(sU)}, 2")
    a(f"s_cbranch_scc1 {L}")
    a(f"s_and_b32 {sr(sT0)}, {sr(sJ)}, 15")
    a(f"s_mul_i32 {sr(sT0)}, {sr(sT0)}, 28")
    a(f"s_and_b32 {sr(sT1)}, {sr(sU)}, 1")
    a(f"s_lshl_b32 {sr(sT1)}, {sr(sT1)}, 4")
    a(f"s_add_u32 {sr(sT0)}, {sr(sT0)}, {sr(sT1)}")
    a(f"s_mul_i32 {sr(sT0)}, {sr(sT0)}, 896")
    a(f"s_lshl_b32 {sr(sT1)}, {sr(sHALF)}, 9")
    a(f"s_add_u32 {sr(sT0)}, {sr(sT0)}, {sr(sT1)}")
    a(f"v_lshrrev_b32 {vr(vT0)}, 2, {vr(vLANE)}")
    a(f"v_mul_u32_u24 {vr(vT0)}, 896, {vr(vT0)}")
    a(f"v_and_b32 {vr(vT1)}, 3, {vr(vLANE)}")
    a(f"v_lshl_add_u32 {vr(vT0)}, {vr(vT1)}, 7, {vr(vT0)}")
    a(f"s_cmp_eq_u32 {sr(sTYPE)}, 1")
    a(f"s_cbranch_scc1 {L1}")
    a(f"buffer_load_dword {vr(vDUM)}, {vr(vT0)}, {sr(SWOA,4)}, {sr(sT0)} offen")
    a(f"s_branch {L}")
    a.label(L1)
    a(f"buffer_load_dword {vr(vDUM)}, {vr(vT0)}, {sr(SWOB,4)}, {sr(sT0)} offen")
    a.label(L)

def compute():
    a.label("L_compute")
    if not flag("cpfearly"):
        a(f"s_and_b32 {sr(sT2)}, {sr(sJ)}, 7")
        a(f"s_or_b32 {sr(sT2)}, {sr(sT2)}, {sr(sWAVE)}")
        a(f"s_cmp_lg_u32 {sr(sT2)}, 0")
        a("s_cbranch_scc1 L_nopf")
        a(f"v_lshlrev_b32 {vr(vT1)}, 7, {vr(vLANE)}")
        for i in range(4):
            if i:
                a(f"v_add_u32 {vr(vT1)}, 8192, {vr(vT1)}")
                a(f"v_min_u32 {vr(vT1)}, L_end-L_pc, {vr(vT1)}")
            a.vmem_unc(f"global_load_dword {vr(vDUM)}, {vr(vT1)}, {sr(sPC,2)}")
        a.label("L_nopf")
    a(f"s_cmp_eq_u32 {sr(sTYPE)}, 0")
    a("s_cbranch_scc1 L_cB")
    vXR0, vXR1, vHR0, vHR1 = 10, 11, 12, 13
    vWR = {(0,0):14, (1,0):15, (0,1):16, (1,1):17}
    SETS = [24, 68]
    ACC = 112; ACX = 208
    def acc(seg, t, tl): return ACC + ((seg*2+t)*4+tl)*4
    x_read_addr(vXR0, vXR1, None, None)
    a(f"v_add_u32 {vr(vHR0)}, {A_HALO}, {vr(vT5)}")
    a(f"v_xor_b32 {vr(vHR1)}, 64, {vr(vHR0)}")
    for t in range(2):
        w_read_addr(vWR[(t,0)], t, 3, L_W[0])
        a(f"v_add_u32 {vr(vWR[(t,1)])}, {L_W[2]-L_W[0]}, {vr(vWR[(t,0)])}")
    a("s_waitcnt lgkmcnt(0)")
    l2_prefetch()
    late_srds(); wo_prefetch_early(); late_setup(True); setup_A_consts()
    def reads(c, ks, S):
        sl = c % 3; out = []
        xr = vXR0 if ks == 0 else vXR1
        reg = 1 if sl == 2 else 0
        wb = (L_W[sl] - L_W[2*reg]) + ks*4*3072
        def wfrag(seg, t):
            for h in range(2):
                out.append(f"ds_read_b64_tr_b16 {vr(S+20+(seg*2+t)*4+2*h,2)}, {vr(vWR[(t,reg)])} offset:{wb + seg*1024 + h*512}")
        def xfrag(tl): out.append(f"ds_read_b128 {vr(S+tl*4,4)}, {vr(xr)} offset:{L_X[sl] + tl*2048}")
        xfrag(0); wfrag(0, 0); xfrag(1); xfrag(2); xfrag(3); wfrag(0, 1)
        for seg in (1, 2):
            for t in range(2): wfrag(seg, t)
        out.append(f"ds_read_b128 {vr(S+16,4)}, {vr(vHR0 if ks == 0 else vHR1)} offset:{c*2048}")
        return out
    def mlist(S, first):
        ms = []
        for seg in range(3):
            for t in range(2):
                for tl in range(4):
                    d = acc(seg, t, tl); W = S+20+(seg*2+t)*4; X = S+tl*4
                    A_, B_ = (W, X) if seg < 2 else (X, W)
                    ms.append((lambda d=d, A_=A_, B_=B_: mfma(d, A_, B_, None if first else d), R4(W) + R4(X)))
        def side():
            L1 = a.newlabel("L_s"); L2 = a.newlabel("L_s")
            C0 = None if first else ACX; C1 = None if first else ACX+4
            a(f"s_cbranch_scc1 {L1}")
            mfma(ACX, S+28, S+16, C0); mfma(ACX+4, S+32, S+16, C1)
            a(f"s_branch {L2}")
            a.label(L1)
            mfma(ACX, S+16, S+36, C0); mfma(ACX+4, S+16, S+40, C1)
            a.label(L2)
        ms.append((side, R4(S+16)))
        return ms
    a("s_waitcnt lgkmcnt(0)")
    compute_tag()
    stamp("A setup done")
    a(f"s_cmp_eq_u32 {sr(sMP)}, 1")
    for c in range(7):
        a.c(f"---- A chunk {c}")
        a("s_waitcnt lgkmcnt(0)")
        a.ds_all()
        a("s_barrier")
        pf_stag(c + opt("pf0", 2) + opt("pfinit", 2))
        r0 = reads(c, 0, SETS[0])
        if c == 0:
            for r in r0: a.dsr(r)
        else:
            sched_step(mlist(SETS[1], False), r0, 2)
        sched_step(mlist(SETS[0], c == 0), reads(c, 1, SETS[1]), 6)
    sched_step(mlist(SETS[1], False), [], 0)
    a.ds_all()
    stamp("A gemm done")
    KB = 24; QB = 44; VB = [60, 70]; HB_ = 80
    pack4(KB+16, acc(1,0,3), acc(1,1,3))
    a(f"ds_write_b128 {vr(A_vEX)}, {vr(KB+16,4)}")
    for et in range(2):
        cvtpk(VB[et]+8, acc(2,et,3), acc(2,et,3)+1); cvtpk(VB[et]+9, acc(2,et,3)+2, acc(2,et,3)+3)
        a(f"ds_write_b64 {vr(A_vEX)}, {vr(VB[et]+8,2)} offset:{1024 + et*8}")
    for tl in range(3): pack4(KB+4+tl*4, acc(1,0,tl), acc(1,1,tl))
    pack4(HB_, ACX, ACX+4)
    a(f"ds_write_b128 {vr(A_vHW)}, {vr(HB_,4)}")
    for tl in range(4):
        pack4(QB+tl*4, acc(0,0,tl), acc(0,1,tl))
        a(f"v_cndmask_b32 {vr(QB+tl*4+2)}, 0, {vr(QB+tl*4+2)}, {sr(sMASK48,2)}")
        a(f"v_cndmask_b32 {vr(QB+tl*4+3)}, 0, {vr(QB+tl*4+3)}, {sr(sMASK48,2)}")
    a("s_waitcnt lgkmcnt(0)")
    a("s_barrier")
    a(f"ds_read_b128 {vr(KB,4)}, {vr(A_vPK)}")
    a(f"ds_read_b64 {vr(VB[0],2)}, {vr(A_vPK)} offset:1024")
    a(f"ds_read_b64 {vr(VB[1],2)}, {vr(A_vPK)} offset:1032")
    for tl in range(3):
        for et in range(2):
            d = VB[et] + 2 + tl*2
            cvtpk(d, acc(2,et,tl), acc(2,et,tl)+1); cvtpk(d+1, acc(2,et,tl)+2, acc(2,et,tl)+3)
    BIAS = A_BIAS
    TT = [84, 112, 140, 168]
    def R(tl, k): return TT[tl] + k
    order = (3, 2, 1, 0)
    for tl in (3, 2, 1):
        mfma(R(tl,0), KB+tl*4, QB+tl*4); mfma(R(tl,4), KB+4+tl*4, QB+tl*4)
    mfma(R(0,4), KB+4, QB)
    a("s_waitcnt lgkmcnt(0)")
    mfma(R(0,0), KB, QB)
    for tl in order:
        for i, (s_, o) in enumerate(((0,0),(0,2),(4,0),(4,2))):
            a(f"v_cndmask_b32 {vr(R(tl,8+i))}, {vr(R(tl,s_+o))}, {vr(R(tl,s_+o+1))}, {sr(sODD,2)}")
        bp = BIAS if tl else BIAS + 4
        for i, b in enumerate((bp, bp+1, BIAS+2, BIAS+3)):
            a(f"v_fma_f32 {vr(R(tl,8+i))}, {vr(R(tl,8+i))}, {sr(sK0)}, {vr(b)}")
        a(f"v_max3_f32 {vr(R(tl,12))}, {vr(R(tl,8))}, {vr(R(tl,9))}, {vr(R(tl,10))}")
        a(f"v_max_f32 {vr(R(tl,12))}, {vr(R(tl,12))}, {vr(R(tl,11))}")
        a(f"v_mov_b32 {vr(R(tl,13))}, {vr(R(tl,12))}")
    for tl in order: a(f"v_permlane32_swap_b32 {vr(R(tl,12))}, {vr(R(tl,13))}")
    for tl in order: a(f"v_max_f32 {vr(R(tl,12))}, {vr(R(tl,12))}, {vr(R(tl,13))}")
    for tl in order: a(f"v_mov_b32 {vr(R(tl,13))}, {vr(R(tl,12))}")
    for tl in order: a(f"v_permlane16_swap_b32 {vr(R(tl,12))}, {vr(R(tl,13))}")
    for tl in order: a(f"v_max_f32 {vr(R(tl,12))}, {vr(R(tl,12))}, {vr(R(tl,13))}")
    for tl in order:
        for i in range(4): a(f"v_sub_f32 {vr(R(tl,8+i))}, {vr(R(tl,8+i))}, {vr(R(tl,12))}")
        for i in range(4): a(f"v_exp_f32 {vr(R(tl,8+i))}, {vr(R(tl,8+i))}")
    for tl in order:
        for i in range(4): a(f"v_cvt_pk_bf16_f32 {vr(R(tl,16+i))}, {vr(R(tl,8+i))}, 0")
        for i in range(4): a(f"v_lshlrev_b32 {vr(R(tl,16+i))}, {vr(A_SH)}, {vr(R(tl,16+i))}")
        if tl == 3: continue
        p = tl + 1
        mfma(R(p,20), A_ONES, R(p,16)); mfma(R(p,0), VB[0]+2*p, R(p,16)); mfma(R(p,4), VB[1]+2*p, R(p,16))
    a("s_nop 1")
    mfma(R(0,20), A_ONES, R(0,16)); mfma(R(0,0), VB[0], R(0,16)); mfma(R(0,4), VB[1], R(0,16))
    for tl in order:
        a(f"v_rcp_f32 {vr(R(tl,12))}, {vr(R(tl,20))}")
        if tl: a(f"s_add_u32 {sr(sT0)}, {sr(sOST)}, {tl*16384}")
        else: a("s_nop 0")
        for i in range(8): a(f"v_mul_f32 {vr(R(tl,i))}, {vr(R(tl,i))}, {vr(R(tl,12))}")
        for i in range(4): cvtpk(R(tl,24+i), R(tl,2*i), R(tl,2*i+1))
        a(f"v_cndmask_b32 {vr(R(tl,26))}, 0, {vr(R(tl,26))}, {sr(sMASK48,2)}")
        a(f"v_cndmask_b32 {vr(R(tl,27))}, 0, {vr(R(tl,27))}, {sr(sMASK48,2)}")
        a(f"buffer_store_dwordx4 {vr(R(tl,24),4)}, {vr(vL16)}, {sr(SWS,4)}, {sr(sT0 if tl else sOST)} offen sc1")
    if flag("wolate") or flag("wosplit"): a("s_barrier")
    stamp("A attn done")
    a(f"v_mov_b32 v24, {sr(sTAG)}")
    a(f"v_mov_b32 v25, {sr(sTAG+1)}")
    a(f"v_lshlrev_b32 v26, 9, {vr(vLANE)}")
    a("s_waitcnt vmcnt(0)")
    a("s_mov_b64 exec, 3")
    a(f"buffer_store_dwordx2 v[24:25], v26, {sr(SWS,4)}, {sr(sF2W)} offen sc1")
    a("s_mov_b64 exec, -1")
    stamp("A flag set")
    a(f"s_cmp_eq_u32 {sr(sHP)}, 7")
    a("s_cbranch_scc1 L_idle2")
    a("s_branch L_phase2")

    a.label("L_cB")
    a.vm = []
    vXR = [10, 11, 12, 13]; vWB = [14, 15]
    SB = [24, 56]; AB = 112
    def accB(seg, t, tl): return AB + ((seg*2+t)*4+tl)*4
    x_read_addr(*vXR)
    for t in range(2): w_read_addr(vWB[t], t, 2, BW[0])
    a("s_waitcnt lgkmcnt(0)")
    l2_prefetch()
    late_srds(); wo_prefetch_early(); late_setup(False); setup_B_consts()
    a(f"v_lshlrev_b32 {vr(vT0)}, 2, {vr(vI16)}")
    a(f"v_add_u32 {vr(vT0)}, {B_SY}, {vr(vT0)}")
    a(f"v_mov_b32 {vr(vT1)}, 0")
    a(f"ds_write_b32 {vr(vT0)}, {vr(vT1)}")
    a("s_waitcnt lgkmcnt(0)")
    compute_tag()
    stamp("B setup done")
    def breads(c, ks, S):
        xr = vXR[(2 if c >= 4 else 0) + ks]; xo = BX[c] - (65536 if c >= 4 else 0)
        wb = BW[c % 2] - BW[0] + ks*4*2048
        out = []
        def wfrag(seg, t):
            for h in range(2):
                out.append(f"ds_read_b64_tr_b16 {vr(S+16+(seg*2+t)*4+2*h,2)}, {vr(vWB[t])} offset:{wb + seg*1024 + h*512}")
        def xfrag(tl): out.append(f"ds_read_b128 {vr(S+tl*4,4)}, {vr(xr)} offset:{xo + tl*2048}")
        xfrag(0); wfrag(0, 0); xfrag(1); xfrag(2); xfrag(3); wfrag(0, 1); wfrag(1, 0); wfrag(1, 1)
        return out
    def bm(S, first):
        ms = []
        for seg in range(2):
            for t in range(2):
                for tl in range(4):
                    d = accB(seg, t, tl); W = S+16+(seg*2+t)*4; X = S+tl*4
                    c0 = B_EPS4 if seg == 0 else None
                    ms.append((lambda d=d, X=X, W=W, c0=c0: mfma(d, X, W, c0 if first else d), R4(W) + R4(X)))
        return ms
    T = 176
    for c in range(7):
        a.c(f"---- B chunk {c}")
        a("s_waitcnt lgkmcnt(0)")
        a.ds_all()
        a("s_barrier")
        pf_stag(c + opt("pf0", 2) + opt("pfinit", 2))
        r0 = breads(c, 0, SB[0])
        if c == 0:
            for r in r0: a.dsr(r)
        else:
            sched_step(bm(SB[1], False), r0, 2)
        if c < 6:
            sched_step(bm(SB[0], c == 0), breads(c, 1, SB[1]), 4)
    m0, m1 = bm(SB[0], False), bm(SB[1], False)
    sched_step(m0[:12], breads(6, 1, SB[1]), 4)
    for fn, regs in m1[:8]:
        a.need(regs); fn()
    rest = m0[12:] + m1[8:]
    ph = phi_ops(AB, 32, T)
    per = -(-len(ph) // (len(rest) - 3))
    for i, (fn, regs) in enumerate(rest):
        a.need(regs); fn()
        if i == 3: a("s_nop 3")
        if i >= 3:
            for _ in range(per):
                if ph: a(ph.pop(0))
    for t_ in ph: a(t_)
    a.ds_all()
    stamp("B gemm done")
    PK = 24; PV = 40; KV = 56
    for ks in range(2):
        for dt in range(2): pack4(PK+(ks*2+dt)*4, accB(0,dt,2*ks), accB(0,dt,2*ks+1))
    for ks in range(2):
        for et in range(2): pack4(PV+(ks*2+et)*4, accB(1,et,2*ks), accB(1,et,2*ks+1))
    a(f"v_mov_b32 {vr(T)}, 0x3f803f80")
    for ks in range(2):
        for i in range(4):
            r = PV+(ks*2+1)*4+i
            a(f"v_cndmask_b32 {vr(r)}, {vr(r)}, {vr(T)}, {sr(sONE,2)}")
    a(f"s_cmp_eq_u32 {sr(sMP)}, 0")
    a("s_nop 0")
    a("s_cbranch_scc1 L_B_s0")
    for dts, base in ((0, KV), (1, KV+8)):
        for ks in range(2):
            for et in range(2): mfma(base+et*4, PK+(ks*2+dts)*4, PV+(ks*2+et)*4, None if ks == 0 else base+et*4)
    a("s_branch L_B_s1")
    a.label("L_B_s0")
    for dts, base in ((1, KV), (0, KV+8)):
        for ks in range(2):
            for et in range(2): mfma(base+et*4, PK+(ks*2+dts)*4, PV+(ks*2+et)*4, None if ks == 0 else base+et*4)
    a.label("L_B_s1")
    a(f"s_lshl_b32 {sr(sT1)}, {sr(sRB)}, 10")
    a(f"s_add_u32 {sr(sT1)}, {sr(sT1)}, {sr(sKVO)}")
    a("s_nop 1")
    a(f"ds_write_b128 {vr(B_vSW)}, {vr(KV,4)}")
    a(f"ds_write_b128 {vr(B_vSW)}, {vr(KV+4,4)} offset:1024")
    a("s_waitcnt lgkmcnt(0)")
    a("s_barrier")
    a(f"ds_read_b128 {vr(KV+16,4)}, {vr(B_vSR)}")
    a(f"ds_read_b128 {vr(KV+20,4)}, {vr(B_vSR)} offset:1024")
    a("s_waitcnt lgkmcnt(0)")
    for i in range(0, 8, 2):
        a(f"v_pk_add_f32 {vr(KV+8+i,2)}, {vr(KV+8+i,2)}, {vr(KV+16+i,2)}")
    pack4(KV+24, KV+8, KV+12)
    a(f"buffer_store_dwordx4 {vr(KV+24,4)}, {vr(vL16)}, {sr(SWS,4)}, {sr(sT1)} offen sc1")
    lds_signal(B_vSY, 24)
    stamp("B partial stored")
    a("s_waitcnt vmcnt(0)")
    set_flag(sF1W, T)
    stamp("B flag1 set")
    poll_issue(sF1R, T+2)
    poll_finish(sF1R, T+2, T+4)
    stamp("B flag1 seen")
    PL = 112; T = 24
    for r in range(16):
        if r % 4 == 0 and r: a(f"s_add_u32 {sr(sT1)}, {sr(sKVO)}, {r*1024}")
        a.vmem(f"buffer_load_dwordx4 {vr(PL+r*4,4)}, {vr(vL16)}, {sr(SWS,4)}, {sr(sKVO if r < 4 else sT1)} offen offset:{(r%4)*1024} sc1", f"pl{r}")
    for r in range(16):
        a.wait_vm(f"pl{r}")
        mfma(T, B_SEL, PL+r*4, None if r == 0 else T)
        mfma(T+4, B_SEL+4, PL+r*4, None if r == 0 else T+4)
    a("s_nop 6")
    cvtpk(T+8, T, T+1); cvtpk(T+9, T+2, T+3)
    cvtpk(T+10, T+4, T+5); cvtpk(T+11, T+6, T+7)
    a(f"ds_write_b64 {vr(B_vKW)}, {vr(T+8,2)}")
    a(f"ds_write_b64 {vr(B_vKW)}, {vr(T+10,2)} offset:1024")
    a("s_waitcnt lgkmcnt(0)")
    lds_signal(B_vSK)
    a(f"v_subrev_u32 {vr(vT2)}, {B_KVS}, {vr(B_vSW)}")
    stamp("B kv done")
    lds_spin([(B_vSK, 0), (B_vPQ, 0)], 3, vT0)
    a(f"ds_read_b128 {vr(64,4)}, {vr(vT2)}")
    a(f"ds_read_b128 {vr(68,4)}, {vr(vT2)} offset:1024")
    a.vm = []
    o_B(64, 24, 112, "B")

def phase2():
    a.label("L_phase2")
    a.vm = []
    ACC = [4, 20]; OF = 36; WF = 100; T = 228
    a(f"v_mov_b32 {vr(T)}, 0")
    a(f"v_mov_b32 {vr(T+1)}, 0")
    a(f"v_lshlrev_b32 {vr(T+2)}, 3, {vr(vLANE)}")
    a(f"v_add_u32 {vr(T+2)}, {P2_ZERO}, {vr(T+2)}")
    a(f"ds_write_b64 {vr(T+2)}, {vr(T,2)}")
    def wreads(h, slot):
        out = []
        for t in range(4):
            base = vWO[t ^ (2 if h & 1 else 0)]
            for hf in range(2):
                out.append(f"ds_read_b64_tr_b16 {vr(WF+slot*16+t*4+hf*2,2)}, {vr(base)} offset:{h*3584 + hf*2048}")
        return out
    if flag("p2pipe"):
        vWB_ = [250, 251, 252, 253]
        for t in range(4): a(f"v_add_u32 {vr(vWB_[t])}, 57344, {vr(vWO[t])}")
        a("s_waitcnt vmcnt(0) lgkmcnt(0)")
        a("s_barrier")
        stamp("P2 wo landed")
        def wr2(step):
            br, h = divmod(step, 16); out = []
            for t in range(4):
                base = (vWO if br == 0 else vWB_)[t ^ (2 if h & 1 else 0)]
                for hf in range(2):
                    out.append(f"ds_read_b64_tr_b16 {vr(WF+(step%8)*16+t*4+hf*2,2)}, {vr(base)} offset:{h*3584 + hf*2048}")
            return out
        def oload(h, tag):
            if h % 4 == 0: a(f"s_add_u32 {sr(sT1)}, {sr(sOLD)}, {h*1024}")
            a.vmem(f"buffer_load_dwordx4 {vr(OF+h*4,4)}, {vr(vL16)}, {sr(SWS,4)}, {sr(sT1)} offen offset:{(h%4)*1024} sc1", f"{tag}{h}")
        poll_issue(sF2R, T+4)
        a.ds_all()
        for st in range(8):
            for r in wr2(st): a.dsr(r)
        poll_finish(sF2R, T+4, T+2)
        stamp("P2 flags seen A")
        for h in range(16): oload(h, "o")
        a(f"s_add_u32 {sr(sF2R)}, {sr(sF2R)}, 2048")
        a(f"s_add_u32 {sr(sOLD)}, {sr(sOLD)}, {8*16384}")
        CHK = opt("chk", 12)
        for st in range(32):
            br, h = divmod(st, 16)
            if st == CHK - 3: poll_issue(sF2R, T+4)
            if st == CHK:
                a.wait_vm_all()
                a(f"v_cmp_ne_u64 vcc, {sr(sTAG,2)}, {vr(T+4,2)}")
                a(f"s_mov_b32 {sr(sBR)}, 0")
                a("s_cbranch_vccnz L_p2_late")
                for hh in range(CHK): oload(hh, "p")
                a(f"s_mov_b32 {sr(sBR)}, 1")
                a.label("L_p2_late")
                a.vm = []
            if st == 16:
                stamp("P2 A half done")
                a(f"s_cmp_eq_u32 {sr(sBR)}, 1")
                a("s_cbranch_scc1 L_p2_haveB")
                poll_issue(sF2R, T+4)
                poll_finish(sF2R, T+4, T+2)
                a.vm = []
                for hh in range(CHK): oload(hh, "p")
                a.label("L_p2_haveB")
                if CHK % 4: a(f"s_add_u32 {sr(sT1)}, {sr(sOLD)}, {(CHK//4)*4096}")
                for hh in range(CHK, 16): oload(hh, "p")
                a.vmem(f"buffer_load_dword {vr(T+6)}, {vr(vGT)}, {sr(SWS,4)}, {sr(sGT)} offen sc1", "g")
                stamp("P2 flags seen B")
            if st < CHK: a.wait_vm(f"o{h}")
            if br == 1: a.wait_vm(f"p{h}")
            rd = wr2(st + 8) if st + 8 < 32 else []
            for t in range(4):
                W = WF + (st % 8)*16 + t*4
                a.need(R4(W))
                mfma(ACC[br]+t*4, W, OF+h*4, None if h == 0 else ACC[br]+t*4)
                for _ in range(2):
                    if rd: a.dsr(rd.pop(0))
        a.ds_all()
    else:
        for br in range(2):
            if br == 0:
                a("s_waitcnt lgkmcnt(0)" if flag("wosplit") else "s_waitcnt vmcnt(0) lgkmcnt(0)")
                a("s_barrier")
                stamp("P2 wo landed")
            else:
                if flag("wosplit2"): a.wait_vm_all()
                if flag("wosplit"): a("s_barrier")
                for t in range(4): a(f"v_add_u32 {vr(vWO[t])}, 57344, {vr(vWO[t])}")
                a(f"s_add_u32 {sr(sF2R)}, {sr(sF2R)}, 2048")
                a(f"s_add_u32 {sr(sOLD)}, {sr(sOLD)}, {8*16384}")
            poll_issue(sF2R, T+4)
            for h in range(8):
                for r in wreads(h, h): a(r)
            poll_finish(sF2R, T+4, T+2)
            stamp(f"P2 flags seen {'AB'[br]}")
            for h in range(16):
                if h % 4 == 0 and h: a(f"s_add_u32 {sr(sT1)}, {sr(sOLD)}, {h*1024}")
                a.vmem(f"buffer_load_dwordx4 {vr(OF+h*4,4)}, {vr(vL16)}, {sr(SWS,4)}, {sr(sOLD if h < 4 else sT1)} offen offset:{(h%4)*1024} sc1", f"o{h}")
            if br == 1:
                a.vmem(f"buffer_load_dword {vr(T+6)}, {vr(vGT)}, {sr(SWS,4)}, {sr(sGT)} offen sc1", "g")
            elif flag("wosplit2"):
                for n in range(7):
                    a(f"s_add_u32 m0, {sr(sW1K)}, {P2_WO + 57344 + n*8192}")
                    a(f"s_mov_b32 {sr(sT2)}, {n*57344}")
                    a.vmem(f"buffer_load_dwordx4 {vr(vWOD)}, {sr(SWOB,4)}, {sr(sT2)} offen lds", "wob")
            a("s_waitcnt lgkmcnt(0)")
            for h in range(16):
                a.wait_vm(f"o{h}")
                rd = wreads(h + 8, h) if h < 8 else []
                if h == 8: a("s_waitcnt lgkmcnt(15)")
                if h >= 14: a(f"s_waitcnt lgkmcnt({(15-h)*8})")
                for t in range(4):
                    mfma(ACC[br]+t*4, WF+(h%8)*16+t*4, OF+h*4, None if h == 0 else ACC[br]+t*4)
                    for _ in range(2):
                        if rd: a(rd.pop(0))
            if br == 0: stamp("P2 A half done")
    a.wait_vm("g")
    a("s_nop 3")
    for t in range(4):
        A_, B_ = ACC[0]+t*4, ACC[1]+t*4
        for i in range(4): a(f"v_sub_f32 {vr(A_+i)}, {vr(A_+i)}, {vr(B_+i)}")
        for i in range(4): a(f"v_fma_f32 {vr(A_+i)}, {vr(A_+i)}, {vr(T+6)}, {vr(B_+i)}")
        cvtpk(OF+2*t, A_, A_+1); cvtpk(OF+2*t+1, A_+2, A_+3)
        a(f"ds_write_b64 {vr(vCW)}, {vr(OF+2*t,2)} offset:{t*32}")
    a("s_waitcnt lgkmcnt(0)")
    a(f"ds_read_b128 {vr(OF+8,4)}, {vr(vCR)}")
    a(f"ds_read_b128 {vr(OF+12,4)}, {vr(vCR)} offset:{8*144}")
    a(f"s_mov_b32 {sr(sT0)}, {8*896}")
    a("s_waitcnt lgkmcnt(1)")
    OM = " sc1" if flag("outsc1") else (" nt" if flag("outnt") else "")
    a(f"buffer_store_dwordx4 {vr(OF+8,4)}, {vr(vOUT)}, {sr(SOUT,4)}, 0 offen{OM}")
    a("s_waitcnt lgkmcnt(0)")
    a(f"buffer_store_dwordx4 {vr(OF+12,4)}, {vr(vOUT)}, {sr(SOUT,4)}, {sr(sT0)} offen{OM}")
    stamp("P2 done")
    a("s_endpgm")
    a.label("L_idle2")
    a(f"s_cmp_lg_u32 {sr(sRB)}, 15")
    a("s_cbranch_scc1 L_end")
    a(f"v_lshlrev_b32 v10, 5, v0")
    a(f"s_mov_b32 {sr(sCNT)}, 0")
    a.label("L_jan")
    for k in range(4):
        a(f"s_mov_b32 {sr(sT0)}, {WS_F2 + k*16384}")
        a(f"buffer_load_dwordx2 {vr(12+2*k,2)}, v10, {sr(SWS,4)}, {sr(sT0)} offen sc1")
    a(f"s_add_u32 {sr(sCNT)}, {sr(sCNT)}, 1")
    a("s_waitcnt vmcnt(0)")
    a(f"v_cmp_ne_u64 {sr(sT0,2)}, {sr(sTAG,2)}, v[12:13]")
    a(f"v_cmp_ne_u64 {sr(sT2,2)}, {sr(sTAG,2)}, v[14:15]")
    a(f"s_or_b64 {sr(sT0,2)}, {sr(sT0,2)}, {sr(sT2,2)}")
    a(f"v_cmp_ne_u64 {sr(sT2,2)}, {sr(sTAG,2)}, v[16:17]")
    a(f"s_or_b64 {sr(sT0,2)}, {sr(sT0,2)}, {sr(sT2,2)}")
    a(f"v_cmp_ne_u64 {sr(sT2,2)}, {sr(sTAG,2)}, v[18:19]")
    a(f"s_or_b64 {sr(sT0,2)}, {sr(sT0,2)}, {sr(sT2,2)}")
    a("s_cbranch_scc0 L_jand")
    a(f"s_cmp_gt_u32 {sr(sCNT)}, 0x40000")
    a("s_cbranch_scc1 L_jand")
    a("s_sleep 4")
    a("s_branch L_jan")
    a.label("L_jand")
    a("s_barrier")
    a(f"s_cmp_lg_u32 {sr(sWAVE)}, 0")
    a("s_cbranch_scc1 L_end")
    a(f"s_mov_b32 {sr(sT0)}, {WS_EPOCH}")
    set_flag(sT0, 10)
    a.label("L_end")
    a("s_endpgm")

prologue()
loader()
a.vm = []
compute()
phase2()

hdr = f"""; fused gated-mix kernel: generated by gen/gen6.py
; @launch grid=(256,1,1) block=(512,1,1) lds={LDS_BYTES}
.amdgcn_target "amdgcn-amd-amdhsa--gfx950"
.text
.globl {NAME}_kernel
.p2align 8
.type {NAME}_kernel,@function
"""
ftr = f"""
.section .rodata,"a"
.p2align 6
.amdhsa_kernel {NAME}_kernel
  .amdhsa_next_free_vgpr 256
  .amdhsa_next_free_sgpr 102
  .amdhsa_accum_offset 256
  .amdhsa_group_segment_fixed_size 0
  .amdhsa_kernarg_size 80
  .amdhsa_user_sgpr_count 2
  .amdhsa_user_sgpr_kernarg_segment_ptr 1
  .amdhsa_system_sgpr_workgroup_id_x 1
.end_amdhsa_kernel
"""
out = [x for x in sys.argv[1:] if not x.startswith("--")]
path = out[0] if out else f"cdna_kernels/{NAME}.s"
open(path, "w").write(hdr + "\n".join(a.lines) + ftr)
print("wrote", path, len(a.lines), "lines")
```

```python
import sys, struct, re

NAME = "gated_mix__sliding_local_dilated__linear_attn_block__prompt"
def flag(n): return ("--" + n) in sys.argv
def opt(n, d):
    for x in sys.argv:
        if x.startswith(f"--{n}="): return int(x.split("=")[1])
    return d
STAMPS, DBGST, FINE = flag("stamps"), flag("dbgstamps"), flag("fine")
ROT = flag("rot")

WS_EPOCH = 0
WS_F1 = 0x1000
WS_F2 = 0x10000
WS_KV = 0x40000
WS_GATE = 0x180000
WS_F3 = 0x30000
WS_AT = 0x600000
WS_O = 0x200000
WS_STAMP = 0x800000
WS_SIZE = 0x900000

L_X = [0, 16384, 32768]
L_W = [49152, 73728, 98304]
R0 = 122880
A_HALO = R0
A_HB = R0 + 14336
A_EX = A_HB + 4096
BX = [c*16384 for c in range(7)]
BW = [114688, 131072]
BQS = [131072, 139264, 114688, 122880, 149504, 131072, 139264]
B_GW = 147456
B_KVS = B_GW + 2048
B_KVF = B_KVS + 8192
B_SY = B_KVF + 4096
assert B_SY + 64 <= 163840
P2_WO = 0
P2_ZERO = 57344
P2_G = 57856
P2_CB = 58368
P2_CBSZ = 64 * 272
LDS_BYTES = 163840

LOG2E = 1.4426950408889634
def f2u(x): return struct.unpack("<I", struct.pack("<f", x))[0]

class Asm:
    def __init__(self):
        self.lines = []; self.vm = []; self.lbl = 0; self.ds = []
    def __call__(self, s): self.lines.append("    " + s)
    def c(self, s): self.lines.append("    ; " + s)
    def label(self, name): self.lines.append(name + ":")
    def newlabel(self, p="L"):
        self.lbl += 1; return f"{p}_{self.lbl}"
    def vmem(self, s, tag): self(s); self.vm.append(tag)
    def vmem_unc(self, s): self(s)
    def wait_vm(self, tag, extra=""):
        idx = max(i for i, t in enumerate(self.vm) if t == tag)
        n = len(self.vm) - 1 - idx
        assert n <= 63
        self(f"s_waitcnt vmcnt({n}){extra}")
        self.vm = self.vm[idx + 1:]
    def wait_vm_all(self, extra=""):
        self(f"s_waitcnt vmcnt(0){extra}"); self.vm = []
    def dsr(self, text):
        m = re.search(r"v\[(\d+):(\d+)\]", text)
        self(text); self.ds.append(set(range(int(m.group(1)), int(m.group(2)) + 1)))
    def need(self, regs):
        regs = set(regs)
        idx = max((i for i, r in enumerate(self.ds) if r & regs), default=-1)
        if idx < 0: return
        n = len(self.ds) - 1 - idx
        self(f"s_waitcnt lgkmcnt({min(n, 15)})")
        self.ds = self.ds[idx + 1:] if n <= 15 else self.ds[-15:]
    def ds_all(self): self.ds = []

def vr(b, n=1): return f"v{b}" if n == 1 else f"v[{b}:{b+n-1}]"
def sr(b, n=1): return f"s{b}" if n == 1 else f"s[{b}:{b+n-1}]"
a = Asm()

sROT = 3
sU, sMP, sROLE, sEXB = 4, 5, 6, 7
SX, SW, SWS, SWOA, SWOB, SOUT, SG = 8, 12, 16, 20, 24, 28, 32
sWAVE, sMI, sNI, sRB, sHP, sTYPE = 36, 37, 38, 39, 40, 41
sTAG = 42
sT0, sT1, sT2, sT3 = 44, 45, 46, 47
sW1K, sU4K, sU6K = 48, 49, 50
sSOX, sSOW, sSOX2 = 51, 52, 53
sMASK48, sODD, sONE, sEXEC = 54, 56, 58, 60
sCB, sHALF, sCNT, sJ = 62, 63, 64, 65
sPC = 66
sL2E, sEPS = 68, 70
sST = 72
sPTR = 76
sOST, sF2W, sF2R, sOLD = 76, 77, 78, 79
sGT, sKVO, sF1W, sF1R, sK0, sBR, sGST = 80, 81, 82, 83, 84, 85, 86
sAT, sF3 = 87, 90

vLANE, vI16, vG = 1, 2, 3
vT0, vT1, vT2, vT3, vT4, vT5 = 4, 5, 6, 7, 8, 9
vDUM = 23
vL16, vPOLL, vWOD = 236, 237, 238
vWO = [240, 241, 242, 243]
vGT, vCW, vCR, vGR, vGW, vOUT = 244, 245, 246, 247, 248, 249

stamp_idx = [0]
def stamp(name, src=None):
    if DBGST:
        i = stamp_idx[0]; stamp_idx[0] += 1
        if i > 15: return
        L = a.newlabel("L_st")
        a.c(f"stamp {i}: {name}")
        a(f"s_and_b32 s74, s2, 127")
        a(f"s_and_b32 s75, {sr(sWAVE)}, 3")
        a(f"s_or_b32 s74, s74, s75")
        if name.startswith("P2"): a(f"s_or_b32 s74, s74, s2"); a(f"s_or_b32 s74, s74, {sr(sWAVE)}")
        a(f"s_cmp_lg_u32 s74, 0")
        a(f"s_cbranch_scc1 {L}")
        a(f"s_memrealtime {sr(sST,2)}")
        a("s_waitcnt lgkmcnt(0)")
        a(f"s_sub_u32 {sr(sST)}, {sr(sST)}, s98")
        a(f"v_mov_b32 v22, {sr(sST)}")
        a(f"v_mov_b32 v21, {i*4}")
        a(f"s_mov_b64 {sr(sST,2)}, exec")
        a("s_mov_b64 exec, 1")
        a.vmem_unc(f"global_store_dword v21, v22, s[96:97]")
        a(f"s_mov_b64 exec, {sr(sST,2)}")
        a.label(L)
        return
    if not STAMPS: return
    i = stamp_idx[0]; stamp_idx[0] += 1
    a.c(f"stamp {i}: {name}")
    if src is None:
        a(f"{'s_memtime' if flag('cyc') else 's_memrealtime'} {sr(sST,2)}")
        a("s_waitcnt lgkmcnt(0)")
    else:
        a(f"s_mov_b32 {sr(sST)}, s{src}")
    a(f"v_mov_b32 v22, {sr(sST)}")
    a(f"s_lshl_b32 s74, s2, 3")
    a(f"s_or_b32 s74, s74, {sr(sWAVE)}")
    a(f"s_lshl_b32 s74, s74, 8")
    a(f"s_or_b32 s74, s74, {WS_STAMP + i*4}")
    a(f"s_mov_b64 {sr(sST,2)}, exec")
    a("s_mov_b64 exec, 1")
    a.vmem_unc(f"buffer_store_dword v22, off, {sr(SWS,4)}, s74")
    a(f"s_mov_b64 exec, {sr(sST,2)}")

def mfma(d, A, B, C=None):
    c = vr(C, 4) if C is not None else "0"
    a(f"v_mfma_f32_16x16x32_bf16 {vr(d,4)}, {vr(A,4)}, {vr(B,4)}, {c}")
def cvtpk(d, x, y): a(f"v_cvt_pk_bf16_f32 {vr(d)}, {vr(x)}, {vr(y)}")
def srd(d, p, n):
    a(f"s_mov_b32 {sr(d)}, {sr(p)}"); a(f"s_mov_b32 {sr(d+1)}, {sr(p+1)}")
    a(f"s_mov_b32 {sr(d+2)}, {n}"); a(f"s_mov_b32 {sr(d+3)}, 0x00020000")

def true_chunk(dst, c):
    if not ROT:
        a(f"s_mov_b32 {sr(dst)}, {c}"); return
    a(f"s_add_u32 {sr(dst)}, {sr(sROT)}, {c}")
    a(f"s_cmp_ge_u32 {sr(dst)}, 7")
    a(f"s_cselect_b32 s75, 7, 0")
    a(f"s_sub_u32 {sr(dst)}, {sr(dst)}, s75")

def prologue():
    a.label(f"{NAME}_kernel")
    if DBGST or STAMPS: a("s_memrealtime s[98:99]")
    a("s_cmp_ge_u32 s2, 256")
    a("s_cbranch_scc1 L_end")
    a(f"s_load_dwordx16 {sr(sPTR,16)}, s[0:1], 0")
    a(f"s_load_dwordx4 {sr(sPTR+16,4)}, s[0:1], 64")
    a(f"s_getpc_b64 {sr(sPC,2)}")
    a.label("L_pc")
    if flag("cpfearly"):
        a("s_cmp_ge_u32 s2, 32")
        a("s_cbranch_scc1 L_nopf")
        a(f"v_lshlrev_b32 {vr(vT1)}, 6, v0")
        a(f"v_min_u32 {vr(vT1)}, L_end-L_pc, {vr(vT1)}")
        a.vmem_unc(f"global_load_dword {vr(vDUM)}, {vr(vT1)}, {sr(sPC,2)}")
        a.label("L_nopf")
    a(f"v_lshrrev_b32 {vr(vT0)}, 6, v0")
    a(f"v_and_b32 {vr(vLANE)}, 63, v0")
    a(f"v_readfirstlane_b32 {sr(sWAVE)}, {vr(vT0)}")
    a(f"v_and_b32 {vr(vI16)}, 15, v0")
    a(f"v_bfe_u32 {vr(vG)}, v0, 4, 2")
    a(f"s_and_b32 {sr(sT0)}, s2, 7")
    a(f"s_lshr_b32 {sr(sJ)}, s2, 3")
    a(f"s_lshr_b32 {sr(sT2)}, {sr(sT0)}, 1")
    a(f"s_lshl_b32 {sr(sT2)}, {sr(sT2)}, 2")
    a(f"s_and_b32 {sr(sT1)}, {sr(sJ)}, 3")
    a(f"s_add_u32 {sr(sRB)}, {sr(sT2)}, {sr(sT1)}")
    a(f"s_and_b32 {sr(sHALF)}, {sr(sT0)}, 1")
    a(f"s_lshl_b32 {sr(sT2)}, {sr(sHALF)}, 2")
    a(f"s_lshr_b32 {sr(sCB)}, {sr(sJ)}, 2")
    a(f"s_and_b32 {sr(sT3)}, {sr(sCB)}, 3")
    a(f"s_add_u32 {sr(sHP)}, {sr(sT2)}, {sr(sT3)}")
    a(f"s_lshr_b32 {sr(sTYPE)}, {sr(sJ)}, 4")
    if ROT:
        a(f"s_lshl_b32 {sr(sT1)}, {sr(sT1)}, 1")
        a(f"s_add_u32 {sr(sROT)}, {sr(sT1)}, {sr(sCB)}")
        a(f"s_cmp_ge_u32 {sr(sROT)}, 7")
        a(f"s_cselect_b32 {sr(sT0)}, 7, 0")
        a(f"s_sub_u32 {sr(sROT)}, {sr(sROT)}, {sr(sT0)}")
    else:
        a(f"s_mov_b32 {sr(sROT)}, 0")
    a(f"s_and_b32 {sr(sU)}, {sr(sWAVE)}, 3")
    a(f"s_lshr_b32 {sr(sROLE)}, {sr(sWAVE)}, 2")
    a(f"s_lshr_b32 {sr(sMP)}, {sr(sU)}, 1")
    a(f"s_and_b32 {sr(sNI)}, {sr(sWAVE)}, 1")
    a(f"s_lshl_b32 {sr(sMI)}, {sr(sMP)}, 1")
    a(f"s_add_u32 {sr(sMI)}, {sr(sMI)}, {sr(sROLE)}")
    a(f"s_lshl_b32 {sr(sW1K)}, {sr(sWAVE)}, 10")
    a(f"s_cmp_eq_u32 {sr(sROLE)}, 0")
    a("s_cbranch_scc1 L_compute")

def late_srds():
    P = sPTR
    srd(SWS, P+18, WS_SIZE)
    a(f"s_load_dwordx2 {sr(sTAG,2)}, {sr(P+18,2)}, {WS_EPOCH}")
    srd(SWOA, P+4, 401408); srd(SWOB, P+10, 401408); srd(SOUT, P+14, 1835008); srd(SG, P+12, 896)
    if DBGST:
        a(f"s_mov_b32 s96, {sr(P+16)}"); a(f"s_mov_b32 s97, {sr(P+17)}")

def compute_tag():
    a(f"s_add_u32 {sr(sTAG)}, {sr(sTAG)}, 0x7f4a7c15")
    a(f"s_addc_u32 {sr(sTAG+1)}, {sr(sTAG+1)}, 0x9e3779b9")

def late_setup(p2):
    T0, T1, T2 = vT0, vT1, vT2
    a(f"s_mov_b32 {sr(sMASK48)}, -1")
    a(f"s_mov_b32 {sr(sMASK48+1)}, 0xffff")
    a(f"v_lshlrev_b32 {vr(vL16)}, 4, {vr(vLANE)}")
    a(f"v_lshlrev_b32 {vr(vPOLL)}, 5, {vr(vI16)}")
    a(f"v_lshlrev_b32 {vr(vGT)}, 2, {vr(vI16)}")
    a(f"s_lshl_b32 {sr(sT0)}, {sr(sRB)}, 1")
    a(f"s_add_u32 {sr(sT0)}, {sr(sT0)}, 1")
    a(f"s_sub_u32 {sr(sT0)}, {sr(sT0)}, {sr(sTYPE)}")
    a(f"s_lshl_b32 {sr(sT0)}, {sr(sT0)}, 2")
    a(f"s_add_u32 {sr(sT0)}, {sr(sT0)}, {sr(sMI)}")
    a(f"s_lshl_b32 {sr(sT1)}, {sr(sHP)}, 1")
    a(f"s_add_u32 {sr(sT1)}, {sr(sT1)}, {sr(sNI)}")
    a(f"s_lshl_b32 {sr(sT2)}, {sr(sT0)}, 5")
    a(f"s_add_u32 {sr(sT2)}, {sr(sT2)}, {sr(sT1)}")
    a(f"s_lshl_b32 {sr(sT2)}, {sr(sT2)}, 10")
    a(f"s_add_u32 {sr(sOST)}, {sr(sT2)}, {WS_O}")
    a(f"s_lshl_b32 {sr(sT2)}, {sr(sT0)}, 4")
    a(f"s_add_u32 {sr(sT2)}, {sr(sT2)}, {sr(sT1)}")
    a(f"s_lshl_b32 {sr(sT2)}, {sr(sT2)}, 5")
    a(f"s_add_u32 {sr(sF2W)}, {sr(sT2)}, {WS_F2}")
    a(f"s_lshl_b32 {sr(sT0)}, {sr(sRB)}, 1")
    a(f"s_add_u32 {sr(sT0)}, {sr(sT0)}, 1")
    a(f"s_sub_u32 {sr(sT0)}, {sr(sT0)}, {sr(sTYPE)}")
    a(f"s_lshl_b32 {sr(sT1)}, {sr(sT0)}, 3")
    a(f"s_add_u32 {sr(sT1)}, {sr(sT1)}, {sr(sWAVE)}")
    a(f"s_lshl_b32 {sr(sT1)}, {sr(sT1)}, 14")
    a(f"s_add_u32 {sr(sOLD)}, {sr(sT1)}, {WS_O}")
    a(f"s_lshl_b32 {sr(sT0)}, {sr(sT0)}, 2")
    a(f"s_lshr_b32 {sr(sT1)}, {sr(sWAVE)}, 1")
    a(f"s_add_u32 {sr(sT1)}, {sr(sT1)}, {sr(sT0)}")
    a(f"s_lshl_b32 {sr(sT1)}, {sr(sT1)}, 9")
    a(f"s_add_u32 {sr(sF2R)}, {sr(sT1)}, {WS_F2}")
    a(f"s_mul_i32 {sr(sT0)}, {sr(sRB)}, 7")
    a(f"s_add_u32 {sr(sT0)}, {sr(sT0)}, {sr(sHP)}")
    a(f"s_lshl_b32 {sr(sT0)}, {sr(sT0)}, 3")
    a(f"s_add_u32 {sr(sT0)}, {sr(sT0)}, {sr(sWAVE)}")
    a(f"s_lshl_b32 {sr(sT1)}, {sr(sT0)}, 11")
    a(f"s_add_u32 {sr(sAT)}, {sr(sT1)}, {WS_AT}")
    a(f"s_lshl_b32 {sr(sT1)}, {sr(sT0)}, 5")
    a(f"s_add_u32 {sr(sF3)}, {sr(sT1)}, {WS_F3}")
    a(f"s_lshl_b32 {sr(sT0)}, {sr(sRB)}, 3")
    a(f"s_add_u32 {sr(sT0)}, {sr(sT0)}, {sr(sWAVE)}")
    a(f"s_lshl_b32 {sr(sT0)}, {sr(sT0)}, 6")
    a(f"s_add_u32 {sr(sGT)}, {sr(sT0)}, {WS_GATE}")
    a(f"v_lshrrev_b32 {vr(T0)}, 3, {vr(vLANE)}")
    a(f"v_and_b32 {vr(T1)}, 7, {vr(vLANE)}")
    a(f"v_lshlrev_b32 {vr(T2)}, 1, {vr(vG)}")
    a(f"v_xor_b32 {vr(T2)}, {vr(T1)}, {vr(T2)}")
    a(f"v_mul_u32_u24 {vr(vOUT)}, 896, {vr(T0)}")
    a(f"s_mul_i32 {sr(sT0)}, {sr(sWAVE)}, {8*896}")
    a(f"s_lshl_b32 {sr(sT1)}, {sr(sHP)}, 7")
    a(f"s_add_u32 {sr(sT0)}, {sr(sT0)}, {sr(sT1)}")
    a(f"v_add_u32 {vr(vWOD)}, {sr(sT0)}, {vr(vOUT)}")
    a(f"v_lshl_add_u32 {vr(vWOD)}, {vr(T2)}, 4, {vr(vWOD)}")
    a(f"v_lshl_add_u32 {vr(vOUT)}, {vr(T1)}, 4, {vr(vOUT)}")
    a(f"s_lshl_b32 {sr(sT0)}, {sr(sRB)}, 3")
    a(f"s_add_u32 {sr(sT0)}, {sr(sT0)}, {sr(sWAVE)}")
    a(f"s_mul_i32 {sr(sT0)}, {sr(sT0)}, {16*896}")
    a(f"s_add_u32 {sr(sT0)}, {sr(sT0)}, {sr(sT1)}")
    a(f"v_add_u32 {vr(vOUT)}, {sr(sT0)}, {vr(vOUT)}")
    a(f"s_mul_i32 {sr(sT0)}, {sr(sWAVE)}, {16*144}")
    a(f"s_add_u32 {sr(sT0)}, {sr(sT0)}, {P2_CB}")
    a(f"v_mul_u32_u24 {vr(vCR)}, 144, {vr(T0)}")
    a(f"v_lshl_add_u32 {vr(vCR)}, {vr(T1)}, 4, {vr(vCR)}")
    a(f"v_add_u32 {vr(vCR)}, {sr(sT0)}, {vr(vCR)}")
    a(f"v_mul_u32_u24 {vr(vCW)}, 144, {vr(vI16)}")
    a(f"v_lshl_add_u32 {vr(vCW)}, {vr(vG)}, 3, {vr(vCW)}")
    a(f"v_add_u32 {vr(vCW)}, {sr(sT0)}, {vr(vCW)}")
    a(f"v_lshrrev_b32 {vr(T0)}, 2, {vr(vI16)}")
    a(f"v_lshl_add_u32 {vr(T1)}, {vr(vG)}, 2, {vr(T0)}")
    a(f"v_lshlrev_b32 {vr(T1)}, 7, {vr(T1)}")
    a(f"v_and_b32 {vr(T2)}, 3, {vr(vI16)}")
    a(f"v_lshl_add_u32 {vr(T1)}, {vr(T2)}, 3, {vr(T1)}")
    a(f"v_lshrrev_b32 {vr(T0)}, 1, {vr(T0)}")
    a(f"v_and_b32 {vr(T2)}, 1, {vr(vG)}")
    a(f"v_lshl_or_b32 {vr(T0)}, {vr(T2)}, 1, {vr(T0)}")
    a(f"v_lshl_add_u32 {vr(vWO[0])}, {vr(T0)}, 5, {vr(T1)}")
    for t in range(1, 4):
        a(f"v_xor_b32 {vr(vWO[t])}, {t*32}, {vr(vWO[0])}")

A_ONES, A_BIAS, A_SH, A_vEX, A_vPK, A_vPV, A_vHW = 216, 220, 226, 227, 228, 229, 230
def setup_A_consts():
    T0, T1, T2, T3, T4 = vT0, vT1, vT2, vT3, vT4
    BIAS = A_BIAS
    a(f"s_mov_b32 {sr(sODD)}, 0xaaaaaaaa"); a(f"s_mov_b32 {sr(sODD+1)}, 0xaaaaaaaa")
    a(f"s_mov_b32 {sr(sK0)}, {f2u(28**-0.5 * LOG2E)}")
    for i in range(4): a(f"v_mov_b32 {vr(A_ONES+i)}, 0x3f803f80")
    a(f"v_and_b32 {vr(T0)}, 1, {vr(vI16)}")
    a(f"v_lshlrev_b32 {vr(A_SH)}, 4, {vr(T0)}")
    a(f"v_lshl_add_u32 {vr(T1)}, {vr(vG)}, 2, {vr(T0)}")
    a(f"v_mov_b32 {vr(T2)}, 0xf149f2ca")
    a(f"v_cmp_le_u32 vcc, {vr(T1)}, {vr(vI16)}")
    a(f"v_add_u32 {vr(T3)}, 2, {vr(T1)}")
    a("s_nop 0")
    a(f"v_cndmask_b32 {vr(BIAS+2)}, {vr(T2)}, 0, vcc")
    a(f"v_cmp_le_u32 vcc, {vr(T3)}, {vr(vI16)}")
    a(f"v_add_u32 {vr(T4)}, 2, {vr(vI16)}")
    a("s_nop 0")
    a(f"v_cndmask_b32 {vr(BIAS+3)}, {vr(T2)}, 0, vcc")
    a(f"v_cmp_ge_u32 vcc, {vr(T1)}, {vr(T4)}")
    a("s_nop 1")
    a(f"v_cndmask_b32 {vr(BIAS+0)}, {vr(T2)}, 0, vcc")
    a(f"v_cmp_ge_u32 vcc, {vr(T3)}, {vr(T4)}")
    a("s_nop 1")
    a(f"v_cndmask_b32 {vr(BIAS+1)}, {vr(T2)}, 0, vcc")
    a(f"s_or_b32 {sr(sT0)}, {sr(sRB)}, {sr(sMI)}")
    a(f"s_cmp_eq_u32 {sr(sT0)}, 0")
    a(f"s_cselect_b32 {sr(sT0)}, 0xf149f2ca, 0")
    a(f"v_min_f32 {vr(BIAS+4)}, {sr(sT0)}, {vr(BIAS+0)}")
    a(f"v_min_f32 {vr(BIAS+5)}, {sr(sT0)}, {vr(BIAS+1)}")
    a(f"s_lshl_b32 {sr(sT0)}, {sr(sNI)}, 11")
    a(f"s_add_u32 {sr(sT1)}, {sr(sT0)}, {A_EX}")
    a(f"s_add_u32 {sr(sT0)}, {sr(sT0)}, {A_HB}")
    a(f"v_add_u32 {vr(A_vEX)}, {sr(sT1)}, {vr(vL16)}")
    a(f"s_lshl_b32 {sr(sT2)}, {sr(sMP)}, 12")
    a(f"v_add_u32 {vr(A_vEX)}, {sr(sT2)}, {vr(A_vEX)}")
    a(f"s_cmp_eq_u32 {sr(sMP)}, 0")
    a(f"s_cselect_b32 {sr(sT2)}, {sr(sT0)}, {sr(sT1)}")
    a(f"v_add_u32 {vr(A_vPK)}, {sr(sT2)}, {vr(vL16)}")
    a(f"s_lshl_b32 {sr(sT2)}, {sr(sMP)}, 10")
    a(f"s_add_u32 {sr(sT0)}, {sr(sT0)}, {sr(sT2)}")
    a(f"v_add_u32 {vr(A_vHW)}, {sr(sT0)}, {vr(vL16)}")

B_vSY, B_vSW, B_vSR, B_vPQ, B_vKW, B_vKR, B_vZR, B_SEL = 216, 217, 218, 219, 220, 221, 222, 224
B_EPS4 = 232
B_vSK = 223
B_vONE = 250
def setup_B_consts():
    a(f"s_mov_b32 {sr(sONE)}, 0x10001000"); a(f"s_mov_b32 {sr(sONE+1)}, 0x10001000")
    a(f"s_mov_b32 {sr(sL2E)}, {f2u(LOG2E)}"); a(f"s_mov_b32 {sr(sL2E+1)}, {f2u(LOG2E)}")
    a(f"s_mov_b32 {sr(sEPS)}, {f2u(1e-6)}"); a(f"s_mov_b32 {sr(sEPS+1)}, {f2u(1e-6)}")
    a(f"s_lshl_b32 {sr(sT0)}, {sr(sU)}, 11")
    a(f"s_add_u32 {sr(sT1)}, {sr(sT0)}, {B_KVS}")
    a(f"v_add_u32 {vr(B_vSW)}, {sr(sT1)}, {vr(vL16)}")
    a(f"s_xor_b32 {sr(sT1)}, {sr(sT0)}, 4096")
    a(f"s_add_u32 {sr(sT1)}, {sr(sT1)}, {B_KVS}")
    a(f"v_add_u32 {vr(B_vSR)}, {sr(sT1)}, {vr(vL16)}")
    a(f"v_mov_b32 {vr(B_vSY)}, {B_SY}")
    a(f"s_lshl_b32 {sr(sT1)}, {sr(sU)}, 2")
    a(f"v_add_u32 {vr(B_vPQ)}, {sr(sT1)}, {vr(B_vSY)}")
    a(f"s_lshl_b32 {sr(sT1)}, {sr(sNI)}, 2")
    a(f"s_add_u32 {sr(sT1)}, {sr(sT1)}, 16")
    a(f"v_add_u32 {vr(B_vSK)}, {sr(sT1)}, {vr(B_vSY)}")
    a(f"v_mov_b32 {vr(B_vONE)}, 1")
    a(f"s_lshl_b32 {sr(sT0)}, {sr(sHP)}, 2")
    a(f"s_add_u32 {sr(sT0)}, {sr(sT0)}, {sr(sU)}")
    a(f"s_lshl_b32 {sr(sT1)}, {sr(sT0)}, 14")
    a(f"s_add_u32 {sr(sKVO)}, {sr(sT1)}, {WS_KV}")
    a(f"s_lshl_b32 {sr(sT1)}, {sr(sT0)}, 9")
    a(f"s_add_u32 {sr(sF1R)}, {sr(sT1)}, {WS_F1}")
    a(f"s_lshl_b32 {sr(sT1)}, {sr(sRB)}, 5")
    a(f"s_add_u32 {sr(sF1W)}, {sr(sF1R)}, {sr(sT1)}")
    a(f"s_lshl_b32 {sr(sT0)}, {sr(sNI)}, 11")
    a(f"s_add_u32 {sr(sT0)}, {sr(sT0)}, {B_KVF}")
    a(f"v_add_u32 {vr(B_vKR)}, {sr(sT0)}, {vr(vL16)}")
    a(f"s_lshl_b32 {sr(sT1)}, {sr(sMP)}, 3")
    a(f"v_add_u32 {vr(B_vKW)}, {sr(sT1)}, {vr(B_vKR)}")
    a(f"v_lshlrev_b32 {vr(B_vZR)}, 8, {vr(vG)}")
    a(f"v_add_u32 {vr(B_vZR)}, {sr(sT0)}, {vr(B_vZR)}")
    a(f"s_lshl_b32 {sr(sT0)}, {sr(sRB)}, 2")
    a(f"s_add_u32 {sr(sT0)}, {sr(sT0)}, {sr(sU)}")
    a(f"s_lshl_b32 {sr(sT0)}, {sr(sT0)}, 7")
    a(f"s_add_u32 {sr(sGST)}, {sr(sT0)}, {WS_GATE}")
    T0, T1, T2 = vT0, vT1, vT2
    a(f"v_lshrrev_b32 {vr(T0)}, 2, {vr(vI16)}")
    a(f"v_and_b32 {vr(T1)}, 1, {vr(vI16)}")
    a(f"v_lshlrev_b32 {vr(T1)}, 4, {vr(T1)}")
    a(f"v_mov_b32 {vr(T2)}, 0x3f80")
    a(f"v_lshlrev_b32 {vr(T1)}, {vr(T1)}, {vr(T2)}")
    a(f"v_cmp_eq_u32 vcc, {vr(T0)}, {vr(vG)}")
    a(f"v_and_b32 {vr(T2)}, 2, {vr(vI16)}")
    a("s_nop 0")
    a(f"v_cndmask_b32 {vr(T1)}, 0, {vr(T1)}, vcc")
    a(f"v_cmp_eq_u32 vcc, 0, {vr(T2)}")
    for i in (2, 3, 4, 5): a(f"v_mov_b32 {vr(B_SEL+i)}, 0")
    a(f"v_cndmask_b32 {vr(B_SEL+0)}, 0, {vr(T1)}, vcc")
    a(f"v_cndmask_b32 {vr(B_SEL+1)}, {vr(T1)}, 0, vcc")
    a(f"v_mov_b32 {vr(B_SEL+6)}, {vr(B_SEL+0)}")
    a(f"v_mov_b32 {vr(B_SEL+7)}, {vr(B_SEL+1)}")
    for i in range(4): a(f"v_mov_b32 {vr(B_EPS4+i)}, {sr(sEPS)}")

def set_flag(soff, vtmp):
    a(f"v_mov_b32 {vr(vtmp)}, {sr(sTAG)}")
    a(f"v_mov_b32 {vr(vtmp+1)}, {sr(sTAG+1)}")
    a("s_mov_b64 exec, 1")
    a.vmem(f"buffer_store_dwordx2 {vr(vtmp,2)}, off, {sr(SWS,4)}, {sr(soff)} sc1", "flag")
    a("s_mov_b64 exec, -1")

def poll_issue(soff, vtmp):
    a.vmem(f"buffer_load_dwordx2 {vr(vtmp,2)}, {vr(vPOLL)}, {sr(SWS,4)}, {sr(soff)} offen sc1", "poll")

def poll_finish(soff, vtmp, v2=None):
    L = a.newlabel("L_poll"); Ld = a.newlabel("L_polld")
    a(f"s_mov_b32 {sr(sCNT)}, 0")
    if flag("poll2"):
        ld = lambda r: a(f"buffer_load_dwordx2 {vr(r,2)}, {vr(vPOLL)}, {sr(SWS,4)}, {sr(soff)} offen sc1")
        a("s_sleep 2")
        a.label(L)
        ld(v2)
        a("s_waitcnt vmcnt(1)")
        a(f"v_cmp_ne_u64 vcc, {sr(sTAG,2)}, {vr(vtmp,2)}")
        a(f"s_add_u32 {sr(sCNT)}, {sr(sCNT)}, 1")
        a(f"s_cbranch_vccz {Ld}")
        ld(vtmp)
        a("s_waitcnt vmcnt(1)")
        a(f"v_cmp_ne_u64 vcc, {sr(sTAG,2)}, {vr(v2,2)}")
        a(f"s_cmp_gt_u32 {sr(sCNT)}, 0x40000")
        a(f"s_cbranch_vccz {Ld}")
        a(f"s_cbranch_scc0 {L}")
        a.label(Ld)
        a.vm = ["poll"]
        return
    a.label(L)
    a("s_waitcnt vmcnt(0)")
    a(f"v_cmp_ne_u64 vcc, {sr(sTAG,2)}, {vr(vtmp,2)}")
    a(f"s_add_u32 {sr(sCNT)}, {sr(sCNT)}, 1")
    a(f"s_cbranch_vccz {Ld}")
    a(f"s_cmp_gt_u32 {sr(sCNT)}, 0x40000")
    a(f"s_cbranch_scc1 {Ld}")
    if opt("psleep", 0): a(f"s_sleep {opt('psleep', 0)}")
    a(f"buffer_load_dwordx2 {vr(vtmp,2)}, {vr(vPOLL)}, {sr(SWS,4)}, {sr(soff)} offen sc1")
    a(f"s_branch {L}")
    a.label(Ld)
    a.vm = []

def lds_signal(addr, off=0):
    a("s_mov_b64 exec, 1")
    a(f"ds_add_u32 {vr(addr)}, {vr(B_vONE)} offset:{off}")
    a("s_mov_b64 exec, -1")

def lds_spin(reads, total, tmp):
    L = a.newlabel("L_spin"); Ld = a.newlabel("L_spind")
    a(f"s_mov_b32 {sr(sCNT)}, 0")
    a.label(L)
    for i, (ad, off) in enumerate(reads): a(f"ds_read_b32 {vr(tmp+i)}, {vr(ad)} offset:{off}")
    a(f"s_add_u32 {sr(sCNT)}, {sr(sCNT)}, 1")
    a("s_waitcnt lgkmcnt(0)")
    for i in range(1, len(reads)): a(f"v_add_u32 {vr(tmp)}, {vr(tmp)}, {vr(tmp+i)}")
    a(f"s_cmp_gt_u32 {sr(sCNT)}, 0x200000")
    a(f"v_readfirstlane_b32 {sr(sT0)}, {vr(tmp)}")
    a(f"s_cbranch_scc1 {Ld}")
    a(f"s_cmp_lg_u32 {sr(sT0)}, {total}")
    a(f"s_cbranch_scc1 {L}")
    a.label(Ld)

def w_read_addr(dst, t, nseg, base):
    t0, t1 = vT0, vT1
    a(f"v_and_b32 {vr(t0)}, 3, {vr(vI16)}")
    a(f"v_lshlrev_b32 {vr(t0)}, 3, {vr(t0)}")
    a(f"s_mul_i32 {sr(sT0)}, {sr(sNI)}, 56")
    if t: a(f"s_add_u32 {sr(sT0)}, {sr(sT0)}, 32")
    a(f"v_add_u32 {vr(t0)}, {sr(sT0)}, {vr(t0)}")
    a(f"v_and_b32 {vr(t1)}, 8, {vr(vI16)}")
    a(f"v_lshlrev_b32 {vr(t1)}, 2, {vr(t1)}")
    a(f"v_xor_b32 {vr(t0)}, {vr(t0)}, {vr(t1)}")
    a(f"v_and_b32 {vr(t1)}, 1, {vr(vG)}")
    a(f"v_lshlrev_b32 {vr(t1)}, 6, {vr(t1)}")
    a(f"v_xor_b32 {vr(t0)}, {vr(t0)}, {vr(t1)}")
    a(f"v_lshrrev_b32 {vr(t1)}, 2, {vr(vI16)}")
    a(f"v_lshl_add_u32 {vr(t0)}, {vr(t1)}, 7, {vr(t0)}")
    a(f"v_mul_u32_u24 {vr(t1)}, {nseg*1024}, {vr(vG)}")
    a(f"v_add_u32 {vr(t0)}, {vr(t0)}, {vr(t1)}")
    a(f"v_add_u32 {vr(dst)}, {base}, {vr(t0)}")

def x_read_addr(d0, d1, d2, d3):
    a(f"v_lshrrev_b32 {vr(vT5)}, 1, {vr(vI16)}")
    a(f"v_xor_b32 {vr(vT5)}, {vr(vG)}, {vr(vT5)}")
    a(f"v_lshlrev_b32 {vr(vT5)}, 4, {vr(vT5)}")
    a(f"v_lshl_add_u32 {vr(vT5)}, {vr(vI16)}, 7, {vr(vT5)}")
    a(f"s_lshl_b32 {sr(sT1)}, {sr(sMP)}, 13")
    a(f"v_add_u32 {vr(d0)}, {sr(sT1)}, {vr(vT5)}")
    a(f"v_xor_b32 {vr(d1)}, 64, {vr(d0)}")
    if d2 is not None:
        a(f"v_add_u32 {vr(d2)}, 65536, {vr(d0)}")
        a(f"v_add_u32 {vr(d3)}, 65536, {vr(d1)}")

def pack4(d, t0, t1):
    cvtpk(d, t0, t0+1); cvtpk(d+1, t0+2, t0+3); cvtpk(d+2, t1, t1+1); cvtpk(d+3, t1+2, t1+3)

def R4(b): return list(range(b, b+4))

def sched_step(ms, rd, tail):
    rd = list(rd); nm = len(ms); nr = len(rd); done = 0
    span = max(1, nm - tail)
    for i, (fn, regs) in enumerate(ms):
        a.need(regs)
        fn()
        want = min(nr, -(-(i + 1) * nr // span))
        while done < want:
            a.dsr(rd[done]); done += 1
    while done < nr:
        a.dsr(rd[done]); done += 1

def o_B(PQ, T, O, p):
    KF = [T, T+4]; ZF = T+8
    a(f"ds_read_b128 {vr(ZF,4)}, {vr(B_vZR)} offset:{1024 + 12*16}")
    a(f"ds_read_b128 {vr(KF[0],4)}, {vr(B_vKR)}")
    a(f"ds_read_b128 {vr(KF[1],4)}, {vr(B_vKR)} offset:1024")
    a("s_waitcnt lgkmcnt(2)")
    for tl in range(2): mfma(O+tl*12+8, ZF, PQ+tl*4)
    a("s_waitcnt lgkmcnt(1)")
    for tl in range(2): mfma(O+tl*12, KF[0], PQ+tl*4)
    a("s_waitcnt lgkmcnt(0)")
    for tl in range(2): mfma(O+tl*12+4, KF[1], PQ+tl*4)
    a("s_nop 1")
    for tl in range(2): a(f"v_add_f32 {vr(O+tl*12+8)}, {sr(sEPS)}, {vr(O+tl*12+8)}")
    for tl in range(2): a(f"v_rcp_f32 {vr(O+tl*12+8)}, {vr(O+tl*12+8)}")
    a(f"s_add_u32 {sr(sT0)}, {sr(sOST)}, 16384")
    a("s_nop 0")
    for tl in range(2):
        b = O+tl*12
        for i in range(8): a(f"v_mul_f32 {vr(b+i)}, {vr(b+i)}, {vr(b+8)}")
        Rr = O+24+tl*4
        for i in range(4): cvtpk(Rr+i, b+2*i, b+2*i+1)
        a(f"v_cndmask_b32 {vr(Rr+2)}, 0, {vr(Rr+2)}, {sr(sMASK48,2)}")
        a(f"v_cndmask_b32 {vr(Rr+3)}, 0, {vr(Rr+3)}, {sr(sMASK48,2)}")
        a(f"buffer_store_dwordx4 {vr(Rr,4)}, {vr(vL16)}, {sr(SWS,4)}, {sr(sT0 if tl else sOST)} offen sc1")
    stamp(p + " o stored")
    a("s_waitcnt vmcnt(0)")
    set_flag(sF2W, T)
    stamp(p + " flag2 set")
    a("s_branch L_bp2")

def phi_ops(base, n, tmp):
    seq = []
    for i in range(0, n, 2): seq.append(f"v_pk_mul_f32 {vr(tmp+i,2)}, {vr(base+i,2)}, {sr(sL2E,2)}")
    for i in range(n): seq.append(f"v_exp_f32 {vr(tmp+i)}, {vr(tmp+i)} clamp")
    for i in range(n): seq.append(f"v_max_f32 {vr(base+i)}, {sr(sEPS)}, {vr(base+i)}")
    for i in range(0, n, 2): seq.append(f"v_pk_add_f32 {vr(base+i,2)}, {vr(base+i,2)}, {vr(tmp+i,2)}")
    return seq

def loader():
    vXG0, vXG1, vWG0, vWG1, vH0, vH1 = 10, 11, 12, 13, 14, 15
    a.c("================ loader waves")
    a(f"s_lshl_b32 {sr(sU4K)}, {sr(sU)}, 12")
    a(f"s_mul_i32 {sr(sU6K)}, {sr(sU)}, 6144")
    a(f"v_lshrrev_b32 {vr(vT0)}, 3, {vr(vLANE)}")
    a(f"v_and_b32 {vr(vT1)}, 7, {vr(vLANE)}")
    a(f"v_xor_b32 {vr(vT2)}, {vr(vT1)}, {vr(vG)}")
    a(f"s_lshl_b32 {sr(sT0)}, {sr(sRB)}, 7")
    a(f"s_lshl_b32 {sr(sT1)}, {sr(sU)}, 5")
    a(f"s_add_u32 {sr(sT0)}, {sr(sT0)}, {sr(sT1)}")
    a(f"s_mul_i32 {sr(sT0)}, {sr(sT0)}, 896")
    a(f"v_mul_u32_u24 {vr(vT3)}, 896, {vr(vT0)}")
    a(f"v_lshl_add_u32 {vr(vT3)}, {vr(vT2)}, 4, {vr(vT3)}")
    a(f"v_add_u32 {vr(vXG0)}, {sr(sT0)}, {vr(vT3)}")
    a(f"v_xor_b32 {vr(vT4)}, 64, {vr(vT3)}")
    a(f"v_add_u32 {vr(vT4)}, {8*896-1024}, {vr(vT4)}")
    a(f"v_add_u32 {vr(vXG1)}, {sr(sT0)}, {vr(vT4)}")
    a(f"v_and_b32 {vr(vT2)}, 1, {vr(vG)}")
    a(f"v_lshlrev_b32 {vr(vT2)}, 1, {vr(vT2)}")
    a(f"v_xor_b32 {vr(vT2)}, {vr(vT1)}, {vr(vT2)}")
    a(f"v_xor_b32 {vr(vT5)}, 4, {vr(vT2)}")
    a(f"v_min_u32 {vr(vT2)}, 6, {vr(vT2)}")
    a(f"v_min_u32 {vr(vT5)}, 6, {vr(vT5)}")
    a(f"s_mul_i32 {sr(sT0)}, {sr(sU)}, {16*2688}")
    a(f"s_mul_i32 {sr(sT1)}, {sr(sHP)}, 112")
    a(f"s_add_u32 {sr(sT0)}, {sr(sT0)}, {sr(sT1)}")
    a(f"v_mul_u32_u24 {vr(vWG0)}, 2688, {vr(vT0)}")
    a(f"v_add_u32 {vr(vWG0)}, {sr(sT0)}, {vr(vWG0)}")
    a(f"v_lshl_add_u32 {vr(vWG1)}, {vr(vT5)}, 4, {vr(vWG0)}")
    a(f"v_add_u32 {vr(vWG1)}, {8*2688}, {vr(vWG1)}")
    a(f"v_lshl_add_u32 {vr(vWG0)}, {vr(vT2)}, 4, {vr(vWG0)}")
    a("s_waitcnt lgkmcnt(0)")
    P = sPTR
    srd(SX, P+0, 1835008)
    a(f"s_cmp_eq_u32 {sr(sTYPE)}, 1")
    a(f"s_cselect_b32 {sr(SW)}, {sr(P+2)}, {sr(P+8)}")
    a(f"s_cselect_b32 {sr(SW+1)}, {sr(P+3)}, {sr(P+9)}")
    a(f"s_mov_b32 {sr(SW+2)}, 1204224")
    a(f"s_mov_b32 {sr(SW+3)}, 0x00020000")
    a("s_cbranch_scc0 L_ldB")
    def issue_x(c, base, tag):
        a(f"s_add_u32 m0, {sr(sU4K)}, {base}")
        a(f"s_mov_b32 {sr(sSOX)}, {c*128}")
        a(f"s_mov_b32 {sr(sSOX2)}, {c*128 + 16*896-2048}")
        a.vmem(f"buffer_load_dwordx4 {vr(vXG0)}, {sr(SX,4)}, {sr(sSOX)} offen lds", tag)
        a.vmem(f"buffer_load_dwordx4 {vr(vXG1)}, {sr(SX,4)}, {sr(sSOX)} offen offset:1024 lds", tag)
        a.vmem(f"buffer_load_dwordx4 {vr(vXG0)}, {sr(SX,4)}, {sr(sSOX2)} offen offset:2048 lds", tag)
        a.vmem(f"buffer_load_dwordx4 {vr(vXG1)}, {sr(SX,4)}, {sr(sSOX2)} offen offset:3072 lds", tag)
    def issue_w(c, base, segs, ubase, tag):
        n = len(segs)
        for v in range(2):
            for i, sg in enumerate(segs):
                a(f"s_add_u32 m0, {sr(ubase)}, {base + v*n*1024 + i*1024 - sg*896}")
                a(f"s_mov_b32 {sr(sSOW)}, {c*172032}")
                off = f" offset:{sg*896}" if sg else ""
                a.vmem(f"buffer_load_dwordx4 {vr(vWG0 if v == 0 else vWG1)}, {sr(SW,4)}, {sr(sSOW)} offen{off} lds", tag)
    def wo_prefetch(srdreg):
        if flag("nowopf"): return
        a(f"s_and_b32 {sr(sT0)}, {sr(sJ)}, 15")
        a(f"s_lshl_b32 {sr(sT0)}, {sr(sT0)}, 2")
        a(f"s_add_u32 {sr(sT0)}, {sr(sT0)}, {sr(sU)}")
        a(f"s_lshl_b32 {sr(sT0)}, {sr(sT0)}, 13")
        a(f"v_lshlrev_b32 {vr(vH0)}, 7, {vr(vLANE)}")
        a.vmem(f"buffer_load_dword {vr(vDUM)}, {vr(vH0)}, {sr(srdreg,4)}, {sr(sT0)} offen", "pfwo")
    def first_stamps(p):
        if STAMPS:
            a("s_memrealtime s[88:89]")
            a("s_waitcnt lgkmcnt(0)")
            stamp(p + " entry", 98); stamp(p + " c0 issued", 96); stamp(p + " c1 issued", 88)
    WO_L1 = [(2,0),(3,0),(2,1),(3,1),(4,1)]; WO_L2 = [(4,0),(5,0),(5,1),(6,1)]
    def wo_one(n, b, counted=False):
        for hw in range(2):
            a(f"s_add_u32 m0, {sr(sW1K)}, {P2_WO + b*57344 + n*8192 - hw*4096}")
            a(f"s_mov_b32 {sr(sT2)}, {n*57344}")
            t_ = f"buffer_load_dwordx4 {vr(vWOD if hw == 0 else 16)}, {sr(SWOA if b==0 else SWOB,4)}, {sr(sT2)} offen lds"
            a.vmem(t_, "wo") if counted else a(t_)
    def chunkA(c):
        issue_x(c, L_X[c % 3], f"c{c}"); issue_w(c, L_W[c % 3], (0, 1, 2), sU6K, f"c{c}")
    chunkA(0)
    if STAMPS: a("s_memrealtime s[96:97]")
    a(f"s_lshl_b32 {sr(sT0)}, {sr(sRB)}, 7")
    a(f"s_sub_u32 {sr(sT0)}, {sr(sT0)}, 16")
    a(f"s_mul_i32 {sr(sT0)}, {sr(sT0)}, 896")
    a(f"v_add_u32 {vr(vH0)}, {sr(sT0)}, {vr(vT3)}")
    a(f"v_add_u32 {vr(vH1)}, {sr(sT0)}, {vr(vT4)}")
    a(f"s_lshl_b32 {sr(sT2)}, {sr(sU)}, 11")
    a(f"s_lshl_b32 {sr(sT1)}, {sr(sU)}, 7")
    a(f"s_add_u32 {sr(sT3)}, {sr(sT1)}, 512")
    a(f"s_add_u32 m0, {sr(sT2)}, {A_HALO}")
    a(f"s_cmp_eq_u32 {sr(sRB)}, 0")
    a(f"s_cselect_b32 {sr(sT1)}, 0, {sr(sT1)}")
    a(f"s_cselect_b32 {sr(sT3)}, 0, {sr(sT3)}")
    a.vmem_unc(f"buffer_load_dwordx4 {vr(vH0)}, {sr(SX,4)}, {sr(sT1)} offen lds")
    a.vmem_unc(f"buffer_load_dwordx4 {vr(vH1)}, {sr(SX,4)}, {sr(sT1)} offen offset:1024 lds")
    a(f"s_cmp_eq_u32 {sr(sU)}, 3")
    a("s_cbranch_scc1 L_ld_sided")
    a(f"s_add_u32 m0, {sr(sT2)}, {A_HALO + 8192}")
    a("s_nop 0")
    a.vmem_unc(f"buffer_load_dwordx4 {vr(vH0)}, {sr(SX,4)}, {sr(sT3)} offen lds")
    a.vmem_unc(f"buffer_load_dwordx4 {vr(vH1)}, {sr(SX,4)}, {sr(sT3)} offen offset:1024 lds")
    a.label("L_ld_sided")
    chunkA(1)
    late_srds()
    first_stamps("L")
    for c in range(7):
        if c == 0:
            n = len([t for t in a.vm if t != "c0"])
            a(f"s_waitcnt vmcnt({n}) lgkmcnt(0)"); a.vm = [t for t in a.vm if t != "c0"]
        else:
            a.wait_vm(f"c{c}")
        a("s_barrier")
        if c == 0: compute_tag()
        if c + 2 < 7: chunkA(c + 2)
        if c == 4:
            wo_prefetch(SWOB); late_setup(True)
            a(f"v_subrev_u32 v16, {32*896}, {vr(vWOD)}")
        if flag("woring") and c >= 5:
            for n, b in (WO_L1 if c == 5 else WO_L2): wo_one(n, b, True)
    a("s_barrier")
    a(f"v_subrev_u32 v16, {32*896}, {vr(vWOD)}")
    def wo_block(b):
        for n in range(7):
            if flag("woring") and (n, b) in WO_L1 + WO_L2: continue
            wo_one(n, b)
    if flag("wosplit"):
        a(f"s_cmp_eq_u32 {sr(sHP)}, 7")
        a("s_cbranch_scc1 L_ld_skipA")
        wo_block(0)
        a.label("L_ld_skipA")
        a("s_barrier")
        a(f"s_cmp_eq_u32 {sr(sHP)}, 7")
        a("s_cbranch_scc1 L_idle2")
        a("s_waitcnt vmcnt(0)")
        if not flag("wosplit2"): wo_block(1)
    else:
        if flag("wolate"): a("s_barrier")
        a(f"s_cmp_eq_u32 {sr(sHP)}, 7")
        a("s_cbranch_scc1 L_idle2")
        wo_block(0)
    stamp("L wo issued")
    a("s_branch L_phase2")
    a.label("L_ldB")
    a.vm = []
    sU2K = sU6K
    a(f"s_lshl_b32 {sr(sU2K)}, {sr(sU)}, 11")
    issue_x(0, BX[0], "c0"); issue_w(0, BW[0], (1, 2), sU4K, "c0")
    if STAMPS: a("s_memrealtime s[96:97]")
    issue_x(1, BX[1], "c1"); issue_w(1, BW[1], (1, 2), sU4K, "c1")
    issue_x(2, BX[2], "c2")
    late_srds()
    first_stamps("M")
    vXR = [16, 17, 18, 19]; vQR = [251, 252]; vGR_ = 15
    for c in range(7):
        a.wait_vm(f"c{c}", " lgkmcnt(0)" if c == 0 else "")
        a("s_barrier")
        if c == 0: compute_tag()
        if 1 <= c <= 5: issue_w(c + 1, BW[(c + 1) % 2], (1, 2), sU4K, f"c{c+1}")
        if c + 3 < 7: issue_x(c + 3, BX[c + 3], f"c{c+3}")
        if c == 3:
            L = a.newlabel("L_gw")
            a(f"s_cmp_lg_u32 {sr(sU)}, 0")
            a(f"s_cbranch_scc1 {L}")
            a(f"v_lshlrev_b32 {vr(vH0)}, 4, {vr(vLANE)}")
            a(f"s_mov_b32 m0, {B_GW}")
            a("s_nop 0")
            a.vmem_unc(f"buffer_load_dwordx4 {vr(vH0)}, {sr(SG,4)}, 0 offen lds")
            a.label(L)
        if c == 4:
            late_setup(False); setup_B_consts()
            x_read_addr(*vXR)
            for t in range(2): w_read_addr(vQR[t], t, 1, BW[0])
            a(f"v_lshlrev_b32 {vr(vGR_)}, 4, {vr(vG)}")
            a(f"v_add_u32 {vr(vGR_)}, {B_GW}, {vr(vGR_)}")
        if c == 5: wo_prefetch(SWOA)
        if c == 6:
            for q in (0, 1): issue_w(q, BQS[q], (0,), sU2K, "g0")
    a("s_barrier")
    stamp("M barH")
    SETS = [24, 52]; AQ = 112; AG = 144; EPS4 = B_EPS4
    def qreads(k, S):
        c, ks = divmod(k, 2)
        xr = vXR[(2 if c >= 4 else 0) + ks]; xo = BX[c] - (65536 if c >= 4 else 0)
        wb = BQS[c] - BW[0] + ks*4096
        out = [f"ds_read_b128 {vr(S,4)}, {vr(xr)} offset:{xo}"]
        out += [f"ds_read_b64_tr_b16 {vr(S+20+2*h,2)}, {vr(vQR[0])} offset:{wb + h*512}" for h in range(2)]
        out += [f"ds_read_b128 {vr(S+tl*4,4)}, {vr(xr)} offset:{xo + tl*2048}" for tl in (1, 2, 3)]
        out += [f"ds_read_b64_tr_b16 {vr(S+24+2*h,2)}, {vr(vQR[1])} offset:{wb + h*512}" for h in range(2)]
        out.append(f"ds_read_b128 {vr(S+16,4)}, {vr(vGR_)} offset:{k*64}")
        return out
    def qm(k, S):
        ms = []
        for t in range(2):
            for tl in range(4):
                d = AQ + (tl*2+t)*4
                ms.append((lambda d=d, t=t, tl=tl: mfma(d, S+20+t*4, S+tl*4, EPS4 if k == 0 else d), R4(S+20+t*4) + R4(S+tl*4)))
        def side():
            L1 = a.newlabel("L_s"); L2 = a.newlabel("L_s")
            C0 = None if k == 0 else AG; C1 = None if k == 0 else AG+4
            a(f"s_cbranch_vccnz {L2}")
            a(f"s_cmp_eq_u32 {sr(sNI)}, 1")
            a(f"s_cbranch_scc1 {L1}")
            mfma(AG, S+16, S+0, C0); mfma(AG+4, S+16, S+4, C1)
            a(f"s_branch {L2}")
            a.label(L1)
            mfma(AG, S+16, S+8, C0); mfma(AG+4, S+16, S+12, C1)
            a.label(L2)
        ms.append((side, R4(S+16)))
        return ms
    a(f"s_cmp_lg_u32 {sr(sHP)}, 0")
    a("s_cselect_b64 vcc, -1, 0")
    groups = [(0, 1), (2, 3, 4), (5, 6)]
    for q in (2, 3): issue_w(q, BQS[q], (0,), sU2K, "g1")
    lds_spin([(B_vSY, 24)], 4, vT0)
    issue_w(4, BQS[4], (0,), sU2K, "g1")
    for g, chs in enumerate(groups):
        a.wait_vm(f"g{g}")
        lds_signal(B_vSY, 32 + 4*g)
        lds_spin([(B_vSY, 32 + 4*g)], 4, vT0)
        a.ds_all()
        ks_list = [2*c + ks for c in chs for ks in range(2)]
        for r in qreads(ks_list[0], SETS[0]): a.dsr(r)
        for i, k in enumerate(ks_list):
            nxt = qreads(ks_list[i+1], SETS[(i+1) & 1]) if i + 1 < len(ks_list) else []
            if not nxt and g == 0:
                a("s_waitcnt lgkmcnt(0)"); a.ds_all()
                lds_signal(B_vSY, 48)
            sched_step(qm(k, SETS[i & 1]), nxt, 2)
        if g == 0:
            lds_spin([(B_vSY, 48)], 4, vT0)
            for q in groups[2]: issue_w(q, BQS[q], (0,), sU2K, "g2")
    a.ds_all()
    stamp("M pass2 done")
    TM = 24
    a("s_nop 4")
    for t_ in phi_ops(AQ, 32, TM): a(t_)
    a(f"s_cbranch_vccnz L_M_nogate")
    for tl in range(2): a(f"v_mul_f32 {vr(AG+tl*4)}, {sr(sL2E)}, {vr(AG+tl*4)}")
    for tl in range(2): a(f"v_exp_f32 {vr(AG+tl*4)}, -{vr(AG+tl*4)}")
    a("s_nop 0")
    for tl in range(2): a(f"v_add_f32 {vr(AG+tl*4)}, 1.0, {vr(AG+tl*4)}")
    for tl in range(2): a(f"v_rcp_f32 {vr(AG+tl*4)}, {vr(AG+tl*4)}")
    a("s_mov_b64 exec, 0xffff")
    for tl in range(2):
        a.vmem_unc(f"buffer_store_dword {vr(AG+tl*4)}, {vr(vGT)}, {sr(SWS,4)}, {sr(sGST)} offen offset:{tl*64} sc1")
    a("s_mov_b64 exec, -1")
    a.label("L_M_nogate")
    PQ = 56
    for tl in range(4):
        d = PQ + tl*4
        pack4(d, AQ+tl*8, AQ+tl*8+4)
        a(f"v_cndmask_b32 {vr(d+2)}, 0, {vr(d+2)}, {sr(sMASK48,2)}")
        a(f"v_cndmask_b32 {vr(d+3)}, 0, {vr(d+3)}, {sr(sMASK48,2)}")
    a(f"v_subrev_u32 {vr(vT1)}, {B_KVS}, {vr(B_vSW)}")
    for tl in range(2): a(f"ds_write_b128 {vr(vT1)}, {vr(PQ+tl*4,4)} offset:{tl*1024}")
    a("s_waitcnt vmcnt(0) lgkmcnt(0)")
    lds_signal(B_vPQ)
    stamp("M pq done")
    lds_spin([(B_vSK, 0)], 2, vT0)
    a.vm = []
    o_B(PQ + 8, 24, 112, "M")

EA_Q = [24, 28]; EA_K = [32, 36]; EA_KP = 40; EA_V = [44, 54]
EA_Q23 = [64, 68]; EA_K23 = [72, 76]; EA_H = 80

def pf_stag(c):
    if not flag("stag") or c > 6: return
    a(f"s_mul_i32 s13, s12, {c}")
    a(f"buffer_load_dword {vr(vDUM)}, v18, {sr(SX,4)}, s13 offen")

def l2_prefetch():
    if flag("nopf"): return
    P = sPTR; SP = SX
    a(f"s_cmp_lt_u32 {sr(sJ)}, 20")
    a(f"s_cselect_b32 {sr(SP)}, {sr(P+2)}, {sr(P+8)}")
    a(f"s_cselect_b32 {sr(SP+1)}, {sr(P+3)}, {sr(P+9)}")
    a(f"s_cselect_b32 {sr(sT2)}, 8, 20")
    a(f"s_mov_b32 {sr(SP+2)}, 1204224")
    a(f"s_mov_b32 {sr(sT3)}, 172032")
    a(f"s_cmp_lt_u32 {sr(sJ)}, 8")
    a(f"s_cselect_b32 {sr(SP)}, {sr(P+0)}, {sr(SP)}")
    a(f"s_cselect_b32 {sr(SP+1)}, {sr(P+1)}, {sr(SP+1)}")
    a(f"s_cselect_b32 {sr(SP+2)}, 1835008, {sr(SP+2)}")
    a(f"s_mov_b32 {sr(SP+3)}, 0x00020000")
    a(f"s_cselect_b32 {sr(sT3)}, 128, {sr(sT3)}")
    a(f"s_cselect_b32 {sr(sT2)}, 0, {sr(sT2)}")
    a(f"s_cselect_b64 vcc, -1, 0")
    a(f"s_sub_u32 {sr(sT2)}, {sr(sJ)}, {sr(sT2)}")
    a(f"s_lshl_b32 {sr(sT2)}, {sr(sT2)}, 6")
    if flag("stag"):
        a(f"s_lshl_b32 {sr(sT1)}, {sr(sU)}, 4")
        a(f"s_add_u32 {sr(sT2)}, {sr(sT2)}, {sr(sT1)}")
        a(f"v_lshrrev_b32 {vr(vT2)}, 2, {vr(vLANE)}")
        a(f"v_add_u32 {vr(vT2)}, {sr(sT2)}, {vr(vT2)}")
    else:
        a(f"v_add_u32 {vr(vT2)}, {sr(sT2)}, {vr(vLANE)}")
    a(f"s_lshr_b32 {sr(sT1)}, {sr(sRB)}, 2")
    a(f"s_lshl_b32 {sr(sT1)}, {sr(sT1)}, 9")
    a(f"v_add_u32 {vr(vT3)}, {sr(sT1)}, {vr(vT2)}")
    a(f"v_mul_u32_u24 {vr(vT3)}, 896, {vr(vT3)}")
    a(f"v_mul_u32_u24 {vr(vT4)}, 43691, {vr(vT2)}")
    a(f"v_lshrrev_b32 {vr(vT4)}, 19, {vr(vT4)}")
    a(f"v_mul_u32_u24 {vr(vT0)}, 12, {vr(vT4)}")
    a(f"v_sub_u32 {vr(vT2)}, {vr(vT2)}, {vr(vT0)}")
    a(f"v_mul_u32_u24 {vr(vT4)}, 2688, {vr(vT4)}")
    a(f"v_lshrrev_b32 {vr(vT0)}, 2, {vr(vT2)}")
    a(f"v_mul_u32_u24 {vr(vT0)}, 896, {vr(vT0)}")
    a(f"v_add_u32 {vr(vT4)}, {vr(vT4)}, {vr(vT0)}")
    a(f"v_and_b32 {vr(vT2)}, 3, {vr(vT2)}")
    a(f"v_lshl_add_u32 {vr(vT4)}, {vr(vT2)}, 7, {vr(vT4)}")
    a(f"s_mul_i32 {sr(sT1)}, {sr(sHALF)}, 384")
    a(f"v_add_u32 {vr(vT4)}, {sr(sT1)}, {vr(vT4)}")
    a(f"v_cndmask_b32 {vr(vT4)}, {vr(vT4)}, {vr(vT3)}, vcc")
    if flag("stag"):
        a(f"v_mov_b32 v18, {vr(vT4)}")
        a(f"s_mov_b32 s12, {sr(sT3)}")
        for c in range(opt("pf0", 2), opt("pf0", 2) + opt("pfinit", 2)): pf_stag(c)
        return
    PF0 = opt("pf0", 1)
    a(f"s_add_u32 {sr(sT1)}, {sr(sU)}, {PF0}")
    a(f"s_mul_i32 {sr(sT1)}, {sr(sT1)}, {sr(sT3)}")
    a(f"buffer_load_dword {vr(vDUM)}, {vr(vT4)}, {sr(SP,4)}, {sr(sT1)} offen")
    L = a.newlabel("L_pf")
    a(f"s_cmp_ge_u32 {sr(sU)}, {3 - PF0}")
    a(f"s_cbranch_scc1 {L}")
    a(f"s_lshl_b32 {sr(sT3)}, {sr(sT3)}, 2")
    a(f"s_add_u32 {sr(sT1)}, {sr(sT1)}, {sr(sT3)}")
    a(f"buffer_load_dword {vr(vDUM)}, {vr(vT4)}, {sr(SP,4)}, {sr(sT1)} offen")
    a.label(L)

def wo_prefetch_early():
    if not flag("woearly"): return
    L = a.newlabel("L_wpe"); L1 = a.newlabel("L_wpe"); L2 = a.newlabel("L_wpe")
    a(f"s_cmp_lt_u32 {sr(sU)}, 2")
    a(f"s_cbranch_scc1 {L}")
    a(f"s_and_b32 {sr(sT0)}, {sr(sJ)}, 15")
    a(f"s_mul_i32 {sr(sT0)}, {sr(sT0)}, 28")
    a(f"s_and_b32 {sr(sT1)}, {sr(sU)}, 1")
    a(f"s_lshl_b32 {sr(sT1)}, {sr(sT1)}, 4")
    a(f"s_add_u32 {sr(sT0)}, {sr(sT0)}, {sr(sT1)}")
    a(f"s_mul_i32 {sr(sT0)}, {sr(sT0)}, 896")
    a(f"s_lshl_b32 {sr(sT1)}, {sr(sHALF)}, 9")
    a(f"s_add_u32 {sr(sT0)}, {sr(sT0)}, {sr(sT1)}")
    a(f"v_lshrrev_b32 {vr(vT0)}, 2, {vr(vLANE)}")
    a(f"v_mul_u32_u24 {vr(vT0)}, 896, {vr(vT0)}")
    a(f"v_and_b32 {vr(vT1)}, 3, {vr(vLANE)}")
    a(f"v_lshl_add_u32 {vr(vT0)}, {vr(vT1)}, 7, {vr(vT0)}")
    a(f"s_cmp_eq_u32 {sr(sTYPE)}, 1")
    a(f"s_cbranch_scc1 {L1}")
    a(f"buffer_load_dword {vr(vDUM)}, {vr(vT0)}, {sr(SWOA,4)}, {sr(sT0)} offen")
    a(f"s_branch {L}")
    a.label(L1)
    a(f"buffer_load_dword {vr(vDUM)}, {vr(vT0)}, {sr(SWOB,4)}, {sr(sT0)} offen")
    a.label(L)

def compute():
    a.label("L_compute")
    if not flag("cpfearly"):
        a(f"s_and_b32 {sr(sT2)}, {sr(sJ)}, 7")
        a(f"s_or_b32 {sr(sT2)}, {sr(sT2)}, {sr(sWAVE)}")
        a(f"s_cmp_lg_u32 {sr(sT2)}, 0")
        a("s_cbranch_scc1 L_nopf")
        a(f"v_lshlrev_b32 {vr(vT1)}, 7, {vr(vLANE)}")
        for i in range(4):
            if i:
                a(f"v_add_u32 {vr(vT1)}, 8192, {vr(vT1)}")
                a(f"v_min_u32 {vr(vT1)}, L_end-L_pc, {vr(vT1)}")
            a.vmem_unc(f"global_load_dword {vr(vDUM)}, {vr(vT1)}, {sr(sPC,2)}")
        a.label("L_nopf")
    a(f"s_cmp_eq_u32 {sr(sTYPE)}, 0")
    a("s_cbranch_scc1 L_cB")
    vXR0, vXR1, vHR0, vHR1 = 10, 11, 12, 13
    vWR = {(0,0):14, (1,0):15, (0,1):16, (1,1):17}
    SETS = [24, 68]
    ACC = 112; ACX = 208
    def acc(seg, t, tl): return ACC + ((seg*2+t)*4+tl)*4
    x_read_addr(vXR0, vXR1, None, None)
    a(f"v_add_u32 {vr(vHR0)}, {A_HALO}, {vr(vT5)}")
    a(f"v_xor_b32 {vr(vHR1)}, 64, {vr(vHR0)}")
    for t in range(2):
        w_read_addr(vWR[(t,0)], t, 3, L_W[0])
        a(f"v_add_u32 {vr(vWR[(t,1)])}, {L_W[2]-L_W[0]}, {vr(vWR[(t,0)])}")
    a("s_waitcnt lgkmcnt(0)")
    l2_prefetch()
    late_srds(); wo_prefetch_early(); late_setup(True); setup_A_consts()
    def reads(c, ks, S):
        sl = c % 3; out = []
        xr = vXR0 if ks == 0 else vXR1
        reg = 1 if sl == 2 else 0
        wb = (L_W[sl] - L_W[2*reg]) + ks*4*3072
        def wfrag(seg, t):
            for h in range(2):
                out.append(f"ds_read_b64_tr_b16 {vr(S+20+(seg*2+t)*4+2*h,2)}, {vr(vWR[(t,reg)])} offset:{wb + seg*1024 + h*512}")
        def xfrag(tl): out.append(f"ds_read_b128 {vr(S+tl*4,4)}, {vr(xr)} offset:{L_X[sl] + tl*2048}")
        xfrag(0); wfrag(0, 0); xfrag(1); xfrag(2); xfrag(3); wfrag(0, 1)
        for seg in (1, 2):
            for t in range(2): wfrag(seg, t)
        out.append(f"ds_read_b128 {vr(S+16,4)}, {vr(vHR0 if ks == 0 else vHR1)} offset:{c*2048}")
        return out
    def mlist(S, first):
        ms = []
        for seg in range(3):
            for t in range(2):
                for tl in range(4):
                    d = acc(seg, t, tl); W = S+20+(seg*2+t)*4; X = S+tl*4
                    A_, B_ = (W, X) if seg < 2 else (X, W)
                    ms.append((lambda d=d, A_=A_, B_=B_: mfma(d, A_, B_, None if first else d), R4(W) + R4(X)))
        def side():
            L1 = a.newlabel("L_s"); L2 = a.newlabel("L_s")
            C0 = None if first else ACX; C1 = None if first else ACX+4
            a(f"s_cbranch_scc1 {L1}")
            mfma(ACX, S+28, S+16, C0); mfma(ACX+4, S+32, S+16, C1)
            a(f"s_branch {L2}")
            a.label(L1)
            mfma(ACX, S+16, S+36, C0); mfma(ACX+4, S+16, S+40, C1)
            a.label(L2)
        ms.append((side, R4(S+16)))
        return ms
    a("s_waitcnt lgkmcnt(0)")
    compute_tag()
    stamp("A setup done")
    a(f"s_cmp_eq_u32 {sr(sMP)}, 1")
    for c in range(7):
        a.c(f"---- A chunk {c}")
        a("s_waitcnt lgkmcnt(0)")
        a.ds_all()
        a("s_barrier")
        pf_stag(c + opt("pf0", 2) + opt("pfinit", 2))
        r0 = reads(c, 0, SETS[0])
        if c == 0:
            for r in r0: a.dsr(r)
        else:
            sched_step(mlist(SETS[1], False), r0, 2)
        sched_step(mlist(SETS[0], c == 0), reads(c, 1, SETS[1]), 6)
    sched_step(mlist(SETS[1], False), [], 0)
    a.ds_all()
    stamp("A gemm done")
    KB = 24; QB = 44; VB = [60, 70]; HB_ = 80
    pack4(KB+16, acc(1,0,3), acc(1,1,3))
    a(f"ds_write_b128 {vr(A_vEX)}, {vr(KB+16,4)}")
    for et in range(2):
        cvtpk(VB[et]+8, acc(2,et,3), acc(2,et,3)+1); cvtpk(VB[et]+9, acc(2,et,3)+2, acc(2,et,3)+3)
        a(f"ds_write_b64 {vr(A_vEX)}, {vr(VB[et]+8,2)} offset:{1024 + et*8}")
    for tl in range(3): pack4(KB+4+tl*4, acc(1,0,tl), acc(1,1,tl))
    pack4(HB_, ACX, ACX+4)
    a(f"ds_write_b128 {vr(A_vHW)}, {vr(HB_,4)}")
    for tl in range(4):
        pack4(QB+tl*4, acc(0,0,tl), acc(0,1,tl))
        a(f"v_cndmask_b32 {vr(QB+tl*4+2)}, 0, {vr(QB+tl*4+2)}, {sr(sMASK48,2)}")
        a(f"v_cndmask_b32 {vr(QB+tl*4+3)}, 0, {vr(QB+tl*4+3)}, {sr(sMASK48,2)}")
    a("s_waitcnt lgkmcnt(0)")
    a("s_barrier")
    a(f"ds_read_b128 {vr(KB,4)}, {vr(A_vPK)}")
    a(f"ds_read_b64 {vr(VB[0],2)}, {vr(A_vPK)} offset:1024")
    a(f"ds_read_b64 {vr(VB[1],2)}, {vr(A_vPK)} offset:1032")
    for tl in range(3):
        for et in range(2):
            d = VB[et] + 2 + tl*2
            cvtpk(d, acc(2,et,tl), acc(2,et,tl)+1); cvtpk(d+1, acc(2,et,tl)+2, acc(2,et,tl)+3)
    BIAS = A_BIAS
    TT = [84, 112, 140, 168]
    def R(tl, k): return TT[tl] + k
    order = (3, 2, 1, 0)
    for tl in (3, 2, 1):
        mfma(R(tl,0), KB+tl*4, QB+tl*4); mfma(R(tl,4), KB+4+tl*4, QB+tl*4)
    mfma(R(0,4), KB+4, QB)
    a("s_waitcnt lgkmcnt(0)")
    mfma(R(0,0), KB, QB)
    for tl in order:
        for i, (s_, o) in enumerate(((0,0),(0,2),(4,0),(4,2))):
            a(f"v_cndmask_b32 {vr(R(tl,8+i))}, {vr(R(tl,s_+o))}, {vr(R(tl,s_+o+1))}, {sr(sODD,2)}")
        bp = BIAS if tl else BIAS + 4
        for i, b in enumerate((bp, bp+1, BIAS+2, BIAS+3)):
            a(f"v_fma_f32 {vr(R(tl,8+i))}, {vr(R(tl,8+i))}, {sr(sK0)}, {vr(b)}")
        a(f"v_max3_f32 {vr(R(tl,12))}, {vr(R(tl,8))}, {vr(R(tl,9))}, {vr(R(tl,10))}")
        a(f"v_max_f32 {vr(R(tl,12))}, {vr(R(tl,12))}, {vr(R(tl,11))}")
        a(f"v_mov_b32 {vr(R(tl,13))}, {vr(R(tl,12))}")
    for tl in order: a(f"v_permlane32_swap_b32 {vr(R(tl,12))}, {vr(R(tl,13))}")
    for tl in order: a(f"v_max_f32 {vr(R(tl,12))}, {vr(R(tl,12))}, {vr(R(tl,13))}")
    for tl in order: a(f"v_mov_b32 {vr(R(tl,13))}, {vr(R(tl,12))}")
    for tl in order: a(f"v_permlane16_swap_b32 {vr(R(tl,12))}, {vr(R(tl,13))}")
    for tl in order: a(f"v_max_f32 {vr(R(tl,12))}, {vr(R(tl,12))}, {vr(R(tl,13))}")
    for tl in order:
        for i in range(4): a(f"v_sub_f32 {vr(R(tl,8+i))}, {vr(R(tl,8+i))}, {vr(R(tl,12))}")
        for i in range(4): a(f"v_exp_f32 {vr(R(tl,8+i))}, {vr(R(tl,8+i))}")
    for tl in order:
        for i in range(4): a(f"v_cvt_pk_bf16_f32 {vr(R(tl,16+i))}, {vr(R(tl,8+i))}, 0")
        for i in range(4): a(f"v_lshlrev_b32 {vr(R(tl,16+i))}, {vr(A_SH)}, {vr(R(tl,16+i))}")
        if tl == 3: continue
        p = tl + 1
        mfma(R(p,20), A_ONES, R(p,16)); mfma(R(p,0), VB[0]+2*p, R(p,16)); mfma(R(p,4), VB[1]+2*p, R(p,16))
    a("s_nop 1")
    mfma(R(0,20), A_ONES, R(0,16)); mfma(R(0,0), VB[0], R(0,16)); mfma(R(0,4), VB[1], R(0,16))
    for tl in order:
        a(f"v_rcp_f32 {vr(R(tl,12))}, {vr(R(tl,20))}")
        if tl: a(f"s_add_u32 {sr(sT0)}, {sr(sOST)}, {tl*16384}")
        else: a("s_nop 0")
        for i in range(8): a(f"v_mul_f32 {vr(R(tl,i))}, {vr(R(tl,i))}, {vr(R(tl,12))}")
        for i in range(4): cvtpk(R(tl,24+i), R(tl,2*i), R(tl,2*i+1))
        a(f"v_cndmask_b32 {vr(R(tl,26))}, 0, {vr(R(tl,26))}, {sr(sMASK48,2)}")
        a(f"v_cndmask_b32 {vr(R(tl,27))}, 0, {vr(R(tl,27))}, {sr(sMASK48,2)}")
        a(f"buffer_store_dwordx4 {vr(R(tl,24),4)}, {vr(vL16)}, {sr(SWS,4)}, {sr(sT0 if tl else sOST)} offen sc1")
    if flag("wolate") or flag("wosplit"): a("s_barrier")
    stamp("A attn done")
    a(f"v_mov_b32 v24, {sr(sTAG)}")
    a(f"v_mov_b32 v25, {sr(sTAG+1)}")
    a(f"v_lshlrev_b32 v26, 9, {vr(vLANE)}")
    a("s_waitcnt vmcnt(0)")
    a("s_mov_b64 exec, 3")
    a(f"buffer_store_dwordx2 v[24:25], v26, {sr(SWS,4)}, {sr(sF2W)} offen sc1")
    a("s_mov_b64 exec, -1")
    stamp("A flag set")
    a(f"s_cmp_eq_u32 {sr(sHP)}, 7")
    a("s_cbranch_scc1 L_idle2")
    a("s_branch L_phase2")

    a.label("L_cB")
    a.vm = []
    vXR = [10, 11, 12, 13]; vWB = [14, 15]
    SB = [24, 56]; AB = 112
    def accB(seg, t, tl): return AB + ((seg*2+t)*4+tl)*4
    x_read_addr(*vXR)
    for t in range(2): w_read_addr(vWB[t], t, 2, BW[0])
    a("s_waitcnt lgkmcnt(0)")
    l2_prefetch()
    late_srds(); wo_prefetch_early(); late_setup(False); setup_B_consts()
    a(f"v_lshlrev_b32 {vr(vT0)}, 2, {vr(vI16)}")
    a(f"v_add_u32 {vr(vT0)}, {B_SY}, {vr(vT0)}")
    a(f"v_mov_b32 {vr(vT1)}, 0")
    a(f"ds_write_b32 {vr(vT0)}, {vr(vT1)}")
    a("s_waitcnt lgkmcnt(0)")
    compute_tag()
    stamp("B setup done")
    def breads(c, ks, S):
        xr = vXR[(2 if c >= 4 else 0) + ks]; xo = BX[c] - (65536 if c >= 4 else 0)
        wb = BW[c % 2] - BW[0] + ks*4*2048
        out = []
        def wfrag(seg, t):
            for h in range(2):
                out.append(f"ds_read_b64_tr_b16 {vr(S+16+(seg*2+t)*4+2*h,2)}, {vr(vWB[t])} offset:{wb + seg*1024 + h*512}")
        def xfrag(tl): out.append(f"ds_read_b128 {vr(S+tl*4,4)}, {vr(xr)} offset:{xo + tl*2048}")
        xfrag(0); wfrag(0, 0); xfrag(1); xfrag(2); xfrag(3); wfrag(0, 1); wfrag(1, 0); wfrag(1, 1)
        return out
    def bm(S, first):
        ms = []
        for seg in range(2):
            for t in range(2):
                for tl in range(4):
                    d = accB(seg, t, tl); W = S+16+(seg*2+t)*4; X = S+tl*4
                    c0 = B_EPS4 if seg == 0 else None
                    ms.append((lambda d=d, X=X, W=W, c0=c0: mfma(d, X, W, c0 if first else d), R4(W) + R4(X)))
        return ms
    T = 176
    for c in range(7):
        a.c(f"---- B chunk {c}")
        a("s_waitcnt lgkmcnt(0)")
        a.ds_all()
        a("s_barrier")
        pf_stag(c + opt("pf0", 2) + opt("pfinit", 2))
        r0 = breads(c, 0, SB[0])
        if c == 0:
            for r in r0: a.dsr(r)
        else:
            sched_step(bm(SB[1], False), r0, 2)
        if c < 6:
            sched_step(bm(SB[0], c == 0), breads(c, 1, SB[1]), 4)
    m0, m1 = bm(SB[0], False), bm(SB[1], False)
    sched_step(m0[:12], breads(6, 1, SB[1]), 4)
    for fn, regs in m1[:8]:
        a.need(regs); fn()
    rest = m0[12:] + m1[8:]
    ph = phi_ops(AB, 32, T)
    per = -(-len(ph) // (len(rest) - 3))
    for i, (fn, regs) in enumerate(rest):
        a.need(regs); fn()
        if i == 3: a("s_nop 3")
        if i >= 3:
            for _ in range(per):
                if ph: a(ph.pop(0))
    for t_ in ph: a(t_)
    a.ds_all()
    stamp("B gemm done")
    PK = 24; PV = 40; KV = 56
    for ks in range(2):
        for dt in range(2): pack4(PK+(ks*2+dt)*4, accB(0,dt,2*ks), accB(0,dt,2*ks+1))
    for ks in range(2):
        for et in range(2): pack4(PV+(ks*2+et)*4, accB(1,et,2*ks), accB(1,et,2*ks+1))
    a(f"v_mov_b32 {vr(T)}, 0x3f803f80")
    for ks in range(2):
        for i in range(4):
            r = PV+(ks*2+1)*4+i
            a(f"v_cndmask_b32 {vr(r)}, {vr(r)}, {vr(T)}, {sr(sONE,2)}")
    a(f"s_cmp_eq_u32 {sr(sMP)}, 0")
    a("s_nop 0")
    a("s_cbranch_scc1 L_B_s0")
    for dts, base in ((0, KV), (1, KV+8)):
        for ks in range(2):
            for et in range(2): mfma(base+et*4, PK+(ks*2+dts)*4, PV+(ks*2+et)*4, None if ks == 0 else base+et*4)
    a("s_branch L_B_s1")
    a.label("L_B_s0")
    for dts, base in ((1, KV), (0, KV+8)):
        for ks in range(2):
            for et in range(2): mfma(base+et*4, PK+(ks*2+dts)*4, PV+(ks*2+et)*4, None if ks == 0 else base+et*4)
    a.label("L_B_s1")
    a(f"s_lshl_b32 {sr(sT1)}, {sr(sRB)}, 10")
    a(f"s_add_u32 {sr(sT1)}, {sr(sT1)}, {sr(sKVO)}")
    a("s_nop 1")
    a(f"ds_write_b128 {vr(B_vSW)}, {vr(KV,4)}")
    a(f"ds_write_b128 {vr(B_vSW)}, {vr(KV+4,4)} offset:1024")
    a("s_waitcnt lgkmcnt(0)")
    a("s_barrier")
    a(f"ds_read_b128 {vr(KV+16,4)}, {vr(B_vSR)}")
    a(f"ds_read_b128 {vr(KV+20,4)}, {vr(B_vSR)} offset:1024")
    a("s_waitcnt lgkmcnt(0)")
    for i in range(0, 8, 2):
        a(f"v_pk_add_f32 {vr(KV+8+i,2)}, {vr(KV+8+i,2)}, {vr(KV+16+i,2)}")
    pack4(KV+24, KV+8, KV+12)
    a(f"buffer_store_dwordx4 {vr(KV+24,4)}, {vr(vL16)}, {sr(SWS,4)}, {sr(sT1)} offen sc1")
    lds_signal(B_vSY, 24)
    stamp("B partial stored")
    a("s_waitcnt vmcnt(0)")
    set_flag(sF1W, T)
    stamp("B flag1 set")
    poll_issue(sF1R, T+2)
    poll_finish(sF1R, T+2, T+4)
    stamp("B flag1 seen")
    PL = 112; T = 24
    for r in range(16):
        if r % 4 == 0 and r: a(f"s_add_u32 {sr(sT1)}, {sr(sKVO)}, {r*1024}")
        a.vmem(f"buffer_load_dwordx4 {vr(PL+r*4,4)}, {vr(vL16)}, {sr(SWS,4)}, {sr(sKVO if r < 4 else sT1)} offen offset:{(r%4)*1024} sc1", f"pl{r}")
    for r in range(16):
        a.wait_vm(f"pl{r}")
        mfma(T, B_SEL, PL+r*4, None if r == 0 else T)
        mfma(T+4, B_SEL+4, PL+r*4, None if r == 0 else T+4)
    a("s_nop 6")
    cvtpk(T+8, T, T+1); cvtpk(T+9, T+2, T+3)
    cvtpk(T+10, T+4, T+5); cvtpk(T+11, T+6, T+7)
    a(f"ds_write_b64 {vr(B_vKW)}, {vr(T+8,2)}")
    a(f"ds_write_b64 {vr(B_vKW)}, {vr(T+10,2)} offset:1024")
    a("s_waitcnt lgkmcnt(0)")
    lds_signal(B_vSK)
    a(f"v_subrev_u32 {vr(vT2)}, {B_KVS}, {vr(B_vSW)}")
    stamp("B kv done")
    lds_spin([(B_vSK, 0), (B_vPQ, 0)], 3, vT0)
    a(f"ds_read_b128 {vr(64,4)}, {vr(vT2)}")
    a(f"ds_read_b128 {vr(68,4)}, {vr(vT2)} offset:1024")
    a.vm = []
    o_B(64, 24, 112, "B")

def phase2():
    a.label("L_bp2")
    a(f"s_cmp_eq_u32 {sr(sHP)}, 7")
    a("s_cbranch_scc1 L_end")
    a("s_barrier")
    for n in range(7):
        a(f"s_add_u32 m0, {sr(sW1K)}, {P2_WO + n*8192}")
        a(f"s_mov_b32 {sr(sT2)}, {n*57344}")
        a(f"buffer_load_dwordx4 {vr(vWOD)}, {sr(SWOB,4)}, {sr(sT2)} offen lds")
    a.label("L_phase2")
    a.vm = []
    ACC = 4; OF = 36; WF = 100; T = 228; AT = 20
    a(f"v_mov_b32 {vr(T)}, 0")
    a(f"v_mov_b32 {vr(T+1)}, 0")
    a(f"v_lshlrev_b32 {vr(T+2)}, 3, {vr(vLANE)}")
    a(f"v_add_u32 {vr(T+2)}, {P2_ZERO}, {vr(T+2)}")
    a(f"ds_write_b64 {vr(T+2)}, {vr(T,2)}")
    a("s_waitcnt vmcnt(0) lgkmcnt(0)")
    a("s_barrier")
    stamp("P2 wo landed")
    def wreads(h):
        out = []
        for t in range(4):
            base = vWO[t ^ (2 if h & 1 else 0)]
            for hf in range(2):
                out.append(f"ds_read_b64_tr_b16 {vr(WF+(h%8)*16+t*4+hf*2,2)}, {vr(base)} offset:{h*3584 + hf*2048}")
        return out
    poll_issue(sF2R, T+4)
    a.ds_all()
    for h in range(8):
        for r in wreads(h): a.dsr(r)
    poll_finish(sF2R, T+4, T+2)
    stamp("P2 flags seen")
    for h in range(16):
        if h % 4 == 0 and h: a(f"s_add_u32 {sr(sT1)}, {sr(sOLD)}, {h*1024}")
        a.vmem(f"buffer_load_dwordx4 {vr(OF+h*4,4)}, {vr(vL16)}, {sr(SWS,4)}, {sr(sOLD if h < 4 else sT1)} offen offset:{(h%4)*1024} sc1", f"o{h}")
    a.vmem(f"buffer_load_dword {vr(T+6)}, {vr(vGT)}, {sr(SWS,4)}, {sr(sGT)} offen sc1", "g")
    a.vmem(f"buffer_load_dwordx2 {vr(T+4,2)}, off, {sr(SWS,4)}, {sr(sF3)} sc1", "f3")
    for h in range(16):
        a.wait_vm(f"o{h}")
        rd = wreads(h + 8) if h < 8 else []
        for t in range(4):
            W = WF + (h % 8)*16 + t*4
            a.need(R4(W))
            mfma(ACC+t*4, W, OF+h*4, None if h == 0 else ACC+t*4)
            for _ in range(2):
                if rd: a.dsr(rd.pop(0))
    a.ds_all()
    a(f"s_cmp_eq_u32 {sr(sTYPE)}, 0")
    a("s_cbranch_scc1 L_p2_B")
    a("s_nop 2")
    for t in range(4):
        cvtpk(OF+2*t, ACC+t*4, ACC+t*4+1); cvtpk(OF+2*t+1, ACC+t*4+2, ACC+t*4+3)
    a(f"buffer_store_dwordx4 {vr(OF,4)}, {vr(vL16)}, {sr(SWS,4)}, {sr(sAT)} offen sc1")
    a(f"buffer_store_dwordx4 {vr(OF+4,4)}, {vr(vL16)}, {sr(SWS,4)}, {sr(sAT)} offen offset:1024 sc1")
    a("s_waitcnt vmcnt(0)")
    set_flag(sF3, T)
    stamp("P2 a published")
    a("s_endpgm")
    a.label("L_p2_B")
    a(f"s_mov_b32 {sr(sCNT)}, 0")
    a.label("L_p2_f3")
    a("s_waitcnt vmcnt(0)")
    a(f"v_cmp_ne_u64 vcc, {sr(sTAG,2)}, {vr(T+4,2)}")
    a(f"s_add_u32 {sr(sCNT)}, {sr(sCNT)}, 1")
    a("s_cbranch_vccz L_p2_f3d")
    a(f"s_cmp_gt_u32 {sr(sCNT)}, 0x40000")
    a("s_cbranch_scc1 L_p2_f3d")
    a(f"buffer_load_dwordx2 {vr(T+4,2)}, off, {sr(SWS,4)}, {sr(sF3)} sc1")
    a("s_branch L_p2_f3")
    a.label("L_p2_f3d")
    a(f"buffer_load_dwordx4 {vr(AT,4)}, {vr(vL16)}, {sr(SWS,4)}, {sr(sAT)} offen sc1")
    a(f"buffer_load_dwordx4 {vr(AT+4,4)}, {vr(vL16)}, {sr(SWS,4)}, {sr(sAT)} offen offset:1024 sc1")
    for t in range(4):
        if t % 2 == 0: a(f"s_waitcnt vmcnt({1 - t//2})")
        U = OF + 16 + t*4; B_ = ACC + t*4
        for i in range(2):
            a(f"v_lshlrev_b32 {vr(U+2*i)}, 16, {vr(AT+2*t+i)}")
            a(f"v_and_b32 {vr(U+2*i+1)}, 0xffff0000, {vr(AT+2*t+i)}")
        for i in range(4): a(f"v_sub_f32 {vr(U+i)}, {vr(U+i)}, {vr(B_+i)}")
        for i in range(4): a(f"v_fma_f32 {vr(U+i)}, {vr(U+i)}, {vr(T+6)}, {vr(B_+i)}")
        cvtpk(OF+2*t, U, U+1); cvtpk(OF+2*t+1, U+2, U+3)
        a(f"ds_write_b64 {vr(vCW)}, {vr(OF+2*t,2)} offset:{t*32}")
    a("s_waitcnt lgkmcnt(0)")
    a(f"ds_read_b128 {vr(OF+8,4)}, {vr(vCR)}")
    a(f"ds_read_b128 {vr(OF+12,4)}, {vr(vCR)} offset:{8*144}")
    a(f"s_mov_b32 {sr(sT0)}, {8*896}")
    a("s_waitcnt lgkmcnt(1)")
    a(f"buffer_store_dwordx4 {vr(OF+8,4)}, {vr(vOUT)}, {sr(SOUT,4)}, 0 offen")
    a("s_waitcnt lgkmcnt(0)")
    a(f"buffer_store_dwordx4 {vr(OF+12,4)}, {vr(vOUT)}, {sr(SOUT,4)}, {sr(sT0)} offen")
    stamp("P2 done")
    a("s_endpgm")
    a.label("L_idle2")
    a(f"s_cmp_lg_u32 {sr(sRB)}, 15")
    a("s_cbranch_scc1 L_end")
    a(f"v_lshlrev_b32 v10, 5, v0")
    a(f"s_mov_b32 {sr(sCNT)}, 0")
    a.label("L_jan")
    for k in range(4):
        a(f"s_mov_b32 {sr(sT0)}, {WS_F2 + k*16384}")
        a(f"buffer_load_dwordx2 {vr(12+2*k,2)}, v10, {sr(SWS,4)}, {sr(sT0)} offen sc1")
    a(f"s_add_u32 {sr(sCNT)}, {sr(sCNT)}, 1")
    a("s_waitcnt vmcnt(0)")
    a(f"v_cmp_ne_u64 {sr(sT0,2)}, {sr(sTAG,2)}, v[12:13]")
    a(f"v_cmp_ne_u64 {sr(sT2,2)}, {sr(sTAG,2)}, v[14:15]")
    a(f"s_or_b64 {sr(sT0,2)}, {sr(sT0,2)}, {sr(sT2,2)}")
    a(f"v_cmp_ne_u64 {sr(sT2,2)}, {sr(sTAG,2)}, v[16:17]")
    a(f"s_or_b64 {sr(sT0,2)}, {sr(sT0,2)}, {sr(sT2,2)}")
    a(f"v_cmp_ne_u64 {sr(sT2,2)}, {sr(sTAG,2)}, v[18:19]")
    a(f"s_or_b64 {sr(sT0,2)}, {sr(sT0,2)}, {sr(sT2,2)}")
    a("s_cbranch_scc0 L_jand")
    a(f"s_cmp_gt_u32 {sr(sCNT)}, 0x40000")
    a("s_cbranch_scc1 L_jand")
    a("s_sleep 4")
    a("s_branch L_jan")
    a.label("L_jand")
    a("s_barrier")
    a(f"s_cmp_lg_u32 {sr(sWAVE)}, 0")
    a("s_cbranch_scc1 L_end")
    a(f"s_mov_b32 {sr(sT0)}, {WS_EPOCH}")
    set_flag(sT0, 10)
    a.label("L_end")
    a("s_endpgm")

prologue()
loader()
a.vm = []
compute()
phase2()

hdr = f"""; fused gated-mix kernel: generated by gen/gen9.py
; @launch grid=(256,1,1) block=(512,1,1) lds={LDS_BYTES}
.amdgcn_target "amdgcn-amd-amdhsa--gfx950"
.text
.globl {NAME}_kernel
.p2align 8
.type {NAME}_kernel,@function
"""
ftr = f"""
.section .rodata,"a"
.p2align 6
.amdhsa_kernel {NAME}_kernel
  .amdhsa_next_free_vgpr 256
  .amdhsa_next_free_sgpr 102
  .amdhsa_accum_offset 256
  .amdhsa_group_segment_fixed_size 0
  .amdhsa_kernarg_size 80
  .amdhsa_user_sgpr_count 2
  .amdhsa_user_sgpr_kernarg_segment_ptr 1
  .amdhsa_system_sgpr_workgroup_id_x 1
.end_amdhsa_kernel
"""
out = [x for x in sys.argv[1:] if not x.startswith("--")]
path = out[0] if out else f"cdna_kernels/{NAME}.s"
open(path, "w").write(hdr + "\n".join(a.lines) + ftr)
print("wrote", path, len(a.lines), "lines")
```
